```python
import torch

def _softmax(x, axis=-1):
    return torch.softmax(x, dim=axis)

def _gelu(x):
    return torch.nn.functional.gelu(x, approximate='tanh')

def _silu(x):
    return torch.nn.functional.silu(x)

def _sigmoid(x):
    return torch.sigmoid(x)

def _layernorm(x, axis=-1, eps=1e-05):
    m = x.mean(dim=axis, keepdim=True)
    v = x.var(dim=axis, keepdim=True, unbiased=False)
    return (x - m) / torch.sqrt(v + eps)

def _scatter_add(tgt, idx, src, axis=0):
    return tgt.clone().index_add_(axis, idx, src)

def _segment_sum(src, seg, n):
    out = torch.zeros((n,) + src.shape[1:], dtype=src.dtype)
    return out.index_add_(0, seg, src)

def _pad(x, pw):
    flat = tuple((v for pair in reversed(pw) for v in pair))
    return torch.nn.functional.pad(x, flat)
kernel_name = 'adaLN_cond__sliding_block__glu_gated_glu__prompt'

def setup_inputs():

    _w = lambda a: (lambda t: t.to(torch.bfloat16) if t.is_floating_point() else t)(torch.as_tensor(a))

    def _A_setup():
        B, S, D = (1, 2048, 640)
        return {'x': _w((lambda *s: torch.randn(*s, dtype=torch.bfloat16) * 0.05)(B, S, D)), 'wqkv': _w((lambda *s: torch.randn(*s, dtype=torch.bfloat16) * 0.05)(D, 3 * D)), 'wo': _w((lambda *s: torch.randn(*s, dtype=torch.bfloat16) * 0.05)(D, D))}
    _A_in = _A_setup()

    def _B_setup():
        B, S, D, F = (1, 2048, 640, 1536)
        return {'x': _w((lambda *s: torch.randn(*s, dtype=torch.bfloat16) * 0.05)(B, S, D)), 'w_gate': _w((lambda *s: torch.randn(*s, dtype=torch.bfloat16) * 0.05)(D, F)), 'w_up': _w((lambda *s: torch.randn(*s, dtype=torch.bfloat16) * 0.05)(D, F)), 'w_down': _w((lambda *s: torch.randn(*s, dtype=torch.bfloat16) * 0.05)(F, D))}
    _B_in = _B_setup()
    return {'A_x': _A_in['x'], 'A_wqkv': _A_in['wqkv'], 'A_wo': _A_in['wo'], 'B_x': _B_in['x'], 'B_w_gate': _B_in['w_gate'], 'B_w_up': _B_in['w_up'], 'B_w_down': _B_in['w_down'], 'c': _w((lambda *s: torch.randn(*s, dtype=torch.bfloat16) * 0.1)(1, 640) * 8.0), 'w_mod': _w((lambda *s: torch.randn(*s, dtype=torch.bfloat16) * 0.1)(640, 6 * 640) * 640 ** (-0.5) * 8.0)}

def reference(A_x, A_wqkv, A_wo, B_x, B_w_gate, B_w_up, B_w_down, c, w_mod):

    def _A_ref(x, wqkv, wo):
        B, S, D = x.shape
        H = 32
        Dh = D // H
        W = 256
        qkv = (lambda x, *d: x.permute(*d))((x @ wqkv).reshape(B, S, 3, H, Dh), 2, 0, 3, 1, 4)
        q, k, v = (qkv[0], qkv[1], qkv[2])
        scores = torch.einsum('bhqd,bhkd->bhqk', q, k) * Dh ** (-0.5)
        idx = torch.arange(S)
        mask = (idx[:, None] - idx[None, :] >= 0) & (idx[:, None] - idx[None, :] < W)
        scores = torch.where(mask[None, None], scores, -1000000000.0)
        p = _softmax(scores, axis=-1)
        o = torch.einsum('bhqk,bhkd->bhqd', p, v)
        return (lambda x, *d: x.permute(*d))(o, 0, 2, 1, 3).reshape(B, S, D) @ wo

    def _B_ref(x, w_gate, w_up, w_down):
        g = torch.einsum('bsd,df->bsf', x, w_gate)
        u = torch.einsum('bsd,df->bsf', x, w_up)
        h = _sigmoid(g) * u
        return torch.einsum('bsf,fd->bsd', h, w_down)
    x = A_x
    mod = (_silu(c) @ w_mod).reshape(c.shape[0], 6, 1, -1)
    sa, ca, ga, sb, cb, gb = (mod[:, 0].clone(), mod[:, 1].clone(), mod[:, 2].clone(), mod[:, 3].clone(), mod[:, 4].clone(), mod[:, 5].clone())
    h = _layernorm(x, axis=-1) * (1 + ca) + sa
    x = x + ga * _A_ref(h, A_wqkv, A_wo)
    h = _layernorm(x, axis=-1) * (1 + cb) + sb
    x = x + gb * _B_ref(h, B_w_gate, B_w_up, B_w_down)
    return x
```

```python
class Asm:
    def __init__(self):
        self.lines = []
        self._lbl = 0
    def __call__(self, s=""):
        for ln in s.split("\n"):
            ln = ln.strip()
            if ln:
                self.lines.append(ln if ln.endswith(":") else "    " + ln)
    def label(self, name):
        self.lines.append(name + ":")
    def newlabel(self, base="L"):
        self._lbl += 1
        return f"{base}_{self._lbl}"
    def comment(self, s):
        self.lines.append("    ; " + s)
    def text(self):
        return "\n".join(self.lines) + "\n"

def vr(a, n=1):
    return f"v{a}" if n == 1 else f"v[{a}:{a+n-1}]"
def ar(a, n=1):
    return f"a{a}" if n == 1 else f"a[{a}:{a+n-1}]"
def sr(a, n=1):
    return f"s{a}" if n == 1 else f"s[{a}:{a+n-1}]"

def kernel_file(kernels, header_comments=()):
    out = []
    for c in header_comments:
        out.append("; " + c)
    for k in kernels:
        g, b = k["grid"], k["block"]
        if k.get("plain_launch"):
            out.append(f"; @launch grid=({g[0]},{g[1]},{g[2]}) block=({b[0]},{b[1]},{b[2]}) lds={k.get('lds',0)}")
        else:
            out.append(f"; @launch kernel={k['name']} grid=({g[0]},{g[1]},{g[2]}) block=({b[0]},{b[1]},{b[2]}) lds={k.get('lds',0)}")
    out.append('.amdgcn_target "amdgcn-amd-amdhsa--gfx950"')
    out.append(".text")
    seen = []
    for k in kernels:
        if k["name"] in seen:
            continue
        seen.append(k["name"])
        n = k["name"]
        out += [f".globl {n}", ".p2align 8", f".type {n},@function", f"{n}:"]
        out.append(k["body"].rstrip("\n"))
    out.append('.section .rodata,"a"')
    seen = []
    for k in kernels:
        if k["name"] in seen:
            continue
        seen.append(k["name"])
        v = k.get("vgpr", 256)
        a = k.get("agpr", 0)
        acc = (v + 3) // 4 * 4
        nfv = acc + a if a else v
        out += [".p2align 6", f".amdhsa_kernel {k['name']}",
                f"  .amdhsa_next_free_vgpr {nfv}",
                f"  .amdhsa_next_free_sgpr {k.get('sgpr', 102)}",
                f"  .amdhsa_accum_offset {acc}",
                "  .amdhsa_group_segment_fixed_size 0",
                "  .amdhsa_kernarg_size 96",
                "  .amdhsa_user_sgpr_count 2",
                "  .amdhsa_user_sgpr_kernarg_segment_ptr 1",
                "  .amdhsa_system_sgpr_workgroup_id_x 1"]
        if k.get("denorm32") is not None:
            out.append(f"  .amdhsa_float_denorm_mode_32 {k['denorm32']}")
        out.append(".end_amdhsa_kernel")
    return "\n".join(out) + "\n"
```

```python
import re

REG_RE = re.compile(r"^(-|abs\()?([vas])(?:(\d+)|\[(\d+):(\d+)\])\)?$")
TRANS = ("v_exp_f32", "v_log_f32", "v_rcp_f32", "v_rsq_f32", "v_sqrt_f32", "v_sin_f32", "v_cos_f32", "v_rcp_iflag_f32")

def regs_of(op):
    op = op.strip()
    if op == "vcc": return {("s", 106), ("s", 107)}
    if op == "exec": return {("s", 126), ("s", 127)}
    if op == "m0": return {("s", 124)}
    m = REG_RE.match(op)
    if not m: return set()
    k = m.group(2)
    if m.group(3) is not None:
        return {(k, int(m.group(3)))}
    return {(k, i) for i in range(int(m.group(4)), int(m.group(5)) + 1)}

def split_ops(rest):
    out, depth, cur = [], 0, ""
    for ch in rest:
        if ch in "[(": depth += 1
        if ch in "])": depth -= 1
        if ch == "," and depth == 0:
            out.append(cur.strip()); cur = ""
        else:
            cur += ch
    if cur.strip(): out.append(cur.strip())
    if out:
        parts = out[-1].split()
        out[-1] = parts[0]
        mods = parts[1:]
    else:
        mods = []
    return out, mods

class Ins:
    __slots__ = ("text", "op", "kind", "w", "r", "passes", "cregs", "lds", "wide", "mods", "ops")
    def __init__(self, text):
        self.text = text
        t = text.split(";")[0].strip()
        sp = t.split(None, 1)
        self.op = op = sp[0]
        ops, mods = split_ops(sp[1]) if len(sp) > 1 else ([], [])
        self.ops, self.mods = ops, mods
        R = [regs_of(o) for o in ops]
        self.w, self.r = set(), set()
        self.passes = 0; self.cregs = set(); self.lds = False; self.wide = False
        U = lambda xs: set().union(*xs) if xs else set()
        if op.startswith("v_mfma"):
            self.kind = "mfma"
            self.passes = 8 if "32x32" in op else 4
            self.w = R[0]; self.r = U(R[1:4]); self.cregs = R[3]
        elif op.startswith("v_"):
            base = op.replace("_e32", "").replace("_e64", "").replace("_dpp", "").replace("_sdwa", "")
            self.kind = "trans" if base in TRANS else "valu"
            if "permlane" in op and "swap" in op:
                self.w = R[0] | R[1]; self.r = R[0] | R[1]
            elif base in ("v_add_co_u32", "v_sub_co_u32", "v_addc_co_u32"):
                self.w = R[0] | R[1]; self.r = U(R[2:])
            elif base == "v_nop":
                pass
            else:
                self.w = R[0]; self.r = U(R[1:])
                if base in ("v_fmac_f32", "v_dot2c_f32_bf16", "v_writelane_b32") or "dpp" in op or any(m.startswith("row_") or m.startswith("quad_perm") for m in mods):
                    self.r |= R[0]
            if "dot2" in op: self.kind = "dot"
        elif op.startswith("ds_"):
            self.kind = "ds"
            if "read" in op or "bpermute" in op or "swizzle" in op:
                self.w = R[0]; self.r = U(R[1:])
            else:
                self.r = U(R)
        elif op.startswith("buffer_") or op.startswith("global_"):
            self.kind = "vmem"
            if op in ("buffer_inv", "buffer_wbl2"):
                pass
            elif "lds" in mods or "_lds_" in op:
                self.lds = True; self.r = U(R) | {("s", 124)}
            elif "load" in op:
                self.w = R[0]; self.r = U(R[1:])
            elif "atomic" in op:
                self.r = U(R)
                if "sc0" in mods: self.w = R[0]
            else:
                self.r = U(R)
                self.wide = op.endswith("x4") or op.endswith("x3")
        elif op.startswith("s_load") or op.startswith("s_buffer_load") or op in ("s_memtime", "s_memrealtime"):
            self.kind = "smem"
            self.w = R[0]; self.r = U(R[1:])
        elif op.startswith("s_"):
            self.kind = "salu"
            if op in ("s_waitcnt", "s_barrier", "s_nop", "s_endpgm", "s_branch", "s_sleep", "s_setprio") or op.startswith("s_cbranch"):
                pass
            elif op.startswith("s_cmp") or op.startswith("s_bitcmp"):
                self.r = U(R)
            else:
                self.w = R[0]; self.r = U(R[1:])
                if "saveexec" in op:
                    self.w = self.w | regs_of("exec")
        else:
            raise ValueError("unknown instruction " + text)

class Tok:
    __slots__ = ("cls", "dst", "done", "smem", "ref")
    def __init__(self, cls, dst, smem=False):
        self.cls, self.dst, self.done, self.smem = cls, dst, False, smem

class Gen:
    def __init__(self):
        self.lines = []
        self.hist = []
        self.pos = 0
        self.vm = []
        self.lg = []
        self._lbl = 0
        self.nops = 0
        self.count = 0
        self.count_vm = 0
    def raw(self, s):
        self.lines.append("    " + s)
    def comment(self, s):
        self.lines.append("    ; " + s)
    def newlabel(self, base="L"):
        self._lbl += 1
        return f"{base}{self._lbl}"
    def label(self, name):
        self.lines.append(name + ":")
    def _emit_wait(self, vm=None, lg=None):
        parts = []
        if vm is not None: parts.append(f"vmcnt({vm})")
        if lg is not None: parts.append(f"lgkmcnt({lg})")
        self._push(Ins("s_waitcnt " + " ".join(parts)))
        if vm is not None:
            while len(self.vm) > vm: self.vm.pop(0).done = True
        if lg is not None:
            while len(self.lg) > lg: self.lg.pop(0).done = True
    def wait(self, *toks):
        vm = lg = None
        for t in toks:
            if t is None or t.done: continue
            if t.cls == "vm":
                n = len(self.vm) - 1 - self.vm.index(t)
                vm = n if vm is None else min(vm, n)
            else:
                n = len(self.lg) - 1 - self.lg.index(t)
                if any(x.smem for x in self.lg): n = 0
                lg = n if lg is None else min(lg, n)
        if vm is not None: vm = min(vm, 63)
        if lg is not None: lg = min(lg, 15)
        if vm is not None or lg is not None:
            self._emit_wait(vm, lg)
    def wait_vm(self, n=0):
        self._emit_wait(vm=n)
    def wait_lg(self, n=0):
        self._emit_wait(lg=n)
    def wait_all(self):
        self._emit_wait(vm=0, lg=0)
    def forget(self):
        self.vm = []; self.lg = []
    def snapshot(self):
        return (list(self.vm), list(self.lg), [(t, t.done) for t in self.vm + self.lg])
    def restore(self, s):
        self.vm, self.lg = list(s[0]), list(s[1])
        for t, d in s[2]: t.done = d
    def _need(self, ins):
        need = 0
        for p, ppos in reversed(self.hist):
            dist = self.pos - ppos - 1
            if dist >= 20: break
            req = 0
            isv = ins.kind in ("valu", "trans", "dot")
            pv = p.kind in ("valu", "trans", "dot")
            if pv:
                vw = {x for x in p.w if x[0] != "s"}
                sw = {x for x in p.w if x[0] == "s"}
                if vw & ins.r:
                    if ins.kind == "mfma": req = max(req, 2)
                    if "permlane" in ins.op or "dpp" in ins.op or any(m.startswith("row_") or m.startswith("quad_perm") for m in ins.mods): req = max(req, 2)
                    if "readlane" in ins.op or "readfirstlane" in ins.op: req = max(req, 1)
                    if p.kind == "trans" and isv and ins.kind != "trans": req = max(req, 1)
                if p.kind == "dot" and (vw & (ins.r | ins.w)) and (isv or ins.kind == "mfma"):
                    same_c = ins.op == p.op and len(ins.ops) > 3 and regs_of(ins.ops[3]) == vw and not (vw & (regs_of(ins.ops[1]) | regs_of(ins.ops[2])))
                    if not same_c: req = max(req, 3)
                if sw & ins.r:
                    if ins.kind == "vmem": req = max(req, 5)
                    if isv or ins.kind == "mfma": req = max(req, 4 if ("readlane" in ins.op or "writelane" in ins.op) else 2)
                    if ins.kind in ("salu", "smem"): req = max(req, 1)
            if p.kind == "mfma":
                big = {4: 8, 8: 12}[p.passes]
                if ins.kind == "mfma":
                    ab = ins.r - ins.cregs if not (ins.cregs & (regs_of(ins.ops[1]) | regs_of(ins.ops[2]))) else ins.r
                    ab = regs_of(ins.ops[1]) | regs_of(ins.ops[2])
                    if p.w & ab: req = max(req, big)
                    if p.w & ins.cregs and not (p.w == ins.cregs and p.passes == ins.passes):
                        req = max(req, {4: 6, 8: 10}[p.passes])
                    if (p.w & ins.w) and not (p.w == ins.cregs):
                        req = max(req, {4: 6, 8: 10}[p.passes])
                elif isv:
                    if p.w & (ins.r | ins.w): req = max(req, big)
                    if p.cregs & ins.w: req = max(req, {4: 3, 8: 7}[p.passes])
                elif ins.kind in ("ds", "vmem"):
                    if p.w & (ins.r | ins.w): req = max(req, big)
                    if p.cregs & ins.w: req = max(req, {4: 3, 8: 7}[p.passes])
            if p.kind == "vmem" and p.wide and (isv or ins.kind == "mfma") and (regs_of(p.ops[0]) & ins.w):
                req = max(req, 2)
            if p.kind == "salu" and ("s", 124) in p.w and ins.kind == "vmem" and ins.lds:
                req = max(req, 1)
            need = max(need, req - dist)
        return need
    def _push(self, ins):
        self.lines.append("    " + ins.text)
        n = 1
        if ins.op == "s_nop": n = int(ins.ops[0]) + 1
        self.hist.append((ins, self.pos + n - 1))
        if len(self.hist) > 40: self.hist = self.hist[-30:]
        self.pos += n
        self.count += 1
    def __call__(self, text):
        tok = None
        for ln in text.split("\n"):
            ln = ln.strip()
            if not ln or ln.startswith(";"): continue
            tok = self.ins(ln)
        return tok
    def ins(self, text):
        ins = Ins(text)
        touched = ins.r | ins.w
        need = [t for t in self.vm + self.lg if t.dst & touched]
        if need: self.wait(*need)
        n = self._need(ins)
        while n > 0:
            k = min(n, 16)
            self._push(Ins(f"s_nop {k-1}")); self.nops += k
            n -= k
        if ins.op == "s_waitcnt":
            m = re.search(r"vmcnt\((\d+)\)", text); l = re.search(r"lgkmcnt\((\d+)\)", text)
            self._emit_wait(int(m.group(1)) if m else None, int(l.group(1)) if l else None)
            return None
        self._push(ins)
        tok = None
        if ins.kind == "vmem":
            tok = Tok("vm", set(ins.w)); self.vm.append(tok); self.count_vm += 1
        elif ins.kind == "ds":
            tok = Tok("lg", set(ins.w)); self.lg.append(tok)
        elif ins.kind == "smem":
            tok = Tok("lg", set(ins.w), smem=True); self.lg.append(tok)
        return tok
    def text(self):
        return "\n".join(self.lines) + "\n"

def v(a, n=1): return f"v{a}" if n == 1 else f"v[{a}:{a+n-1}]"
def a_(a, n=1): return f"a{a}" if n == 1 else f"a[{a}:{a+n-1}]"
def s(a, n=1): return f"s{a}" if n == 1 else f"s[{a}:{a+n-1}]"
```

```python
import sys
from gen import *
from asmlib import kernel_file

NAME = "adaLN_cond__sliding_block__glu_gated_glu__prompt_kernel"
WS_FLAG = 0x1000
F_H, F_KV1, F_KV2, F_O, F_H2, F_ACT, F_XC = range(7)
WS_MOD = 0x10000
WS_ST = 0x50000
WS_H = 0x100000
WS_KV = 0x400000
WS_O = 0xA00000
WS_H2 = 0xD00000
WS_ACT = 0x1000000
WS_DBG = 0x2000000
WS_SIZE = 0x10000000
L_WKV = 0
L_WQ = 102400
L_SCR = 153600
L_SG = L_SCR
L_SC = L_SCR + 5120
L_RED = L_SCR + 9216
L_KVB = 0
L_QB = 73728
L_WO_E = 86016
L_VEC = 157696
L_WO_L = 0
L_RB = 30720
GU_SLOT = 12352
GU_NSLOT = 13
LDS_BYTES = 163840
S_B = 2
P_X, P_WQKV, P_WO, P_WG, P_WU, P_WD, P_C, P_WMOD, P_OUT, P_WS = 4, 6, 8, 12, 14, 16, 18, 20, 22, 26
R_WS, R_A, R_B = 28, 32, 36
S_X = 40
S_RB, S_J, S_W, S_T0, S_T1, S_T2, S_RH, S_CQ, S_KH, S_TP = 44, 45, 46, 47, 48, 49, 50, 51, 52, 53
S_CNT = 54
S_HALF = 56
S_TMP = 60
S_STAMP = 80
LCG_A, LCG_C = 1664525, 1013904223
POLL_MAX = 1 << 15
NEG_BIG = 0xF149F2CA
QSCALE = (20 ** -0.5) * 1.4426950408889634
NLOG2E = -1.4426950408889634

import struct
def fbits(x): return struct.unpack("<I", struct.pack("<f", x))[0]
def hx(x): return f"0x{x & 0xffffffff:x}"

class K:
    def __init__(self, stop=None, stamps=False):
        self.g = Gen()
        self.stop = stop
        self.stamps = stamps
        self.nstamp = 0
        self.SC = "sc1"
    def srd(self, r, ptr, size):
        g = self.g
        g(f"s_mov_b32 s{r}, s{ptr}")
        g(f"s_mov_b32 s{r+1}, s{ptr+1}")
        g(f"s_mov_b32 s{r+2}, {hx(size)}")
        g(f"s_mov_b32 s{r+3}, 0x20000")
    def stamp(self, name):
        if not self.stamps: return
        g = self.g
        g.comment("stamp " + name)
        g.wait_lg(0)
        g(f"s_memrealtime s[{S_TMP+18}:{S_TMP+19}]")
        g.wait_lg(0)
        g(f"s_mov_b32 s{S_STAMP+self.nstamp}, s{S_TMP+18}")
        self.stamp_names.append(name)
        self.nstamp += 1
    def divmod_const(self, q, r, x, d, tmp=None):
        g = self.g
        m = (1 << 16) // d + 1
        for t in range(4096):
            assert (t * m) >> 16 == t // d
        g(f"v_mul_u32_u24 v{q}, {m}, v{x}")
        g(f"v_lshrrev_b32 v{q}, 16, v{q}")
        g(f"v_mul_u32_u24 v{r}, {d}, v{q}")
        g(f"v_sub_u32 v{r}, v{x}, v{r}")
    def poll(self, vaddr, soff, tag, vt, imm=0):
        g = self.g
        L = g.newlabel("Lp"); D = g.newlabel("Lpd")
        g(f"s_mov_b32 s{S_CNT}, {POLL_MAX}")
        g.label(L)
        g(f"buffer_load_dword v{vt}, v{vaddr}, s[{R_WS}:{R_WS+3}], s{soff} offen offset:{imm} sc1")
        g.wait_vm(0)
        g(f"v_cmp_ne_u32 vcc, s{tag}, v{vt}")
        g(f"s_cbranch_vccz {D}")
        g(f"s_sub_u32 s{S_CNT}, s{S_CNT}, 1")
        g(f"s_cbranch_scc0 {L}")
        g.label(D)
    def flag_off(self, sdst, kind, drb=0):
        g = self.g
        g(f"s_lshl_b32 s{sdst}, s{S_RB}, 8")
        g(f"s_add_u32 s{sdst}, s{sdst}, {WS_FLAG + kind*4096 + drb*256}")
    def send_flag(self, kind, tag, vt0, vt1, drb=0):
        g = self.g
        self.flag_off(S_TMP, kind, drb)
        g(f"s_lshl_b32 s{S_TMP+1}, s{S_J}, 4")
        g(f"s_lshl_b32 s{S_TMP+2}, s{S_W}, 2")
        g(f"s_add_u32 s{S_TMP+1}, s{S_TMP+1}, s{S_TMP+2}")
        g(f"v_mov_b32 v{vt0}, s{S_TMP+1}")
        g(f"v_mov_b32 v{vt1}, s{tag}")
        g("s_mov_b64 exec, 1")
        g(f"buffer_store_dword v{vt1}, v{vt0}, s[{R_WS}:{R_WS+3}], s{S_TMP} offen {self.SC}")
        g("s_mov_b64 exec, -1")
    def allreduce2(self, a, b, t0, t1, steps):
        g = self.g
        for st in steps:
            if st == 8:
                g(f"v_add_f32_dpp v{t0}, v{a}, v{a} row_ror:8 row_mask:0xf bank_mask:0xf")
                g(f"v_add_f32_dpp v{t1}, v{b}, v{b} row_ror:8 row_mask:0xf bank_mask:0xf")
                g(f"v_mov_b32 v{a}, v{t0}")
                g(f"v_mov_b32 v{b}, v{t1}")
            else:
                g(f"v_mov_b32 v{t0}, v{a}")
                g(f"v_mov_b32 v{t1}, v{b}")
                g(f"v_permlane{st}_swap_b32 v{a}, v{t0}")
                g(f"v_permlane{st}_swap_b32 v{b}, v{t1}")
                g(f"v_add_f32 v{a}, v{a}, v{t0}")
                g(f"v_add_f32 v{b}, v{b}, v{t1}")
    def unpack(self, lo, hi, src):
        self.g(f"v_lshlrev_b32 v{lo}, 16, v{src}")
        self.g(f"v_and_b32 v{hi}, 0xffff0000, v{src}")
    def barrier(self):
        self.g("s_barrier")
    def dma(self, vaddr, srd, soff, lds_off_sreg=None, lds_const=0, imm=0, flags=""):
        g = self.g
        if lds_off_sreg is None:
            g(f"s_mov_b32 m0, {lds_const}")
        else:
            g(f"s_add_u32 m0, s{lds_off_sreg}, {lds_const}")
        return g(f"buffer_load_dwordx4 v{vaddr}, s[{srd}:{srd+3}], s{soff} offen {flags} lds")

    def prologue(self):
        g = self.g
        g(f"s_cmp_ge_u32 s{S_B}, 256")
        g("s_cbranch_scc1 L_end")
        self.stamp("start")
        g("s_load_dwordx16 s[4:19], s[0:1], 0")
        g("s_load_dwordx8 s[20:27], s[0:1], 64")
        g(f"s_and_b32 s{S_RB}, s{S_B}, 7")
        g(f"s_lshl_b32 s{S_RB}, s{S_RB}, 1")
        g(f"s_lshr_b32 s{S_TMP}, s{S_B}, 7")
        g(f"s_add_u32 s{S_RB}, s{S_RB}, s{S_TMP}")
        g(f"s_lshr_b32 s{S_J}, s{S_B}, 3")
        g(f"s_and_b32 s{S_J}, s{S_J}, 15")
        g("v_lshrrev_b32 v2, 6, v0")
        g("v_and_b32 v1, 63, v0")
        g(f"v_readfirstlane_b32 s{S_W}, v2")
        g(f"s_and_b32 s{S_RH}, s{S_J}, 1")
        g(f"s_lshr_b32 s{S_CQ}, s{S_J}, 1")
        g(f"s_mov_b32 s{S_HALF}, 0")
        g(f"s_mov_b32 s{S_HALF+1}, -1")
        g(f"s_and_b32 s{S_KH}, s{S_W}, 1")
        g(f"s_lshr_b32 s{S_TP}, s{S_W}, 1")
        g(f"s_lshl_b32 s{S_TMP}, s{S_RB}, 2")
        g.wait_lg(0)
        g(f"s_load_dwordx4 s[{S_X}:{S_X+3}], s[{P_WS}:{P_WS+1}], s{S_TMP}")
        self.srd(R_WS, P_WS, WS_SIZE)
    def make_tags(self):
        g = self.g
        for i, t in enumerate((S_T0, S_T1, S_T2)):
            g(f"s_mul_i32 s{t}, s{S_X+i}, {LCG_A}")
            g(f"s_add_u32 s{t}, s{t}, {LCG_C}")

    def gemv(self):
        g = self.g
        rank = {0: 0, 2: 1, 5: 2, 7: 3, 8: 4, 10: 5, 13: 6, 15: 7}
        tab = sum(rank.get(j, 15) << (4 * j) for j in range(16))
        g(f"s_mov_b32 s{S_TMP+2}, {hx(tab)}")
        g(f"s_mov_b32 s{S_TMP+3}, {hx(tab >> 32)}")
        g(f"s_lshl_b32 s{S_TMP}, s{S_J}, 2")
        g(f"s_lshr_b64 s[{S_TMP+2}:{S_TMP+3}], s[{S_TMP+2}:{S_TMP+3}], s{S_TMP}")
        g(f"s_and_b32 s{S_TMP+2}, s{S_TMP+2}, 15")
        g(f"s_lshl_b32 s{S_TMP+2}, s{S_TMP+2}, 3")
        g(f"s_and_b32 s{S_TMP+3}, s{S_B}, 0x87")
        g(f"s_add_u32 s{S_TMP+2}, s{S_TMP+2}, s{S_TMP+3}")
        g(f"s_cmp_ge_u32 s{S_TMP+2}, 60")
        g("s_cbranch_scc1 L_nogemv")
        P = S_TMP + 2
        self.srd(R_A, P_C, 1280)
        self.srd(R_B, P_WMOD, 640 * 7680)
        g("v_lshlrev_b32 v2, 3, v0")
        tc = g(f"buffer_load_dwordx2 v[4:5], v2, s[{R_A}:{R_A+3}], 0 offen")
        g("v_lshrrev_b32 v3, 4, v0")
        g("v_lshlrev_b32 v3, 2, v3")
        tx = g(f"buffer_load_dword v6, v3, s[{R_WS}:{R_WS+3}], 0 offen")
        g("v_lshrrev_b32 v7, 3, v0")
        g(f"v_mul_u32_u24 v8, {20*7680}, v7")
        g("v_and_b32 v9, 7, v0")
        g("v_lshl_add_u32 v8, v9, 4, v8")
        g(f"s_lshl_b32 s{S_TMP+4}, s{P}, 7")
        wl = []
        for i in range(20):
            wl.append(g(f"buffer_load_dwordx4 v[{40+4*i}:{43+4*i}], v8, s[{R_B}:{R_B+3}], s{S_TMP+4} offen nt"))
            if i < 19: g(f"s_add_u32 s{S_TMP+4}, s{S_TMP+4}, 7680")
        self.unpack(10, 11, 4); self.unpack(12, 13, 5)
        for r in range(10, 14):
            g(f"v_mul_f32 v{r+4}, {hx(fbits(NLOG2E))}, v{r}")
        for r in range(10, 14):
            g(f"v_exp_f32 v{r+4}, v{r+4}")
        for r in range(10, 14):
            g(f"v_add_f32 v{r+4}, 1.0, v{r+4}")
        for r in range(10, 14):
            g(f"v_rcp_f32 v{r+4}, v{r+4}")
        for r in range(10, 14):
            g(f"v_mul_f32 v{r}, v{r}, v{r+4}")
        g("v_cvt_pk_bf16_f32 v14, v10, v11")
        g("v_cvt_pk_bf16_f32 v15, v12, v13")
        self.unpack(16, 17, 14); self.unpack(18, 19, 15)
        g("v_lshlrev_b32 v2, 4, v0")
        g(f"ds_write_b128 v2, v[16:19] offset:{L_SC - 131072}" if False else f"v_add_u32 v2, {L_SC}, v2")
        g("ds_write_b128 v2, v[16:19]")
        g(f"v_mul_u32_u24 v3, 80, v7")
        g(f"v_add_u32 v3, {L_SC}, v3")
        g.wait_lg(0)
        self.barrier()
        for i in range(5):
            g(f"ds_read_b128 v[{20+4*i}:{23+4*i}], v3 offset:{16*i}")
        for k in range(8): g(f"v_mov_b32 v{10+k}, 0")
        for i in range(20):
            for k in range(4):
                self.unpack(120, 121, 40 + 4*i + k)
                g(f"v_fmac_f32 v{10+2*k}, v120, v{20+i}")
                g(f"v_fmac_f32 v{11+2*k}, v121, v{20+i}")
        for k in range(8):
            g(f"v_add_f32_dpp v{20+k}, v{10+k}, v{10+k} row_ror:8 row_mask:0xf bank_mask:0xf")
        for k in range(4):
            g(f"v_permlane16_swap_b32 v{20+k}, v{24+k}")
        for k in range(4):
            g(f"v_add_f32 v{20+k}, v{20+k}, v{24+k}")
        for k in range(2):
            g(f"v_permlane32_swap_b32 v{20+k}, v{22+k}")
        for k in range(2):
            g(f"v_add_f32 v{20+k}, v{20+k}, v{22+k}")
        g("v_bfe_u32 v2, v1, 4, 1")
        g("v_lshlrev_b32 v2, 4, v2")
        g("v_bfe_u32 v3, v1, 5, 1")
        g("v_lshl_add_u32 v2, v3, 3, v2")
        g("v_lshl_add_u32 v2, v9, 5, v2")
        g(f"s_lshl_b32 s{S_TMP+4}, s{S_W}, 8")
        g(f"s_add_u32 s{S_TMP+4}, s{S_TMP+4}, {L_RED}")
        g(f"v_add_u32 v2, s{S_TMP+4}, v2")
        g("ds_write_b64 v2, v[20:21]")
        g("v_and_b32 v3, 15, v0")
        g("v_lshlrev_b32 v3, 4, v3")
        g(f"v_add_u32 v2, {L_RED}, v3")
        g(f"s_mov_b32 s{S_TMP+5}, {LCG_A}")
        g(f"v_mul_lo_u32 v6, v6, s{S_TMP+5}")
        g(f"v_add_u32 v6, {LCG_C}, v6")
        g.wait_lg(0)
        self.barrier()
        for i in range(4):
            g(f"ds_read_b128 v[{20+4*i}:{23+4*i}], v2 offset:{256*i}")
        g("v_lshrrev_b32 v7, 4, v0")
        g("v_mul_u32_u24 v7, 15360, v7")
        g("v_add_u32 v7, v7, v3")
        g(f"s_lshl_b32 s{S_TMP+4}, s{P}, 8")
        g(f"s_add_u32 s{S_TMP+4}, s{S_TMP+4}, {WS_MOD}")
        for k in range(4):
            g(f"v_add_f32 v{20+k}, v{20+k}, v{24+k}")
            g(f"v_add_f32 v{28+k}, v{28+k}, v{32+k}")
        for k in range(4):
            g(f"v_add_f32 v{20+k}, v{20+k}, v{28+k}")
        g("v_cvt_pk_bf16_f32 v12, v20, v21")
        g("v_mov_b32 v13, v6")
        g("v_cvt_pk_bf16_f32 v14, v22, v23")
        g("v_mov_b32 v15, v6")
        g(f"buffer_store_dwordx4 v[12:15], v7, s[{R_WS}:{R_WS+3}], s{S_TMP+4} offen sc1")
        g("s_nop 1")
        g.label("L_nogemv")
        g.forget()
        g.lg = [Tok("lg", {("s", S_X + i) for i in range(4)}, smem=True)]

    def p0(self):
        g = self.g
        g(f"s_cmp_lg_u32 s{S_W}, 0")
        g("s_cbranch_scc1 L_p0_dma")
        snap = g.snapshot()
        self.srd(R_A, P_X, 2048 * 1280)
        g("v_and_b32 v2, 7, v1")
        g("v_lshrrev_b32 v3, 3, v1")
        g("v_mul_u32_u24 v4, 1280, v2")
        g("v_lshl_add_u32 v4, v3, 4, v4")
        g(f"s_lshl_b32 s{S_TMP}, s{S_RB}, 4")
        g(f"s_add_u32 s{S_TMP}, s{S_TMP}, s{S_J}")
        g(f"s_mul_i32 s{S_TMP}, s{S_TMP}, {8*1280}")
        X = 40
        for i in range(10):
            g(f"buffer_load_dwordx4 v[{X+4*i}:{X+4*i+3}], v4, s[{R_A}:{R_A+3}], s{S_TMP} offen offset:{128*i}")
        self.make_tags()
        g("v_mov_b32 v5, 0x3f803f80")
        g("v_mov_b32 v6, 0"); g("v_mov_b32 v7, 0")
        for r in range(X, X + 40):
            g(f"v_dot2_f32_bf16 v6, v{r}, v5, v6")
            g(f"v_dot2_f32_bf16 v7, v{r}, v{r}, v7")
        self.allreduce2(6, 7, 8, 9, (8, 16, 32))
        self.rstd(6, 7, 8)
        Z = 80
        for i in range(40):
            self.unpack(Z + 2*i, Z + 2*i + 1, X + i)
            g(f"v_fma_f32 v{Z+2*i}, v{Z+2*i}, v7, v6")
            g(f"v_fma_f32 v{Z+2*i+1}, v{Z+2*i+1}, v7, v6")
        self.stamp("z")
        g("v_lshlrev_b32 v8, 4, v1")
        g(f"s_mul_i32 s{S_TMP+1}, s{S_RB}, 15360")
        g(f"s_add_u32 s{S_TMP+1}, s{S_TMP+1}, {WS_MOD}")
        g(f"s_add_u32 s{S_TMP+2}, s{S_TMP+1}, 4096")
        L = g.newlabel("Lm"); D = g.newlabel("Lmd")
        g(f"s_mov_b32 s{S_CNT}, {POLL_MAX}")
        g.label(L)
        for i in range(5):
            so = S_TMP + 1 if i < 4 else S_TMP + 2
            g(f"buffer_load_dwordx4 v[{X+4*i}:{X+4*i+3}], v8, s[{R_WS}:{R_WS+3}], s{so} offen offset:{(1024*i) % 4096} sc1")
        g.wait_vm(0)
        g(f"v_xor_b32 v9, s{S_T0}, v{X+1}")
        for i in range(5):
            for k in (1, 3):
                if i == 0 and k == 1: continue
                g(f"v_xor_b32 v10, s{S_T0}, v{X+4*i+k}")
                g("v_or_b32 v9, v9, v10")
        g("v_cmp_ne_u32 vcc, 0, v9")
        g(f"s_cbranch_vccz {D}")
        g(f"s_sub_u32 s{S_CNT}, s{S_CNT}, 1")
        g(f"s_cbranch_scc0 {L}")
        g.label(D)
        self.stamp("mod")
        g(f"v_add_u32 v9, {L_SG}, v8")
        g(f"v_cndmask_b32 v10, 0, 1.0, s[{S_HALF}:{S_HALF+1}]")
        for i in range(5):
            b = 60 + 4 * (i % 2)
            self.unpack(b, b + 1, X + 4*i); self.unpack(b + 2, b + 3, X + 4*i + 2)
            if i >= 2:
                add = "v10" if i == 2 else "1.0"
                for k in range(4): g(f"v_add_f32 v{b+k}, {add}, v{b+k}")
                g(f"v_cvt_pk_bf16_f32 v{b}, v{b}, v{b+1}")
                g(f"v_cvt_pk_bf16_f32 v{b+2}, v{b+2}, v{b+3}")
                g(f"v_and_b32 v{b+1}, 0xffff0000, v{b}"); g(f"v_lshlrev_b32 v{b}, 16, v{b}")
                g(f"v_and_b32 v{b+3}, 0xffff0000, v{b+2}"); g(f"v_lshlrev_b32 v{b+2}, 16, v{b+2}")
            g(f"ds_write_b128 v9, v[{b}:{b+3}] offset:{1024*i}")
        g("v_lshlrev_b32 v9, 5, v3")
        g(f"v_add_u32 v9, {L_SG}, v9")
        g("v_lshrrev_b32 v10, 2, v3")
        g("v_lshlrev_b32 v10, 10, v10")
        g("v_and_b32 v11, 3, v3")
        g("v_lshl_add_u32 v10, v11, 8, v10")
        g("v_lshl_add_u32 v10, v2, 4, v10")
        g(f"s_lshl_b32 s{S_TMP}, s{S_RB}, 3")
        g(f"s_add_u32 s{S_TMP}, s{S_TMP}, s{S_CQ}")
        g(f"s_mul_i32 s{S_TMP}, s{S_TMP}, 20480")
        g(f"s_lshl_b32 s{S_TMP+1}, s{S_RH}, 7")
        g(f"s_add_u32 s{S_TMP}, s{S_TMP}, s{S_TMP+1}")
        g(f"s_add_u32 s{S_TMP}, s{S_TMP}, {WS_H}")
        g.wait_lg(0)
        def rd(i):
            b = 160 + 16 * (i % 3)
            g(f"ds_read_b128 v[{b}:{b+3}], v9 offset:{256*i}")
            g(f"ds_read_b128 v[{b+4}:{b+7}], v9 offset:{256*i+16}")
            g(f"ds_read_b128 v[{b+8}:{b+11}], v9 offset:{2560+256*i}")
            g(f"ds_read_b128 v[{b+12}:{b+15}], v9 offset:{2560+256*i+16}")
        rd(0); rd(1)
        for i in range(10):
            if i + 2 < 10: rd(i + 2)
            b = 160 + 16 * (i % 3)
            for e in range(8):
                g(f"v_fma_f32 v{Z+8*i+e}, v{Z+8*i+e}, v{b+8+e}, v{b+e}")
            for e in range(4):
                g(f"v_cvt_pk_bf16_f32 v{X+4*i+e}, v{Z+8*i+2*e}, v{Z+8*i+2*e+1}")
            g(f"buffer_store_dwordx4 v[{X+4*i}:{X+4*i+3}], v10, s[{R_WS}:{R_WS+3}], s{S_TMP} offen offset:{2048*(i%2)} {self.SC}")
            if i % 2 == 1 and i < 9: g(f"s_add_u32 s{S_TMP}, s{S_TMP}, 4096")
        g.wait_vm(0)
        self.send_flag(F_H, S_T0, 8, 9)
        self.stamp("hpub")
        g("s_branch L_p0_join")
        g.label("L_p0_dma")
        g.restore(snap)
        self.srd(R_A, P_WQKV, 640 * 3840)
        g(f"s_mul_i32 s{S_TMP}, s{S_J}, 80")
        for n in range(5):
            g(f"v_add_u32 v2, {64*n}, v1")
            self.divmod_const(3, 4, 2, 10)
            g("v_bfe_u32 v5, v3, 2, 2")
            g("v_lshlrev_b32 v5, 3, v5")
            g("v_lshrrev_b32 v6, 4, v3")
            g("v_lshl_add_u32 v5, v6, 2, v5")
            g("v_and_b32 v6, 3, v3")
            g("v_add_u32 v5, v5, v6")
            g("v_mul_u32_u24 v5, 3840, v5")
            g("v_lshl_add_u32 v5, v4, 4, v5")
            g(f"v_cmp_lt_u32 s[{S_TMP+4}:{S_TMP+5}], 4, v4")
            g(f"v_add_u32 v6, {1280 - 80}, v5")
            g(f"v_cndmask_b32 v5, v5, v6, s[{S_TMP+4}:{S_TMP+5}]")
            g(f"v_add_u32 v{10+n}, 1280, v5")
        g(f"s_sub_u32 s{S_TMP+1}, s{S_W}, 1")
        g(f"s_mul_i32 s{S_TMP+2}, s{S_TMP+1}, {32*3840}")
        g(f"s_add_u32 s{S_TMP+2}, s{S_TMP+2}, s{S_TMP}")
        g(f"s_mul_i32 s{S_TMP+3}, s{S_TMP+1}, 5120")
        for it in range(7):
            if it == 6:
                g(f"s_cmp_eq_u32 s{S_W}, 3")
                g("s_cbranch_scc1 L_p0_kvdone")
            for n in range(5):
                self.dma(10 + n, R_A, S_TMP + 2, S_TMP + 3, L_WKV + it * 15360 + n * 1024)
            g(f"s_add_u32 s{S_TMP+2}, s{S_TMP+2}, {3*32*3840}")
        g.label("L_p0_kvdone")
        for n in range(5):
            g(f"v_add_u32 v2, {64*n}, v1")
            self.divmod_const(3, 4, 2, 5)
            g("v_and_b32 v5, 32, v3")
            g("v_bfe_u32 v6, v3, 4, 1")
            g("v_lshl_add_u32 v5, v6, 2, v5")
            g("v_bfe_u32 v6, v3, 1, 2")
            g("v_add_u32 v5, v5, v6")
            g("v_and_b32 v6, 8, v3")
            g("v_add_u32 v5, v5, v6")
            g("v_and_b32 v6, 1, v3")
            g("v_lshl_add_u32 v5, v6, 4, v5")
            g("v_mul_u32_u24 v5, 3840, v5")
            g(f"v_lshl_add_u32 v{10+n}, v4, 4, v5")
        g(f"s_mul_i32 s{S_TMP+2}, s{S_TMP+1}, {64*3840}")
        g(f"s_add_u32 s{S_TMP+2}, s{S_TMP+2}, s{S_TMP}")
        for it in range(4):
            if it == 3:
                g(f"s_cmp_lg_u32 s{S_W}, 1")
                g("s_cbranch_scc1 L_p0_qdone")
            for n in range(5):
                self.dma(10 + n, R_A, S_TMP + 2, S_TMP + 3, L_WQ + it * 15360 + n * 1024)
            g(f"s_add_u32 s{S_TMP+2}, s{S_TMP+2}, {3*64*3840}")
        g.label("L_p0_qdone")
        self.make_tags()
        if self.stamps:
            for _ in range(3): pass
        g.label("L_p0_join")
        g.forget()
    def rstd(self, a, b, t):
        g = self.g
        g(f"v_mul_f32 v{a}, {hx(fbits(1/640))}, v{a}")
        g(f"v_mul_f32 v{t}, v{a}, v{a}")
        g(f"v_mov_b32 v{t+1}, {hx(fbits(1/640))}")
        g(f"v_fma_f32 v{b}, v{b}, v{t+1}, -v{t}")
        g(f"v_max_f32 v{b}, 0, v{b}")
        g(f"v_add_f32 v{b}, {hx(fbits(1e-5))}, v{b}")
        g(f"v_rsq_f32 v{b}, v{b}")
        g(f"v_mul_f32 v{a}, v{a}, v{b}")
        g(f"v_sub_f32 v{a}, 0, v{a}")

    def gemm16(self, nsteps, ntile, acc, abuf, rd_addr, bfrag, hooks=None, first_zero=True):
        g = self.g
        hooks = hooks or {}
        def reads(s):
            out = []
            for t in range(ntile):
                for hi in range(2):
                    va, imm = rd_addr(s, t, hi)
                    d = abuf + (s % 2) * 4 * ntile + 4 * t + 2 * hi
                    out.append(f"ds_read_b64_tr_b16 v[{d}:{d+1}], v{va} offset:{imm}")
            return out
        if ("pre", 0) in hooks: hooks[("pre", 0)]()
        for r in reads(0): g(r)
        for s in range(nsteps):
            nxt = []
            if s + 1 < nsteps:
                if ("pre", s + 1) in hooks: hooks[("pre", s + 1)]()
                nxt = reads(s + 1)
            extra = list(hooks.get(("fill", s), []))
            for t in range(ntile):
                for Tp in range(2):
                    A = abuf + (s % 2) * 4 * ntile + 4 * t
                    D = acc + (Tp * ntile + t) * 4
                    C = "0" if (s == 0 and first_zero) else f"v[{D}:{D+3}]"
                    g(f"v_mfma_f32_16x16x32_bf16 v[{D}:{D+3}], v[{A}:{A+3}], {bfrag(s, Tp)}, {C}")
                    if nxt: g(nxt.pop(0))
                    if extra: extra.pop(0)()
            for r in nxt: g(r)
            for e in extra: e()

    def p1(self):
        g = self.g
        self.flag_off(S_TMP, F_H)
        g("v_and_b32 v2, 3, v1")
        g(f"s_lshl_b32 s{S_TMP+1}, s{S_W}, 2")
        g(f"v_add_u32 v2, s{S_TMP+1}, v2")
        g("v_lshlrev_b32 v2, 4, v2")
        self.poll(2, S_TMP, S_T0, 3)
        self.stamp("hseen")
        g("v_lshlrev_b32 v2, 4, v1")
        g(f"s_lshl_b32 s{S_TMP}, s{S_RB}, 2")
        g(f"s_add_u32 s{S_TMP}, s{S_TMP}, s{S_W}")
        g(f"s_mul_i32 s{S_TMP}, s{S_TMP}, 40960")
        g(f"s_add_u32 s{S_TMP}, s{S_TMP}, {WS_H}")
        g(f"s_add_u32 s{S_TMP+1}, s{S_TMP}, 20480")
        for s_ in range(20):
            for Tp in range(2):
                d = (Tp * 20 + s_) * 4
                g(f"buffer_load_dwordx4 a[{d}:{d+3}], v2, s[{R_WS}:{R_WS+3}], s{S_TMP+Tp} offen offset:{1024*(s_%4)} sc1")
            if s_ % 4 == 3 and s_ < 19:
                g(f"s_add_u32 s{S_TMP}, s{S_TMP}, 4096"); g(f"s_add_u32 s{S_TMP+1}, s{S_TMP+1}, 4096")
        g("v_lshrrev_b32 v3, 2, v1")
        g("v_and_b32 v4, 3, v1")
        g("v_mul_u32_u24 v5, 160, v3")
        g("v_lshl_add_u32 v5, v4, 3, v5")
        g("v_add_u32 v6, 51200, v5")
        g("v_and_b32 v7, 7, v3")
        g("v_lshlrev_b32 v7, 1, v7")
        g("v_lshrrev_b32 v8, 5, v1")
        g("v_add_u32 v7, v7, v8")
        g("v_mul_u32_u24 v7, 80, v7")
        g("v_lshl_add_u32 v7, v4, 3, v7")
        g(f"v_add_u32 v7, {L_WQ}, v7")
        g("v_lshrrev_b32 v8, 4, v1")
        g("v_and_b32 v9, 15, v1")
        g(f"s_lshl_b32 s{S_TMP}, s{S_W}, 5")
        g(f"v_add_u32 v9, s{S_TMP}, v9")
        g("v_mul_u32_u24 v9, 48, v9")
        for t in range(5):
            g(f"v_add_u32 v18, {4*t}, v8")
            self.divmod_const(19, 20, 18, 5)
            g("v_mul_u32_u24 v19, 18432, v19")
            g("v_lshl_add_u32 v19, v20, 3, v19")
            g("v_add_u32 v19, v19, v9")
            g(f"v_add_u32 v{10+t}, {L_KVB + 12288}, v19")
            if t < 3:
                self.divmod_const(19, 20, 18, 5)
                if t == 2:
                    g("v_min_u32 v21, 1, v20")
                    g(f"v_cmp_lt_u32 s[{S_TMP+2}:{S_TMP+3}], 1, v19")
                    g(f"v_cndmask_b32 v19, v19, v21, s[{S_TMP+2}:{S_TMP+3}]")
                    g(f"v_cndmask_b32 v20, v20, 5, s[{S_TMP+2}:{S_TMP+3}]")
                g("v_mul_u32_u24 v19, 6144, v19")
                g("v_lshl_add_u32 v19, v20, 3, v19")
                g("v_add_u32 v19, v19, v9")
                g(f"v_add_u32 v{15+t}, {L_QB}, v19")
        self.barrier()
        ACC, AB = 40, 80
        self.gemm16(20, 5, ACC, AB,
                    lambda s_, t, hi: (5 if s_ < 10 else 6, (s_ % 10) * 5120 + hi * 2560 + 32 * t),
                    lambda s_, Tp: a_((Tp * 20 + s_) * 4, 4))
        self.stamp("kvgemm")
        self.barrier()
        for Tp in range(2):
            for t in range(5):
                D = ACC + (Tp * 5 + t) * 4
                g(f"v_cvt_pk_bf16_f32 v{D}, v{D}, v{D+1}")
                g(f"v_cvt_pk_bf16_f32 v{D+1}, v{D+2}, v{D+3}")
                g(f"ds_write_b64 v{10+t}, v[{D}:{D+1}] offset:{768*Tp}")
        g("v_and_b32 v18, 127, v0")
        g("v_mul_u32_u24 v18, 48, v18")
        g("v_lshrrev_b32 v19, 7, v0")
        g("v_mul_u32_u24 v19, 18432, v19")
        g("v_add_u32 v18, v18, v19")
        g("v_mov_b32 v20, 0x3f800000"); g("v_mov_b32 v21, 0x3f803f80"); g("v_mov_b32 v22, 0x3f803f80"); g("v_mov_b32 v23, 0x3f803f80")
        g(f"ds_write_b64 v18, v[20:21] offset:{L_KVB + 12288 + 40}")
        g(f"ds_write_b64 v18, v[22:23] offset:{L_KVB + 36864 + 12288 + 40}")
        g(f"s_cmp_ge_u32 s{S_RB}, 2")
        g("s_cbranch_scc1 L_noinv")
        g(f"v_mov_b32 v20, {hx(0x3f800000 | (NEG_BIG >> 16))}")
        g(f"ds_write_b64 v18, v[20:21] offset:{L_KVB + 40}")
        g(f"s_cmp_ge_u32 s{S_RB}, 1")
        g("s_cbranch_scc1 L_noinv")
        g(f"ds_write_b64 v18, v[20:21] offset:{L_KVB + 6144 + 40}")
        g.label("L_noinv")
        g.wait_lg(0)
        self.barrier()
        g(f"s_mul_i32 s{S_TMP}, s{S_W}, 18432")
        g(f"s_add_u32 s{S_TMP}, s{S_TMP}, {L_KVB + 12288}")
        g(f"v_add_u32 v18, s{S_TMP}, v2")
        for i in range(6):
            g(f"ds_read_b128 v[{ACC+4*i}:{ACC+4*i+3}], v18 offset:{1024*i}")
        g(f"s_lshl_b32 s{S_TMP}, s{S_RB}, 4")
        g(f"s_add_u32 s{S_TMP}, s{S_TMP}, s{S_J}")
        g(f"s_lshl_b32 s{S_TMP}, s{S_TMP}, 2")
        g(f"s_add_u32 s{S_TMP}, s{S_TMP}, s{S_W}")
        g(f"s_mul_i32 s{S_TMP+10}, s{S_TMP}, 6144")
        g(f"s_add_u32 s{S_TMP+10}, s{S_TMP+10}, {WS_KV}")
        g(f"s_add_u32 s{S_TMP+1}, s{S_TMP+10}, 4096")
        for i in range(6):
            so = S_TMP + 10 if i < 4 else S_TMP + 1
            g(f"buffer_store_dwordx4 v[{ACC+4*i}:{ACC+4*i+3}], v2, s[{R_WS}:{R_WS+3}], s{so} offen offset:{(1024*i) % 4096} sc1")
        QACC = 120
        def flags():
            g.wait_vm(0)
            sc = self.SC; self.SC = "sc1"
            L1 = g.newlabel("Lnf")
            g(f"s_cmp_ge_u32 s{S_RB}, 15")
            g(f"s_cbranch_scc1 {L1}")
            self.send_flag(F_KV1, S_T1, 18, 19, 1)
            g(f"s_cmp_ge_u32 s{S_RB}, 14")
            g(f"s_cbranch_scc1 {L1}")
            self.send_flag(F_KV2, S_T2, 18, 19, 2)
            g.label(L1)
            g.forget_vm()
            self.SC = sc
        self.gemm16(20, 3, QACC, AB,
                    lambda s_, t, hi: (7, s_ * 2560 + hi * 1280 + 32 * t),
                    lambda s_, Tp: a_((Tp * 20 + s_) * 4, 4),
                    hooks={("pre", 12): flags})
        g(f"s_mov_b32 s{S_TMP}, {hx(fbits(QSCALE))}")
        for Tp in range(2):
            for t in range(3):
                D = QACC + (Tp * 3 + t) * 4
                for k in range(4): g(f"v_mul_f32 v{D+k}, s{S_TMP}, v{D+k}")
                g(f"v_cvt_pk_bf16_f32 v{D}, v{D}, v{D+1}")
                g(f"v_cvt_pk_bf16_f32 v{D+1}, v{D+2}, v{D+3}")
                g(f"ds_write_b64 v{15+t}, v[{D}:{D+1}] offset:{768*Tp}")
        self.stamp("qgemm")

    def finish(self):
        g = self.g
        if self.stamps:
            self.stamp("end")
            g(f"s_lshl_b32 s{S_TMP}, s{S_B}, 2")
            g(f"s_add_u32 s{S_TMP}, s{S_TMP}, s{S_W}")
            g(f"s_lshl_b32 s{S_TMP}, s{S_TMP}, 7")
            g(f"s_add_u32 s{S_TMP}, s{S_TMP}, {WS_DBG}")
            g("v_mov_b32 v2, 0")
            for i in range(self.nstamp):
                g(f"v_mov_b32 v3, s{S_STAMP+i}")
                g(f"buffer_store_dword v3, v2, s[{R_WS}:{R_WS+3}], s{S_TMP} offen offset:{4*i}")
        g.wait_all()
        g.label("L_end")
        g("s_endpgm")

def forget_vm(self):
    self.vm = []
Gen.forget_vm = forget_vm
```

```python
from kern import *

class K2(K):
    def wtile_addr(self, dst, pitch, mode):
        g = self.g
        T = 200
        for n in range(5):
            g(f"v_add_u32 v{T}, {64*n}, v1")
            self.divmod_const(T+1, T+2, T, 10)
            g(f"v_and_b32 v{T+3}, 3, v{T+1}")
            g(f"v_lshrrev_b32 v{T+4}, 4, v{T+1}")
            if mode == "nat":
                g(f"v_lshl_add_u32 v{T+3}, v{T+4}, 2, v{T+3}")
                g(f"v_bfe_u32 v{T+4}, v{T+1}, 2, 2")
                g(f"v_lshl_add_u32 v{T+3}, v{T+4}, 3, v{T+3}")
            else:
                g(f"v_lshl_add_u32 v{T+3}, v{T+4}, 3, v{T+3}")
                g(f"v_and_b32 v{T+4}, 4, v{T+1}")
                g(f"v_add_u32 v{T+3}, v{T+3}, v{T+4}")
                g(f"v_bfe_u32 v{T+4}, v{T+1}, 3, 1")
                g(f"v_lshl_add_u32 v{T+3}, v{T+4}, 4, v{T+3}")
            g(f"v_mul_u32_u24 v{T+3}, {pitch}, v{T+3}")
            g(f"v_lshl_add_u32 v{dst+n}, v{T+2}, 4, v{T+3}")

    def p2(self):
        g = self.g
        BD, BF, S0, S1, O0, O1, P, VF, QF = 24, 40, 56, 72, 88, 104, 120, 128, 144
        XR, WA = 160, 170
        g(f"s_cmp_eq_u32 s{S_RB}, 0")
        g("s_cbranch_scc1 L_nohalo")
        self.flag_off(S_TMP, F_KV1)
        g(f"s_cmp_ge_u32 s{S_RB}, 2")
        g(f"s_cselect_b32 s{S_TMP+1}, 4096, 0")
        g("v_and_b32 v3, 1, v1")
        g(f"v_mul_lo_u32 v3, v3, s{S_TMP+1}")
        g(f"s_lshl_b32 s{S_TMP+1}, s{S_J}, 4")
        g(f"s_lshl_b32 s{S_TMP+2}, s{S_W}, 2")
        g(f"s_add_u32 s{S_TMP+1}, s{S_TMP+1}, s{S_TMP+2}")
        g(f"v_add_u32 v3, s{S_TMP+1}, v3")
        self.poll(3, S_TMP, S_T0, 4)
        g(f"s_mul_i32 s{S_TMP+1}, s{S_W}, 18432")
        g(f"s_sub_u32 s{S_TMP+2}, s{S_TMP+10}, {64*6144}")
        for i in range(6):
            self.dma(2, R_WS, S_TMP + 2, S_TMP + 1, L_KVB + 6144 + 1024 * i, flags="sc1")
            g(f"s_add_u32 s{S_TMP+2}, s{S_TMP+2}, 1024")
        g(f"s_cmp_eq_u32 s{S_RB}, 1")
        g("s_cbranch_scc1 L_nohalo")
        g(f"s_sub_u32 s{S_TMP+2}, s{S_TMP+10}, {128*6144}")
        for i in range(6):
            self.dma(2, R_WS, S_TMP + 2, S_TMP + 1, L_KVB + 1024 * i, flags="sc1")
            g(f"s_add_u32 s{S_TMP+2}, s{S_TMP+2}, 1024")
        g.label("L_nohalo")
        g.forget_vm()
        self.stamp("haloseen")
        g("v_min_u32 v3, 19, v1")
        g("v_lshlrev_b32 v3, 4, v3")
        g(f"s_mul_i32 s{S_TMP}, s{S_RB}, 15360")
        g(f"s_mul_i32 s{S_TMP+1}, s{S_W}, 2560")
        g(f"s_add_u32 s{S_TMP}, s{S_TMP}, s{S_TMP+1}")
        g(f"s_mul_i32 s{S_TMP+1}, s{S_CQ}, 320")
        g(f"s_add_u32 s{S_TMP}, s{S_TMP}, s{S_TMP+1}")
        g(f"s_add_u32 s{S_TMP}, s{S_TMP}, {WS_MOD + 5120}")
        g("v_and_b32 v4, 31, v1")
        g("v_lshrrev_b32 v5, 5, v1")
        g("v_lshlrev_b32 v6, 2, v5")
        g("v_sub_u32 v6, v4, v6")
        g(f"v_mov_b32 v7, {hx(NEG_BIG)}")
        for r in range(16):
            kk = 8 * (r >> 2) + (r & 3)
            sp = S_TMP + 2 + 2 * (r % 4)
            g(f"v_cmp_le_i32 s[{sp}:{sp+1}], {kk}, v6")
            if r % 4 == 3:
                for r2 in range(r - 3, r + 1):
                    sp = S_TMP + 2 + 2 * (r2 % 4)
                    g(f"v_cndmask_b32 v{BD+r2}, v7, 0, s[{sp}:{sp+1}]")
                    g(f"v_cndmask_b32 v{BF+r2}, 0, v7, s[{sp}:{sp+1}]")
        self.wtile_addr(WA, 1280, "nat")
        L = g.newlabel("Lv"); D = g.newlabel("Lvd")
        g(f"s_mov_b32 s{S_CNT}, {POLL_MAX}")
        g.label(L)
        g(f"buffer_load_dwordx4 v[8:11], v3, s[{R_WS}:{R_WS+3}], s{S_TMP} offen sc1")
        g.wait_vm(0)
        g(f"v_xor_b32 v12, s{S_T0}, v9")
        g(f"v_xor_b32 v13, s{S_T0}, v11")
        g("v_or_b32 v12, v12, v13")
        g("v_cmp_ne_u32 vcc, 0, v12")
        g(f"s_cbranch_vccz {D}")
        g(f"s_sub_u32 s{S_CNT}, s{S_CNT}, 1")
        g(f"s_cbranch_scc0 {L}")
        g.label(D)
        self.srd(R_A, P_X, 2048 * 1280)
        g("v_and_b32 v12, 15, v1")
        g("v_mul_u32_u24 v12, 1280, v12")
        g("v_lshrrev_b32 v13, 4, v1")
        g("v_lshl_add_u32 v12, v13, 3, v12")
        g(f"s_lshl_b32 s{S_TMP+11}, s{S_RB}, 1")
        g(f"s_add_u32 s{S_TMP+11}, s{S_TMP+11}, s{S_RH}")
        g(f"s_lshl_b32 s{S_TMP+11}, s{S_TMP+11}, 2")
        g(f"s_add_u32 s{S_TMP+11}, s{S_TMP+11}, s{S_W}")
        g(f"s_mul_i32 s{S_TMP+11}, s{S_TMP+11}, {16*1280}")
        g(f"s_mul_i32 s{S_TMP+1}, s{S_CQ}, 160")
        g(f"s_add_u32 s{S_TMP+11}, s{S_TMP+11}, s{S_TMP+1}")
        for t in range(5):
            g(f"buffer_load_dwordx2 v[{XR+2*t}:{XR+2*t+1}], v12, s[{R_A}:{R_A+3}], s{S_TMP+11} offen offset:{32*t}")
        g(f"s_cmp_eq_u32 s{S_W}, 2")
        g(f"s_cselect_b32 s{S_TMP+2}, 1.0, 0")
        g(f"s_mov_b32 s{S_TMP+3}, {hx(fbits(NLOG2E))}")
        g(f"s_cmp_eq_u32 s{S_W}, 0")
        g(f"s_cselect_b32 s{S_TMP+3}, 1.0, s{S_TMP+3}")
        g(f"s_cmp_eq_u32 s{S_W}, 3")
        g(f"s_cselect_b32 s{S_TMP+3}, {hx(fbits(1/NLOG2E))}, s{S_TMP+3}")
        self.unpack(12, 13, 8); self.unpack(14, 15, 10)
        for k in range(12, 16): g(f"v_add_f32 v{k}, s{S_TMP+2}, v{k}")
        g("v_cvt_pk_bf16_f32 v8, v12, v13")
        g("v_cvt_pk_bf16_f32 v10, v14, v15")
        self.unpack(12, 13, 8); self.unpack(14, 15, 10)
        for k in range(12, 16): g(f"v_mul_f32 v{k}, s{S_TMP+3}, v{k}")
        g(f"s_mul_i32 s{S_TMP+2}, s{S_W}, 320")
        g(f"s_add_u32 s{S_TMP+2}, s{S_TMP+2}, {L_VEC}")
        g(f"v_add_u32 v3, s{S_TMP+2}, v3")
        g("ds_write_b128 v3, v[12:15]")
        g(f"s_lshl_b32 s{S_TMP}, s{S_W}, 5")
        g(f"v_add_u32 v8, s{S_TMP}, v4")
        g("v_mul_u32_u24 v8, 48, v8")
        g("v_lshl_add_u32 v9, v5, 4, v8")
        g("v_lshl_add_u32 v10, v5, 3, v8")
        g("v_add_u32 v10, 32, v10")
        g(f"v_add_u32 v12, {L_QB}, v9")
        g(f"v_add_u32 v13, {L_QB}, v10")
        g("v_bfe_u32 v11, v1, 2, 2")
        g("v_lshl_add_u32 v11, v5, 2, v11")
        g(f"v_add_u32 v11, s{S_TMP}, v11")
        g("v_mul_u32_u24 v11, 48, v11")
        g("v_bfe_u32 v14, v1, 4, 1")
        g("v_lshl_add_u32 v11, v14, 5, v11")
        g("v_and_b32 v14, 3, v1")
        g("v_lshl_add_u32 v11, v14, 3, v11")
        g(f"v_add_u32 v11, {L_KVB + 36864}, v11")
        g.wait_lg(0)
        for u in range(2):
            g(f"ds_read_b128 v[{QF+8*u}:{QF+8*u+3}], v12 offset:{6144*u}")
            g(f"ds_read_b64 v[{QF+8*u+4}:{QF+8*u+5}], v13 offset:{6144*u}")
        g("v_mov_b32 v14, 0x3f80")
        for u in range(2):
            g(f"v_cndmask_b32 v{QF+8*u+4}, v{QF+8*u+4}, v14, s[{S_HALF}:{S_HALF+1}]")
            g(f"v_cndmask_b32 v{QF+8*u+5}, v{QF+8*u+5}, 0, s[{S_HALF}:{S_HALF+1}]")
        self.barrier()
        self.stamp("attn0")
        self.srd(R_B, P_WO, 640 * 1280)
        g(f"s_mul_i32 s{S_TMP}, s{S_W}, {32*1280}")
        g(f"s_mul_i32 s{S_TMP+1}, s{S_CQ}, 160")
        g(f"s_add_u32 s{S_TMP}, s{S_TMP}, s{S_TMP+1}")
        g(f"s_mul_i32 s{S_TMP+1}, s{S_W}, 5120")
        for it in range(4):
            if it == 3:
                g(f"s_cmp_ge_u32 s{S_W}, 2")
                g("s_cbranch_scc1 L_woe")
            for n in range(5):
                self.dma(WA + n, R_B, S_TMP, S_TMP + 1, L_WO_E + it * 20480 + n * 1024)
            g(f"s_add_u32 s{S_TMP}, s{S_TMP}, {4*32*1280}")
        g.label("L_woe")
        xr_tok = list(g.vm)
        g.forget_vm()
        SB = (S0, S1)
        def kread(u, tau):
            g(f"ds_read_b128 a[{8*tau}:{8*tau+3}], v9 offset:{L_KVB + 18432*u + 1536*tau}")
            g(f"ds_read_b64 a[{8*tau+4}:{8*tau+5}], v10 offset:{L_KVB + 18432*u + 1536*tau}")
        def qk_a(u, tau):
            Sx = SB[tau % 2]
            C = v(BF, 16) if tau == 0 else v(BD, 16) if tau == 8 else "0"
            g(f"v_mfma_f32_32x32x16_bf16 v[{Sx}:{Sx+15}], a[{8*tau}:{8*tau+3}], v[{QF+8*u}:{QF+8*u+3}], {C}")
        def qk_b(u, tau):
            Sx = SB[tau % 2]
            g(f"v_mfma_f32_32x32x8_bf16 v[{Sx}:{Sx+15}], a[{8*tau+4}:{8*tau+5}], v[{QF+8*u+4}:{QF+8*u+5}], v[{Sx}:{Sx+15}]")
        def vread(u, tau):
            b = VF + 8 * (tau % 2)
            return [f"ds_read_b64_tr_b16 v[{b+4*kp+2*rd}:{b+4*kp+2*rd+1}], v11 offset:{18432*u + 1536*tau + 768*kp + 384*rd}"
                    for kp in range(2) for rd in range(2)]
        for u in range(2):
            O = (O0, O1)[u]
            for tau in range(3): kread(u, tau)
            qk_a(u, 0); qk_b(u, 0)
            for tau in range(9):
                if tau + 3 < 9: kread(u, tau + 3)
                Sx = SB[tau % 2]
                if tau + 1 < 9: qk_a(u, tau + 1)
                if tau + 1 < 9: qk_b(u, tau + 1)
                for k in range(8):
                    m = 6 + (k & 1)
                    if tau == 0 and k < 2:
                        g(f"v_max_f32 v{m}, v{Sx+2*k}, v{Sx+2*k+1}")
                    else:
                        g(f"v_max3_f32 v{m}, v{Sx+2*k}, v{Sx+2*k+1}, v{m}")
            g("v_max_f32 v6, v6, v7")
            g("v_mov_b32 v7, v6")
            g("v_permlane32_swap_b32 v6, v7")
            g("v_max_f32 v6, v6, v7")
            g("v_sub_f32 v6, 0, v6")
            g("v_and_b32 v7, 0xffff0000, v6")
            g("v_sub_f32 v6, v6, v7")
            g("v_or_b32 v7, 0x3f80, v7")
            g("v_and_b32 v15, 0xffff0000, v6")
            g("v_sub_f32 v6, v6, v15")
            g("v_lshrrev_b32 v15, 16, v15")
            g("v_and_b32 v6, 0xffff0000, v6")
            g("v_or_b32 v6, v6, v15")
            g(f"v_cndmask_b32 v{QF+8*u+4}, v{QF+8*u+4}, v7, s[{S_HALF}:{S_HALF+1}]")
            g(f"v_cndmask_b32 v{QF+8*u+5}, v{QF+8*u+5}, v6, s[{S_HALF}:{S_HALF+1}]")
            for r in vread(u, 0): g(r)
            qk_a(u, 0); qk_b(u, 0)
            def pv(tau, kp):
                b = VF + 8 * (tau % 2) + 4 * kp
                C = "0" if (tau == 0 and kp == 0) else v(O, 16)
                g(f"v_mfma_f32_32x32x16_bf16 v[{O}:{O+15}], v[{b}:{b+3}], v[{P+4*kp}:{P+4*kp+3}], {C}")
            for tau in range(9):
                Sx = SB[tau % 2]
                vr_ = vread(u, tau + 1) if tau + 1 < 9 else []
                def ex(k0):
                    for k in range(k0, k0 + 4): g(f"v_exp_f32 v{Sx+k}, v{Sx+k}")
                def cv(k0):
                    for k in (k0, k0 + 2): g(f"v_cvt_pk_bf16_f32 v{P+k//2}, v{Sx+k}, v{Sx+k+1}")
                if tau + 1 < 9: qk_a(u, tau + 1)
                ex(0)
                if tau > 0: pv(tau - 1, 1)
                ex(4); cv(0)
                if tau + 1 < 9: qk_b(u, tau + 1)
                cv(4)
                for r in vr_: g(r)
                ex(8)
                pv(tau, 0)
                ex(12); cv(8); cv(12)
            pv(8, 1)
        E = 56
        for u in range(2):
            O = (O0, O1)[u]
            g(f"v_mov_b32 v6, v{O+8}")
            g(f"v_mov_b32 v7, v{O+8}")
            g("v_permlane32_swap_b32 v6, v7")
            g("v_rcp_f32 v7, v7")
            for k in range(12): g(f"v_mul_f32 v{O+k}, v{O+k}, v7")
        for (dst, src) in ((E, O0), (E+2, O0+4), (E+4, O0+8), (E+6, O1), (E+8, O1+4), (E+10, O1+8)):
            g(f"v_cvt_pk_bf16_f32 v{dst}, v{src}, v{src+1}")
            g(f"v_cvt_pk_bf16_f32 v{dst+1}, v{src+2}, v{src+3}")
        g("v_bfe_u32 v6, v1, 4, 1")
        g("v_mul_u32_u24 v6, 20480, v6")
        g("v_and_b32 v7, 15, v1")
        g("v_lshl_add_u32 v6, v7, 4, v6")
        g("v_lshl_add_u32 v6, v5, 8, v6")
        g(f"s_lshl_b32 s{S_TMP}, s{S_RB}, 2")
        g(f"s_add_u32 s{S_TMP}, s{S_TMP}, s{S_W}")
        g(f"s_mul_i32 s{S_TMP}, s{S_TMP}, 40960")
        g(f"s_mul_i32 s{S_TMP+1}, s{S_J}, 1280")
        g(f"s_add_u32 s{S_TMP}, s{S_TMP}, s{S_TMP+1}")
        g(f"s_add_u32 s{S_TMP}, s{S_TMP}, {WS_O}")
        for k in range(2):
            g(f"v_permlane32_swap_b32 v{E+k}, v{E+2+k}")
            g(f"v_permlane32_swap_b32 v{E+6+k}, v{E+10+k}")
        g(f"buffer_store_dwordx4 v[{E}:{E+3}], v6, s[{R_WS}:{R_WS+3}], s{S_TMP} offen {self.SC}")
        for k in range(2):
            g(f"v_cndmask_b32 v{E+12+k}, v{E+10+k}, v{E+8+k}, s[{S_HALF}:{S_HALF+1}]")
            g(f"v_cndmask_b32 v{E+14+k}, v{E+8+k}, v{E+6+k}, s[{S_HALF}:{S_HALF+1}]")
        g(f"buffer_store_dwordx4 v[{E+12}:{E+15}], v6, s[{R_WS}:{R_WS+3}], s{S_TMP} offen offset:768 {self.SC}")
        g("s_mov_b64 exec, 0xffffffff")
        g(f"buffer_store_dwordx4 v[{E+4}:{E+7}], v6, s[{R_WS}:{R_WS+3}], s{S_TMP} offen offset:512 {self.SC}")
        g("s_mov_b64 exec, -1")
        self.stamp("attn1")
        g.wait_vm(0)
        self.send_flag(F_O, S_T0, 8, 9)
        self.stamp("opub")

    def poll_half(self, kind):
        g = self.g
        self.flag_off(S_TMP, kind)
        g("v_and_b32 v3, 7, v1")
        g(f"s_lshl_b32 s{S_TMP+1}, s{S_KH}, 3")
        g(f"v_add_u32 v3, s{S_TMP+1}, v3")
        g("v_lshlrev_b32 v3, 4, v3")
        g(f"s_lshl_b32 s{S_TMP+1}, s{S_RH}, 1")
        g(f"s_add_u32 s{S_TMP+1}, s{S_TMP+1}, s{S_TP}")
        g(f"s_lshl_b32 s{S_TMP+1}, s{S_TMP+1}, 2")
        g(f"v_add_u32 v3, s{S_TMP+1}, v3")
        self.poll(3, S_TMP, S_T0, 4)
    def bload_half(self, ws, nsteps):
        g = self.g
        tile = nsteps * 2 * 1024
        g(f"s_lshl_b32 s{S_TMP}, s{S_RB}, 1")
        g(f"s_add_u32 s{S_TMP}, s{S_TMP}, s{S_RH}")
        g(f"s_lshl_b32 s{S_TMP}, s{S_TMP}, 2")
        g(f"s_add_u32 s{S_TMP}, s{S_TMP}, s{S_W}")
        g(f"s_xor_b32 s{S_TMP+1}, s{S_TMP}, 1")
        g(f"s_mul_i32 s{S_TMP+2}, s{S_KH}, {nsteps*1024}")
        g(f"s_add_u32 s{S_TMP+2}, s{S_TMP+2}, {ws}")
        for i in range(2):
            g(f"s_mul_i32 s{S_TMP+i}, s{S_TMP+i}, {tile}")
            g(f"s_add_u32 s{S_TMP+i}, s{S_TMP+i}, s{S_TMP+2}")
        for s_ in range(nsteps):
            for Tp in range(2):
                d = (Tp * nsteps + s_) * 4
                g(f"buffer_load_dwordx4 a[{d}:{d+3}], v2, s[{R_WS}:{R_WS+3}], s{S_TMP+Tp} offen offset:{1024*(s_%4)} sc1")
            if s_ % 4 == 3 and s_ < nsteps - 1:
                g(f"s_add_u32 s{S_TMP}, s{S_TMP}, 4096"); g(f"s_add_u32 s{S_TMP+1}, s{S_TMP+1}, 4096")
    def reduce_halves(self, ACC, rb_base):
        g = self.g
        g(f"s_mul_i32 s{S_TMP}, s{S_W}, 5120")
        g(f"s_add_u32 s{S_TMP}, s{S_TMP}, {rb_base}")
        g(f"v_add_u32 v3, s{S_TMP}, v2")
        g(f"s_xor_b32 s{S_TMP+1}, s{S_W}, 1")
        g(f"s_mul_i32 s{S_TMP+1}, s{S_TMP+1}, 5120")
        g(f"s_add_u32 s{S_TMP+1}, s{S_TMP+1}, {rb_base}")
        g(f"v_add_u32 v4, s{S_TMP+1}, v2")
        for t in range(5):
            g(f"ds_write_b128 v3, v[{ACC+20+4*t}:{ACC+23+4*t}] offset:{1024*t}")
        g.wait_lg(0)
        self.barrier()
        for t in range(5):
            g(f"ds_read_b128 v[{ACC+20+4*t}:{ACC+23+4*t}], v4 offset:{1024*t}")
    def pack_chunks(self, src, E):
        g = self.g
        for t in range(5):
            g(f"v_cvt_pk_bf16_f32 v{E+2*t}, v{src+4*t}, v{src+4*t+1}")
            g(f"v_cvt_pk_bf16_f32 v{E+2*t+1}, v{src+4*t+2}, v{src+4*t+3}")
        g(f"v_mov_b32 v{E+10}, v{E+8}")
        g(f"v_mov_b32 v{E+11}, v{E+9}")
        for b in (E, E + 4, E + 8):
            for k in range(2):
                g(f"v_permlane16_swap_b32 v{b+k}, v{b+2+k}")

    def p3(self):
        g = self.g
        XR, WA, X1 = 160, 170, 230
        ACC, AB = 40, 80
        self.barrier()
        g(f"s_add_u32 s{S_TMP}, s{S_W}, 14")
        g(f"s_mul_i32 s{S_TMP}, s{S_TMP}, {32*1280}")
        g(f"s_mul_i32 s{S_TMP+1}, s{S_CQ}, 160")
        g(f"s_add_u32 s{S_TMP}, s{S_TMP}, s{S_TMP+1}")
        g(f"s_mul_i32 s{S_TMP+1}, s{S_W}, 5120")
        for it in range(2):
            if it == 1:
                g(f"s_cmp_ge_u32 s{S_W}, 2")
                g("s_cbranch_scc1 L_wol")
            for n in range(5):
                self.dma(WA + n, R_B, S_TMP, S_TMP + 1, L_WO_L + it * 20480 + n * 1024)
            g(f"s_add_u32 s{S_TMP}, s{S_TMP}, {4*32*1280}")
        g.label("L_wol")
        g.forget_vm()
        g("v_lshrrev_b32 v5, 2, v1")
        g("v_mul_u32_u24 v5, 160, v5")
        g("v_and_b32 v6, 3, v1")
        g("v_lshl_add_u32 v20, v6, 3, v5")
        g(f"s_mul_i32 s{S_TMP+2}, s{S_KH}, 51200")
        g(f"s_add_u32 s{S_TMP+2}, s{S_TMP+2}, {L_WO_E}")
        g(f"v_add_u32 v5, s{S_TMP+2}, v20")
        g(f"s_cmp_eq_u32 s{S_KH}, 0")
        g(f"s_cselect_b32 s{S_TMP+2}, {L_WO_E + 20480}, {L_WO_L}")
        g(f"v_add_u32 v6, s{S_TMP+2}, v20")
        g("v_lshrrev_b32 v7, 4, v1")
        g("v_lshlrev_b32 v7, 4, v7")
        g(f"v_add_u32 v7, {L_VEC}, v7")
        GA, S2, G2 = 120, 180, 200
        for t in range(5):
            g(f"ds_read_b128 v[{GA+4*t}:{GA+4*t+3}], v7 offset:{64*t}")
            g(f"ds_read_b128 v[{S2+4*t}:{S2+4*t+3}], v7 offset:{320+64*t}")
        for t in range(5):
            g(f"ds_read_b128 v[{G2+4*t}:{G2+4*t+3}], v7 offset:{640+64*t}")
            g(f"ds_read_b128 a[{200+4*t}:{203+4*t}], v7 offset:{960+64*t}")
        XF = 140
        for i in range(10): self.unpack(XF + 2*i, XF + 2*i + 1, XR + i)
        g.wait_lg(0)
        self.poll_half(F_O)
        self.stamp("oseen")
        self.bload_half(WS_O, 10)
        self.gemm16(10, 5, ACC, AB,
                    lambda s_, t, hi: (5, s_ * 5120 + hi * 2560 + 32 * t) if s_ < 4 else (6, (s_ - 4) * 5120 + hi * 2560 + 32 * t),
                    lambda s_, Tp: a_((Tp * 10 + s_) * 4, 4),
                    hooks={("pre", 4): self.barrier})
        self.stamp("ogemm")
        self.reduce_halves(ACC, L_RB)
        for k in range(20):
            g(f"v_add_f32 v{ACC+k}, v{ACC+k}, v{ACC+20+k}")
            g(f"v_fma_f32 v{XF+k}, v{ACC+k}, v{GA+k}, v{XF+k}")
        for i in range(10):
            g(f"v_cvt_pk_bf16_f32 v{X1+i}, v{XF+2*i}, v{XF+2*i+1}")
        g("v_mov_b32 v5, 0x3f803f80")
        g("v_mov_b32 v8, 0"); g("v_mov_b32 v9, 0")
        for i in range(10):
            g(f"v_dot2_f32_bf16 v8, v{X1+i}, v5, v8")
            g(f"v_dot2_f32_bf16 v9, v{X1+i}, v{X1+i}, v9")
        g("v_and_b32 v12, 15, v1")
        g("v_lshlrev_b32 v12, 4, v12")
        g(f"s_lshl_b32 s{S_TMP}, s{S_RB}, 14")
        g(f"s_lshl_b32 s{S_TMP+1}, s{S_RH}, 2")
        g(f"s_add_u32 s{S_TMP+1}, s{S_TMP+1}, s{S_W}")
        g(f"s_lshl_b32 s{S_TMP+1}, s{S_TMP+1}, 8")
        g(f"s_add_u32 s{S_TMP}, s{S_TMP}, s{S_TMP+1}")
        g(f"s_add_u32 s{S_TMP}, s{S_TMP}, {WS_ST}")
        g(f"s_lshl_b32 s{S_TMP+1}, s{S_CQ}, 11")
        g(f"s_add_u32 s{S_TMP+1}, s{S_TMP+1}, s{S_TMP}")
        self.allreduce2(8, 9, 10, 11, (16, 32))
        g(f"v_mov_b32 v10, s{S_T0}")
        g(f"v_mov_b32 v11, s{S_T0}")
        g("s_mov_b64 exec, 0xffff")
        g(f"buffer_store_dwordx4 v[8:11], v12, s[{R_WS}:{R_WS+3}], s{S_TMP+1} offen {self.SC}")
        g("s_mov_b64 exec, -1")
        for i in range(10): self.unpack(XF + 2*i, XF + 2*i + 1, X1 + i)
        g("v_lshrrev_b32 v13, 4, v1")
        g("v_lshl_add_u32 v14, v13, 12, v12")
        L = g.newlabel("Ls"); D = g.newlabel("Lsd")
        g(f"s_mov_b32 s{S_CNT}, {POLL_MAX}")
        g.label(L)
        g(f"buffer_load_dwordx4 v[{ACC}:{ACC+3}], v14, s[{R_WS}:{R_WS+3}], s{S_TMP} offen sc1")
        g(f"buffer_load_dwordx4 v[{ACC+4}:{ACC+7}], v14, s[{R_WS}:{R_WS+3}], s{S_TMP} offen offset:2048 sc1")
        g.wait_vm(0)
        g(f"v_xor_b32 v15, s{S_T0}, v{ACC+2}")
        g(f"v_xor_b32 v16, s{S_T0}, v{ACC+6}")
        g("v_or_b32 v15, v15, v16")
        g("v_cmp_ne_u32 vcc, 0, v15")
        g(f"s_cbranch_vccz {D}")
        g(f"s_sub_u32 s{S_CNT}, s{S_CNT}, 1")
        g(f"s_cbranch_scc0 {L}")
        g.label(D)
        self.stamp("stseen")
        g(f"v_add_f32 v8, v{ACC}, v{ACC+4}")
        g(f"v_add_f32 v9, v{ACC+1}, v{ACC+5}")
        self.allreduce2(8, 9, 10, 11, (16, 32))
        self.rstd(8, 9, 10)
        for k in range(20):
            g(f"v_fma_f32 v{XF+k}, v{XF+k}, v9, v8")
            g(f"v_fma_f32 v{XF+k}, v{XF+k}, v{G2+k}, v{S2+k}")
        E = ACC
        self.pack_chunks(XF, E)
        g("v_bfe_u32 v14, v1, 4, 1")
        g("v_lshlrev_b32 v14, 10, v14")
        g("v_lshrrev_b32 v15, 5, v1")
        g("v_lshl_add_u32 v15, v15, 9, v12")
        g("v_add_u32 v14, v14, v15")
        g("v_add_u32 v15, 4096, v15")
        g(f"s_lshl_b32 s{S_TMP}, s{S_RB}, 1")
        g(f"s_add_u32 s{S_TMP}, s{S_TMP}, s{S_RH}")
        g(f"s_lshl_b32 s{S_TMP}, s{S_TMP}, 1")
        g(f"s_add_u32 s{S_TMP}, s{S_TMP}, s{S_TP}")
        g(f"s_mul_i32 s{S_TMP}, s{S_TMP}, 40960")
        g(f"s_mul_i32 s{S_TMP+1}, s{S_CQ}, 5120")
        g(f"s_add_u32 s{S_TMP}, s{S_TMP}, s{S_TMP+1}")
        g(f"s_lshl_b32 s{S_TMP+1}, s{S_KH}, 8")
        g(f"s_add_u32 s{S_TMP}, s{S_TMP}, s{S_TMP+1}")
        g(f"s_add_u32 s{S_TMP}, s{S_TMP}, {WS_H2}")
        g(f"buffer_store_dwordx4 v[{E}:{E+3}], v14, s[{R_WS}:{R_WS+3}], s{S_TMP} offen {self.SC}")
        g(f"buffer_store_dwordx4 v[{E+4}:{E+7}], v14, s[{R_WS}:{R_WS+3}], s{S_TMP} offen offset:2048 {self.SC}")
        g(f"buffer_store_dwordx4 v[{E+8}:{E+11}], v15, s[{R_WS}:{R_WS+3}], s{S_TMP} offen {self.SC}")
        g.wait_vm(0)
        self.send_flag(F_H2, S_T0, 8, 9)
        g(f"s_or_b32 s{S_TMP}, s{S_J}, s{S_W}")
        g(f"s_cmp_lg_u32 s{S_TMP}, 0")
        g("s_cbranch_scc1 L_noepoch")
        g(f"s_lshl_b32 s{S_TMP}, s{S_RB}, 2")
        g(f"v_mov_b32 v8, s{S_TMP}")
        g(f"v_mov_b32 v9, s{S_T0}")
        g("s_mov_b64 exec, 1")
        g(f"buffer_store_dword v9, v8, s[{R_WS}:{R_WS+3}], 0 offen sc1")
        g("s_mov_b64 exec, -1")
        g.label("L_noepoch")
        g.forget_vm()
        self.stamp("h2pub")

    def p4(self, npre=6):
        g = self.g
        ACC, AB, WA = 40, 136, 170 + 20
        self.barrier()
        g(f"s_cmp_lt_u32 s{S_W}, 2")
        g(f"s_cselect_b32 s{R_A}, s{P_WG}, s{P_WU}")
        g(f"s_cselect_b32 s{R_A+1}, s{P_WG+1}, s{P_WU+1}")
        g(f"s_mov_b32 s{R_A+2}, {640*3072}")
        g(f"s_mov_b32 s{R_A+3}, 0x20000")
        for n in range(3):
            g(f"v_add_u32 v3, {64*n}, v1")
            self.divmod_const(4, 5, 3, 12)
            g("v_mul_u32_u24 v4, 3072, v4")
            g(f"v_lshl_add_u32 v{WA+n}, v5, 4, v4")
        SO, SL = S_TMP + 12, S_TMP + 13
        g(f"s_mul_i32 s{SO}, s{S_KH}, {16*3072}")
        g(f"s_mul_i32 s{S_TMP}, s{S_J}, 192")
        g(f"s_add_u32 s{SO}, s{SO}, s{S_TMP}")
        g(f"s_mul_i32 s{SL}, s{S_TP}, 6176")
        g(f"s_mul_i32 s{S_TMP}, s{S_KH}, 3072")
        g(f"s_add_u32 s{SL}, s{SL}, s{S_TMP}")
        wtok = {}
        def wchunk(c):
            for n in range(3):
                wtok[c] = self.dma(WA + n, R_A, SO, SL, (c % GU_NSLOT) * GU_SLOT + n * 1024)
            g(f"s_add_u32 s{SO}, s{SO}, {32*3072}")
        for c in range(npre): wchunk(c)
        g("v_lshrrev_b32 v3, 5, v1")
        g("v_lshlrev_b32 v3, 3, v3")
        g("v_bfe_u32 v4, v1, 2, 2")
        g("v_add_u32 v3, v3, v4")
        g("v_mul_u32_u24 v3, 192, v3")
        g("v_bfe_u32 v4, v1, 4, 1")
        g("v_mul_u32_u24 v4, 6176, v4")
        g("v_add_u32 v3, v3, v4")
        g("v_and_b32 v4, 3, v1")
        g("v_lshl_add_u32 v5, v4, 3, v3")
        g(f"v_add_u32 v6, {5*GU_SLOT}, v5")
        g(f"v_add_u32 v7, {10*GU_SLOT}, v5")
        self.flag_off(S_TMP, F_H2)
        g("v_bfe_u32 v3, v1, 1, 3")
        g("v_lshlrev_b32 v3, 5, v3")
        g("v_and_b32 v4, 1, v1")
        g("v_lshl_add_u32 v3, v4, 2, v3")
        g(f"s_lshl_b32 s{S_TMP+1}, s{S_TP}, 4")
        g(f"s_lshl_b32 s{S_TMP+2}, s{S_KH}, 3")
        g(f"s_add_u32 s{S_TMP+1}, s{S_TMP+1}, s{S_TMP+2}")
        g(f"v_add_u32 v3, s{S_TMP+1}, v3")
        self.poll(3, S_TMP, S_T0, 4)
        self.stamp("h2seen")
        g(f"s_lshl_b32 s{S_TMP}, s{S_RB}, 2")
        g(f"s_add_u32 s{S_TMP}, s{S_TMP}, s{S_W}")
        g(f"s_mul_i32 s{S_TMP}, s{S_TMP}, 40960")
        g(f"s_add_u32 s{S_TMP}, s{S_TMP}, {WS_H2}")
        for s_ in range(40):
            g(f"buffer_load_dwordx4 a[{4*s_}:{4*s_+3}], v2, s[{R_WS}:{R_WS+3}], s{S_TMP} offen offset:{1024*(s_%4)} sc1")
            if s_ % 4 == 3 and s_ < 39: g(f"s_add_u32 s{S_TMP}, s{S_TMP}, 4096")
        nxt_chunk = [npre]
        def reads(s_):
            c, ks = s_ >> 1, s_ & 1
            slot = c % GU_NSLOT
            va, so = (5, 6, 7)[slot // 5], (slot % 5) * GU_SLOT
            return [f"ds_read_b64_tr_b16 v[{AB + (s_%2)*24 + 4*m + 2*rd}:{AB + (s_%2)*24 + 4*m + 2*rd + 1}], v{va} offset:{so + ks*3072 + rd*768 + 32*m}"
                    for m in range(6) for rd in range(2)]
        def pre(s_):
            if s_ & 1: return
            c = s_ >> 1
            t = wtok.get(c)
            need_raw = t is not None and c >= npre
            if need_raw: g.wait(t)
            if c >= npre or c == 0 or nxt_chunk[0] < 20:
                self.barrier()
            n = 0
            while nxt_chunk[0] < 20 and nxt_chunk[0] - GU_NSLOT <= c - 2 and n < 2:
                wchunk(nxt_chunk[0]); nxt_chunk[0] += 1; n += 1
        pre(0)
        for r in reads(0): g(r)
        for s_ in range(40):
            nxt = []
            if s_ + 1 < 40:
                pre(s_ + 1)
                nxt = reads(s_ + 1)
            for m in range(6):
                A = AB + (s_ % 2) * 24 + 4 * m
                D = ACC + 16 * m
                C = "0" if s_ == 0 else v(D, 16)
                g(f"v_mfma_f32_32x32x16_bf16 v[{D}:{D+15}], v[{A}:{A+3}], a[{4*s_}:{4*s_+3}], {C}")
                for _ in range(2):
                    if nxt: g(nxt.pop(0))
        self.stamp("gugemm")
        g("v_bfe_u32 v3, v1, 4, 1")
        g("v_mul_u32_u24 v3, 49152, v3")
        g("v_and_b32 v4, 15, v1")
        g("v_lshl_add_u32 v3, v4, 4, v3")
        g("v_lshrrev_b32 v4, 5, v1")
        g("v_lshl_add_u32 v3, v4, 8, v3")
        g(f"s_lshl_b32 s{S_TMP}, s{S_RB}, 2")
        g(f"s_add_u32 s{S_TMP}, s{S_TMP}, s{S_W}")
        g(f"s_mul_i32 s{S_TMP}, s{S_TMP}, {2*49152}")
        g(f"s_mul_i32 s{S_TMP+1}, s{S_J}, 3072")
        g(f"s_add_u32 s{S_TMP}, s{S_TMP}, s{S_TMP+1}")
        g(f"s_add_u32 s{S_TMP}, s{S_TMP}, {WS_ACT}")
        for m in range(6):
            D = ACC + 16 * m
            for k in range(8): g(f"v_exp_f32 v{D+k}, v{D+k}")
            for k in range(8): g(f"v_add_f32 v{D+k}, 1.0, v{D+k}")
            for k in range(8): g(f"v_rcp_f32 v{D+k}, v{D+k}")
            for k in range(8): g(f"v_mul_f32 v{D+8+k}, v{D+8+k}, v{D+k}")
            for k in range(4): g(f"v_cvt_pk_bf16_f32 v{D+k}, v{D+8+2*k}, v{D+9+2*k}")
            g(f"buffer_store_dwordx4 v[{D}:{D+3}], v3, s[{R_WS}:{R_WS+3}], s{S_TMP} offen offset:{512*m} {self.SC}")
        self.stamp("guepi")
        g.wait_vm(0)
        self.send_flag(F_ACT, S_T0, 8, 9)
        self.stamp("actpub")

    def p5(self, npre=8):
        g = self.g
        ACC, AB, WA, X1 = 40, 80, 170, 230
        NS = 16
        self.barrier()
        self.srd(R_B, P_WD, 1536 * 1280)
        self.wtile_addr(WA, 1280, "act")
        SO, SL = S_TMP + 12, S_TMP + 13
        g(f"s_mul_i32 s{SO}, s{S_KH}, 24")
        g(f"s_add_u32 s{SO}, s{SO}, s{S_TP}")
        g(f"s_mul_i32 s{SO}, s{SO}, {32*1280}")
        g(f"s_mul_i32 s{S_TMP}, s{S_CQ}, 160")
        g(f"s_add_u32 s{SO}, s{SO}, s{S_TMP}")
        g(f"s_lshl_b32 s{SL}, s{S_TP}, 1")
        g(f"s_add_u32 s{SL}, s{SL}, s{S_KH}")
        g(f"s_mul_i32 s{SL}, s{SL}, 5120")
        wtok = {}
        def wpair(p):
            for n in range(5):
                wtok[p] = self.dma(WA + n, R_B, SO, SL, ((2*p) % NS) * 10240 + n * 1024)
            g(f"s_add_u32 s{SO}, s{SO}, {2*32*1280}")
        npre_p = npre // 2
        for p in range(npre_p): wpair(p)
        g(f"s_mul_i32 s{S_TMP+2}, s{S_KH}, 5120")
        g(f"v_add_u32 v5, s{S_TMP+2}, v20")
        g("v_add_u32 v6, 61440, v5")
        g("v_add_u32 v7, 122880, v5")
        XF, GB = 140, 120
        for i in range(10): self.unpack(XF + 2*i, XF + 2*i + 1, X1 + i)
        for k in range(20): g(f"v_accvgpr_read_b32 v{GB+k}, a{200+k}")
        self.poll_half(F_ACT)
        self.stamp("actseen")
        self.bload_half(WS_ACT, 24)
        nxt = [npre_p]
        def pre(c):
            def f():
                if c % 2 == 0:
                    p = c // 2
                    if p >= npre_p: g.wait(wtok[p])
                    if p >= npre_p or c == 0 or nxt[0] < 12: self.barrier()
                    n = 0
                    while nxt[0] < 12 and 2 * nxt[0] + 1 - NS <= c - 2 and n < 2:
                        wpair(nxt[0]); nxt[0] += 1; n += 1
            return f
        def rd(s_, t, hi):
            slot = s_ % NS
            return ((5, 6, 7)[slot // 6], (slot % 6) * 10240 + hi * 2560 + 32 * t)
        self.gemm16(24, 5, ACC, AB, rd, lambda s_, Tp: a_((Tp * 24 + s_) * 4, 4),
                    hooks={("pre", c): pre(c) for c in range(24)})
        self.stamp("dgemm")
        self.barrier()
        self.reduce_halves(ACC, 0)
        self.srd(R_A, P_OUT, 2048 * 1280)
        g("v_and_b32 v12, 15, v1")
        g("v_mul_u32_u24 v12, 1280, v12")
        g("v_lshrrev_b32 v15, 5, v1")
        g("v_lshl_add_u32 v15, v15, 4, v12")
        g("v_bfe_u32 v14, v1, 4, 1")
        g("v_lshl_add_u32 v14, v14, 5, v15")
        for k in range(20):
            g(f"v_add_f32 v{ACC+k}, v{ACC+k}, v{ACC+20+k}")
            g(f"v_fma_f32 v{XF+k}, v{ACC+k}, v{GB+k}, v{XF+k}")
        E = ACC
        self.pack_chunks(XF, E)
        g(f"buffer_store_dwordx4 v[{E}:{E+3}], v14, s[{R_A}:{R_A+3}], s{S_TMP+11} offen")
        g(f"buffer_store_dwordx4 v[{E+4}:{E+7}], v14, s[{R_A}:{R_A+3}], s{S_TMP+11} offen offset:64")
        g(f"buffer_store_dwordx4 v[{E+8}:{E+11}], v15, s[{R_A}:{R_A+3}], s{S_TMP+11} offen offset:128")

    def build(self):
        self.stamp_names = []
        phases = [self.prologue, self.gemv, self.p0, self.p1, self.p2, self.p3, self.p4, self.p5]
        for i, ph in enumerate(phases):
            if self.stop is not None and i > self.stop: break
            ph()
        self.finish()
        return self.g.text()

HEADER = open("adaLN_cond__sliding_block__glu_gated_glu__prompt.s.ref").read().split("; Override")[0].rstrip("\n").split("\n")

def make(path, cls=K2, **kw):
    k = cls(**kw)
    body = k.build()
    txt = kernel_file([dict(name=NAME, body=body, grid=(256,1,1), block=(256,1,1), lds=LDS_BYTES, vgpr=256, agpr=256, sgpr=102, plain_launch=True)],
                      header_comments=[h[2:] for h in HEADER])
    open(path, "w").write(txt)
    return k

if __name__ == "__main__":
    import json
    k = make("k_full.s")
    print("instructions", k.g.count, "nop states", k.g.nops)
    k = make("k_stamp.s", stamps=True)
    json.dump(k.stamp_names, open("k_stamp.json", "w"))
    k = make("k_cyc.s", stamps="cyc")
    json.dump(k.stamp_names, open("k_cyc.json", "w"))
```

```python
import sys
from gen import *
from asmlib import kernel_file

NAME = "adaLN_cond__sliding_block__glu_gated_glu__prompt_kernel"
WS_FLAG = 0x1000
F_H, F_KV1, F_KV2, F_O, F_H2, F_ACT, F_XC = range(7)
WS_MOD = 0x10000
WS_ST = 0x50000
WS_H = 0x100000
WS_KV = 0x400000
WS_O = 0xA00000
WS_H2 = 0xD00000
WS_ACT = 0x1000000
WS_DBG = 0x2000000
WS_SIZE = 0x10000000
L_WKV = 0
L_WQ = 102400
L_SCR = 153600
L_SG = L_SCR
L_SC = L_SCR + 5120
L_RED = L_SCR + 9216
L_KVB = 0
L_QB = 73728
L_WO_E = 86016
L_VEC = 157696
L_WO_L = 0
L_RB = 30720
GU_SLOT = 12352
GU_NSLOT = 13
LDS_BYTES = 163840
S_B = 2
P_X, P_WQKV, P_WO, P_WG, P_WU, P_WD, P_C, P_WMOD, P_OUT, P_WS = 4, 6, 8, 12, 14, 16, 18, 20, 22, 26
R_WS, R_A, R_B = 28, 32, 36
S_X = 40
S_RB, S_J, S_W, S_T0, S_T1, S_T2, S_RH, S_CQ, S_KH, S_TP = 44, 45, 46, 47, 48, 49, 50, 51, 52, 53
S_CNT = 54
S_HALF = 56
S_TMP = 60
S_STAMP = 80
LCG_A, LCG_C = 1664525, 1013904223
POLL_MAX = 1 << 15
NEG_BIG = 0xF149F2CA
QSCALE = (20 ** -0.5) * 1.4426950408889634
NLOG2E = -1.4426950408889634

import struct
def fbits(x): return struct.unpack("<I", struct.pack("<f", x))[0]
def hx(x): return f"0x{x & 0xffffffff:x}"

class K:
    def __init__(self, stop=None, stamps=False):
        self.g = Gen()
        self.stop = stop
        self.stamps = stamps
        self.nstamp = 0
        self.SC = "sc1"
    def srd(self, r, ptr, size):
        g = self.g
        g(f"s_mov_b32 s{r}, s{ptr}")
        g(f"s_mov_b32 s{r+1}, s{ptr+1}")
        g(f"s_mov_b32 s{r+2}, {hx(size)}")
        g(f"s_mov_b32 s{r+3}, 0x20000")
    def stamp(self, name):
        if not self.stamps: return
        g = self.g
        g.comment("stamp " + name)
        g.wait_lg(0)
        g(f"{'s_memtime' if self.stamps == 'cyc' else 's_memrealtime'} s[{S_TMP+18}:{S_TMP+19}]")
        g.wait_lg(0)
        g(f"v_writelane_b32 v255, s{S_TMP+18}, {self.nstamp}")
        self.stamp_names.append(name)
        self.nstamp += 1
    def divmod_const(self, q, r, x, d, tmp=None):
        g = self.g
        m = (1 << 16) // d + 1
        for t in range(4096):
            assert (t * m) >> 16 == t // d
        g(f"v_mul_u32_u24 v{q}, {m}, v{x}")
        g(f"v_lshrrev_b32 v{q}, 16, v{q}")
        g(f"v_mul_u32_u24 v{r}, {d}, v{q}")
        g(f"v_sub_u32 v{r}, v{x}, v{r}")
    def poll(self, vaddr, soff, tag, vt, imm=0):
        g = self.g
        L = g.newlabel("Lp"); D = g.newlabel("Lpd")
        g(f"s_mov_b32 s{S_CNT}, {POLL_MAX}")
        g.label(L)
        g(f"buffer_load_dword v{vt}, v{vaddr}, s[{R_WS}:{R_WS+3}], s{soff} offen offset:{imm} sc1")
        g.wait_vm(0)
        g(f"v_cmp_ne_u32 vcc, s{tag}, v{vt}")
        g(f"s_cbranch_vccz {D}")
        g(f"s_sub_u32 s{S_CNT}, s{S_CNT}, 1")
        g(f"s_cbranch_scc0 {L}")
        g.label(D)
    def flag_off(self, sdst, kind, drb=0):
        g = self.g
        g(f"s_lshl_b32 s{sdst}, s{S_RB}, 8")
        g(f"s_add_u32 s{sdst}, s{sdst}, {WS_FLAG + kind*4096 + drb*256}")
    def send_flag(self, kind, tag, vt0, vt1, drb=0):
        g = self.g
        self.flag_off(S_TMP, kind, drb)
        g(f"s_lshl_b32 s{S_TMP+1}, s{S_J}, 4")
        g(f"s_lshl_b32 s{S_TMP+2}, s{S_W}, 2")
        g(f"s_add_u32 s{S_TMP+1}, s{S_TMP+1}, s{S_TMP+2}")
        g(f"v_mov_b32 v{vt0}, s{S_TMP+1}")
        g(f"v_mov_b32 v{vt1}, s{tag}")
        g("s_mov_b64 exec, 1")
        g(f"buffer_store_dword v{vt1}, v{vt0}, s[{R_WS}:{R_WS+3}], s{S_TMP} offen {self.SC}")
        g("s_mov_b64 exec, -1")
    def allreduce2(self, a, b, t0, t1, steps):
        g = self.g
        for st in steps:
            if st == 8:
                g(f"v_add_f32_dpp v{t0}, v{a}, v{a} row_ror:8 row_mask:0xf bank_mask:0xf")
                g(f"v_add_f32_dpp v{t1}, v{b}, v{b} row_ror:8 row_mask:0xf bank_mask:0xf")
                g(f"v_mov_b32 v{a}, v{t0}")
                g(f"v_mov_b32 v{b}, v{t1}")
            else:
                g(f"v_mov_b32 v{t0}, v{a}")
                g(f"v_mov_b32 v{t1}, v{b}")
                g(f"v_permlane{st}_swap_b32 v{a}, v{t0}")
                g(f"v_permlane{st}_swap_b32 v{b}, v{t1}")
                g(f"v_add_f32 v{a}, v{a}, v{t0}")
                g(f"v_add_f32 v{b}, v{b}, v{t1}")
    def unpack(self, lo, hi, src):
        self.g(f"v_lshlrev_b32 v{lo}, 16, v{src}")
        self.g(f"v_and_b32 v{hi}, 0xffff0000, v{src}")
    def barrier(self):
        self.g("s_barrier")
    def dma(self, vaddr, srd, soff, lds_off_sreg=None, lds_const=0, imm=0, flags=""):
        g = self.g
        if lds_off_sreg is None:
            g(f"s_mov_b32 m0, {lds_const}")
        else:
            g(f"s_add_u32 m0, s{lds_off_sreg}, {lds_const}")
        return g(f"buffer_load_dwordx4 v{vaddr}, s[{srd}:{srd+3}], s{soff} offen {flags} lds")

    def prologue(self):
        g = self.g
        g(f"s_cmp_ge_u32 s{S_B}, 256")
        g("s_cbranch_scc1 L_end")
        self.stamp("start")
        g("s_load_dwordx16 s[4:19], s[0:1], 0")
        g("s_load_dwordx8 s[20:27], s[0:1], 64")
        g(f"s_and_b32 s{S_RB}, s{S_B}, 7")
        g(f"s_lshl_b32 s{S_RB}, s{S_RB}, 1")
        g(f"s_lshr_b32 s{S_TMP}, s{S_B}, 7")
        g(f"s_add_u32 s{S_RB}, s{S_RB}, s{S_TMP}")
        g(f"s_lshr_b32 s{S_J}, s{S_B}, 3")
        g(f"s_and_b32 s{S_J}, s{S_J}, 15")
        g("v_lshrrev_b32 v2, 6, v0")
        g("v_and_b32 v1, 63, v0")
        g(f"v_readfirstlane_b32 s{S_W}, v2")
        g(f"s_and_b32 s{S_RH}, s{S_J}, 1")
        g(f"s_lshr_b32 s{S_CQ}, s{S_J}, 1")
        g(f"s_mov_b32 s{S_HALF}, 0")
        g(f"s_mov_b32 s{S_HALF+1}, -1")
        g(f"s_and_b32 s{S_KH}, s{S_W}, 1")
        g(f"s_lshr_b32 s{S_TP}, s{S_W}, 1")
        g(f"s_lshl_b32 s{S_TMP}, s{S_RB}, 2")
        g.wait_lg(0)
        g(f"s_load_dwordx4 s[{S_X}:{S_X+3}], s[{P_WS}:{P_WS+1}], s{S_TMP}")
        self.srd(R_WS, P_WS, WS_SIZE)
        self.stamp("karg")
    def make_tags(self):
        g = self.g
        for i, t in enumerate((S_T0, S_T1, S_T2)):
            g(f"s_mul_i32 s{t}, s{S_X+i}, {LCG_A}")
            g(f"s_add_u32 s{t}, s{t}, {LCG_C}")

    def gemv(self):
        g = self.g
        rank = {0: 0, 2: 1, 5: 2, 7: 3, 8: 4, 10: 5, 13: 6, 15: 7}
        tab = sum(rank.get(j, 15) << (4 * j) for j in range(16))
        g(f"s_mov_b32 s{S_TMP+2}, {hx(tab)}")
        g(f"s_mov_b32 s{S_TMP+3}, {hx(tab >> 32)}")
        g(f"s_lshl_b32 s{S_TMP}, s{S_J}, 2")
        g(f"s_lshr_b64 s[{S_TMP+2}:{S_TMP+3}], s[{S_TMP+2}:{S_TMP+3}], s{S_TMP}")
        g(f"s_and_b32 s{S_TMP+2}, s{S_TMP+2}, 15")
        g(f"s_lshl_b32 s{S_TMP+2}, s{S_TMP+2}, 3")
        g(f"s_and_b32 s{S_TMP+3}, s{S_B}, 0x87")
        g(f"s_add_u32 s{S_TMP+2}, s{S_TMP+2}, s{S_TMP+3}")
        g(f"s_cmp_ge_u32 s{S_TMP+2}, 60")
        g("s_cbranch_scc1 L_nogemv")
        P = S_TMP + 2
        self.srd(R_A, P_C, 1280)
        self.srd(R_B, P_WMOD, 640 * 7680)
        g("v_lshlrev_b32 v2, 3, v0")
        tc = g(f"buffer_load_dwordx2 v[4:5], v2, s[{R_A}:{R_A+3}], 0 offen")
        g("v_lshrrev_b32 v3, 4, v0")
        g("v_lshlrev_b32 v3, 2, v3")
        tx = g(f"buffer_load_dword v6, v3, s[{R_WS}:{R_WS+3}], 0 offen")
        g("v_lshrrev_b32 v7, 3, v0")
        g(f"v_mul_u32_u24 v8, {20*7680}, v7")
        g("v_and_b32 v9, 7, v0")
        g("v_lshl_add_u32 v8, v9, 4, v8")
        g(f"s_lshl_b32 s{S_TMP+4}, s{P}, 7")
        wl = []
        for i in range(20):
            wl.append(g(f"buffer_load_dwordx4 v[{40+4*i}:{43+4*i}], v8, s[{R_B}:{R_B+3}], s{S_TMP+4} offen nt"))
            if i < 19: g(f"s_add_u32 s{S_TMP+4}, s{S_TMP+4}, 7680")
        self.stamp("g_iss")
        self.unpack(10, 11, 4); self.unpack(12, 13, 5)
        for r in range(10, 14):
            g(f"v_mul_f32 v{r+4}, {hx(fbits(NLOG2E))}, v{r}")
        for r in range(10, 14):
            g(f"v_exp_f32 v{r+4}, v{r+4}")
        for r in range(10, 14):
            g(f"v_add_f32 v{r+4}, 1.0, v{r+4}")
        for r in range(10, 14):
            g(f"v_rcp_f32 v{r+4}, v{r+4}")
        for r in range(10, 14):
            g(f"v_mul_f32 v{r}, v{r}, v{r+4}")
        g("v_cvt_pk_bf16_f32 v14, v10, v11")
        g("v_cvt_pk_bf16_f32 v15, v12, v13")
        self.unpack(16, 17, 14); self.unpack(18, 19, 15)
        g("v_lshlrev_b32 v2, 4, v0")
        g(f"ds_write_b128 v2, v[16:19] offset:{L_SC - 131072}" if False else f"v_add_u32 v2, {L_SC}, v2")
        g("ds_write_b128 v2, v[16:19]")
        g(f"v_mul_u32_u24 v3, 80, v7")
        g(f"v_add_u32 v3, {L_SC}, v3")
        g.wait_lg(0)
        self.barrier()
        for i in range(5):
            g(f"ds_read_b128 v[{20+4*i}:{23+4*i}], v3 offset:{16*i}")
        for k in range(8): g(f"v_mov_b32 v{10+k}, 0")
        for i in range(20):
            for k in range(4):
                self.unpack(120, 121, 40 + 4*i + k)
                g(f"v_fmac_f32 v{10+2*k}, v120, v{20+i}")
                g(f"v_fmac_f32 v{11+2*k}, v121, v{20+i}")
        for k in range(8):
            g(f"v_add_f32_dpp v{20+k}, v{10+k}, v{10+k} row_ror:8 row_mask:0xf bank_mask:0xf")
        for k in range(4):
            g(f"v_permlane16_swap_b32 v{20+k}, v{24+k}")
        for k in range(4):
            g(f"v_add_f32 v{20+k}, v{20+k}, v{24+k}")
        for k in range(2):
            g(f"v_permlane32_swap_b32 v{20+k}, v{22+k}")
        for k in range(2):
            g(f"v_add_f32 v{20+k}, v{20+k}, v{22+k}")
        g("v_bfe_u32 v2, v1, 4, 1")
        g("v_lshlrev_b32 v2, 4, v2")
        g("v_bfe_u32 v3, v1, 5, 1")
        g("v_lshl_add_u32 v2, v3, 3, v2")
        g("v_lshl_add_u32 v2, v9, 5, v2")
        g(f"s_lshl_b32 s{S_TMP+4}, s{S_W}, 8")
        g(f"s_add_u32 s{S_TMP+4}, s{S_TMP+4}, {L_RED}")
        g(f"v_add_u32 v2, s{S_TMP+4}, v2")
        g("ds_write_b64 v2, v[20:21]")
        g("v_and_b32 v3, 15, v0")
        g("v_lshlrev_b32 v3, 4, v3")
        g(f"v_add_u32 v2, {L_RED}, v3")
        g(f"s_mov_b32 s{S_TMP+5}, {LCG_A}")
        g(f"v_mul_lo_u32 v6, v6, s{S_TMP+5}")
        g(f"v_add_u32 v6, {LCG_C}, v6")
        g.wait_lg(0)
        self.barrier()
        for i in range(4):
            g(f"ds_read_b128 v[{20+4*i}:{23+4*i}], v2 offset:{256*i}")
        g("v_lshrrev_b32 v7, 4, v0")
        g("v_mul_u32_u24 v7, 15360, v7")
        g("v_add_u32 v7, v7, v3")
        g(f"s_lshl_b32 s{S_TMP+4}, s{P}, 8")
        g(f"s_add_u32 s{S_TMP+4}, s{S_TMP+4}, {WS_MOD}")
        for k in range(4):
            g(f"v_add_f32 v{20+k}, v{20+k}, v{24+k}")
            g(f"v_add_f32 v{28+k}, v{28+k}, v{32+k}")
        for k in range(4):
            g(f"v_add_f32 v{20+k}, v{20+k}, v{28+k}")
        g("v_cvt_pk_bf16_f32 v12, v20, v21")
        g("v_mov_b32 v13, v6")
        g("v_cvt_pk_bf16_f32 v14, v22, v23")
        g("v_mov_b32 v15, v6")
        g(f"buffer_store_dwordx4 v[12:15], v7, s[{R_WS}:{R_WS+3}], s{S_TMP+4} offen sc1")
        g("s_nop 1")
        self.stamp("g_end")
        g.label("L_nogemv")
        g.forget()
        g.lg = [Tok("lg", {("s", S_X + i) for i in range(4)}, smem=True)]

    def p0(self):
        g = self.g
        g(f"s_cmp_lg_u32 s{S_W}, 0")
        g("s_cbranch_scc1 L_p0_dma")
        snap = g.snapshot()
        self.srd(R_A, P_X, 2048 * 1280)
        g("v_and_b32 v2, 7, v1")
        g("v_lshrrev_b32 v3, 3, v1")
        g("v_mul_u32_u24 v4, 1280, v2")
        g("v_lshl_add_u32 v4, v3, 4, v4")
        g(f"s_lshl_b32 s{S_TMP}, s{S_RB}, 4")
        g(f"s_add_u32 s{S_TMP}, s{S_TMP}, s{S_J}")
        g(f"s_mul_i32 s{S_TMP}, s{S_TMP}, {8*1280}")
        X = 40
        for i in range(10):
            g(f"buffer_load_dwordx4 v[{X+4*i}:{X+4*i+3}], v4, s[{R_A}:{R_A+3}], s{S_TMP} offen offset:{128*i}")
        self.make_tags()
        g("v_mov_b32 v5, 0x3f803f80")
        g("v_mov_b32 v6, 0"); g("v_mov_b32 v7, 0")
        for r in range(X, X + 40):
            g(f"v_dot2_f32_bf16 v6, v{r}, v5, v6")
            g(f"v_dot2_f32_bf16 v7, v{r}, v{r}, v7")
        self.allreduce2(6, 7, 8, 9, (8, 16, 32))
        self.rstd(6, 7, 8)
        Z = 80
        for i in range(40):
            self.unpack(Z + 2*i, Z + 2*i + 1, X + i)
            g(f"v_fma_f32 v{Z+2*i}, v{Z+2*i}, v7, v6")
            g(f"v_fma_f32 v{Z+2*i+1}, v{Z+2*i+1}, v7, v6")
        self.stamp("z")
        g("v_lshlrev_b32 v8, 4, v1")
        g(f"s_mul_i32 s{S_TMP+1}, s{S_RB}, 15360")
        g(f"s_add_u32 s{S_TMP+1}, s{S_TMP+1}, {WS_MOD}")
        g(f"s_add_u32 s{S_TMP+2}, s{S_TMP+1}, 4096")
        L = g.newlabel("Lm"); D = g.newlabel("Lmd")
        g(f"s_mov_b32 s{S_CNT}, {POLL_MAX}")
        g.label(L)
        for i in range(5):
            so = S_TMP + 1 if i < 4 else S_TMP + 2
            g(f"buffer_load_dwordx4 v[{X+4*i}:{X+4*i+3}], v8, s[{R_WS}:{R_WS+3}], s{so} offen offset:{(1024*i) % 4096} sc1")
        g.wait_vm(0)
        g(f"v_xor_b32 v9, s{S_T0}, v{X+1}")
        for i in range(5):
            for k in (1, 3):
                if i == 0 and k == 1: continue
                g(f"v_xor_b32 v10, s{S_T0}, v{X+4*i+k}")
                g("v_or_b32 v9, v9, v10")
        g("v_cmp_ne_u32 vcc, 0, v9")
        g(f"s_cbranch_vccz {D}")
        g(f"s_sub_u32 s{S_CNT}, s{S_CNT}, 1")
        g(f"s_cbranch_scc0 {L}")
        g.label(D)
        self.stamp("mod")
        g(f"v_add_u32 v9, {L_SG}, v8")
        g(f"v_cndmask_b32 v10, 0, 1.0, s[{S_HALF}:{S_HALF+1}]")
        for i in range(5):
            b = 60 + 4 * (i % 2)
            self.unpack(b, b + 1, X + 4*i); self.unpack(b + 2, b + 3, X + 4*i + 2)
            if i >= 2:
                add = "v10" if i == 2 else "1.0"
                for k in range(4): g(f"v_add_f32 v{b+k}, {add}, v{b+k}")
                g(f"v_cvt_pk_bf16_f32 v{b}, v{b}, v{b+1}")
                g(f"v_cvt_pk_bf16_f32 v{b+2}, v{b+2}, v{b+3}")
                g(f"v_and_b32 v{b+1}, 0xffff0000, v{b}"); g(f"v_lshlrev_b32 v{b}, 16, v{b}")
                g(f"v_and_b32 v{b+3}, 0xffff0000, v{b+2}"); g(f"v_lshlrev_b32 v{b+2}, 16, v{b+2}")
            g(f"ds_write_b128 v9, v[{b}:{b+3}] offset:{1024*i}")
        g("v_lshlrev_b32 v9, 5, v3")
        g(f"v_add_u32 v9, {L_SG}, v9")
        g("v_lshrrev_b32 v10, 2, v3")
        g("v_lshlrev_b32 v10, 10, v10")
        g("v_and_b32 v11, 3, v3")
        g("v_lshl_add_u32 v10, v11, 8, v10")
        g("v_lshl_add_u32 v10, v2, 4, v10")
        g(f"s_lshl_b32 s{S_TMP}, s{S_RB}, 3")
        g(f"s_add_u32 s{S_TMP}, s{S_TMP}, s{S_CQ}")
        g(f"s_mul_i32 s{S_TMP}, s{S_TMP}, 20480")
        g(f"s_lshl_b32 s{S_TMP+1}, s{S_RH}, 7")
        g(f"s_add_u32 s{S_TMP}, s{S_TMP}, s{S_TMP+1}")
        g(f"s_add_u32 s{S_TMP}, s{S_TMP}, {WS_H}")
        g.wait_lg(0)
        def rd(i):
            b = 160 + 16 * (i % 3)
            g(f"ds_read_b128 v[{b}:{b+3}], v9 offset:{256*i}")
            g(f"ds_read_b128 v[{b+4}:{b+7}], v9 offset:{256*i+16}")
            g(f"ds_read_b128 v[{b+8}:{b+11}], v9 offset:{2560+256*i}")
            g(f"ds_read_b128 v[{b+12}:{b+15}], v9 offset:{2560+256*i+16}")
        rd(0); rd(1)
        for i in range(10):
            if i + 2 < 10: rd(i + 2)
            b = 160 + 16 * (i % 3)
            for e in range(8):
                g(f"v_fma_f32 v{Z+8*i+e}, v{Z+8*i+e}, v{b+8+e}, v{b+e}")
            for e in range(4):
                g(f"v_cvt_pk_bf16_f32 v{X+4*i+e}, v{Z+8*i+2*e}, v{Z+8*i+2*e+1}")
            g(f"buffer_store_dwordx4 v[{X+4*i}:{X+4*i+3}], v10, s[{R_WS}:{R_WS+3}], s{S_TMP} offen offset:{2048*(i%2)} {self.SC}")
            if i % 2 == 1 and i < 9: g(f"s_add_u32 s{S_TMP}, s{S_TMP}, 4096")
        g.wait_vm(0)
        self.send_flag(F_H, S_T0, 8, 9)
        self.stamp("hpub")
        g("s_branch L_p0_join")
        g.label("L_p0_dma")
        g.restore(snap)
        self.srd(R_A, P_WQKV, 640 * 3840)
        g(f"s_mul_i32 s{S_TMP}, s{S_J}, 80")
        for n in range(5):
            g(f"v_add_u32 v2, {64*n}, v1")
            self.divmod_const(3, 4, 2, 10)
            g("v_bfe_u32 v5, v3, 2, 2")
            g("v_lshlrev_b32 v5, 3, v5")
            g("v_lshrrev_b32 v6, 4, v3")
            g("v_lshl_add_u32 v5, v6, 2, v5")
            g("v_and_b32 v6, 3, v3")
            g("v_add_u32 v5, v5, v6")
            g("v_mul_u32_u24 v5, 3840, v5")
            g("v_lshl_add_u32 v5, v4, 4, v5")
            g(f"v_cmp_lt_u32 s[{S_TMP+4}:{S_TMP+5}], 4, v4")
            g(f"v_add_u32 v6, {1280 - 80}, v5")
            g(f"v_cndmask_b32 v5, v5, v6, s[{S_TMP+4}:{S_TMP+5}]")
            g(f"v_add_u32 v{10+n}, 1280, v5")
        g(f"s_sub_u32 s{S_TMP+1}, s{S_W}, 1")
        g(f"s_mul_i32 s{S_TMP+2}, s{S_TMP+1}, {32*3840}")
        g(f"s_add_u32 s{S_TMP+2}, s{S_TMP+2}, s{S_TMP}")
        g(f"s_mul_i32 s{S_TMP+3}, s{S_TMP+1}, 5120")
        for it in range(7):
            if it == 6:
                g(f"s_cmp_eq_u32 s{S_W}, 3")
                g("s_cbranch_scc1 L_p0_kvdone")
            for n in range(5):
                self.dma(10 + n, R_A, S_TMP + 2, S_TMP + 3, L_WKV + it * 15360 + n * 1024)
            g(f"s_add_u32 s{S_TMP+2}, s{S_TMP+2}, {3*32*3840}")
        g.label("L_p0_kvdone")
        for n in range(5):
            g(f"v_add_u32 v2, {64*n}, v1")
            self.divmod_const(3, 4, 2, 5)
            g("v_and_b32 v5, 32, v3")
            g("v_bfe_u32 v6, v3, 4, 1")
            g("v_lshl_add_u32 v5, v6, 2, v5")
            g("v_bfe_u32 v6, v3, 1, 2")
            g("v_add_u32 v5, v5, v6")
            g("v_and_b32 v6, 8, v3")
            g("v_add_u32 v5, v5, v6")
            g("v_and_b32 v6, 1, v3")
            g("v_lshl_add_u32 v5, v6, 4, v5")
            g("v_mul_u32_u24 v5, 3840, v5")
            g(f"v_lshl_add_u32 v{10+n}, v4, 4, v5")
        g(f"s_mul_i32 s{S_TMP+2}, s{S_TMP+1}, {64*3840}")
        g(f"s_add_u32 s{S_TMP+2}, s{S_TMP+2}, s{S_TMP}")
        for it in range(4):
            if it == 3:
                g(f"s_cmp_lg_u32 s{S_W}, 1")
                g("s_cbranch_scc1 L_p0_qdone")
            for n in range(5):
                self.dma(10 + n, R_A, S_TMP + 2, S_TMP + 3, L_WQ + it * 15360 + n * 1024)
            g(f"s_add_u32 s{S_TMP+2}, s{S_TMP+2}, {3*64*3840}")
        g.label("L_p0_qdone")
        self.make_tags()
        if self.stamps:
            for _ in range(3): pass
        g.label("L_p0_join")
        g.forget()
    def rstd(self, a, b, t):
        g = self.g
        g(f"v_mul_f32 v{a}, {hx(fbits(1/640))}, v{a}")
        g(f"v_mul_f32 v{t}, v{a}, v{a}")
        g(f"v_mov_b32 v{t+1}, {hx(fbits(1/640))}")
        g(f"v_fma_f32 v{b}, v{b}, v{t+1}, -v{t}")
        g(f"v_max_f32 v{b}, 0, v{b}")
        g(f"v_add_f32 v{b}, {hx(fbits(1e-5))}, v{b}")
        g(f"v_rsq_f32 v{b}, v{b}")
        g(f"v_mul_f32 v{a}, v{a}, v{b}")
        g(f"v_sub_f32 v{a}, 0, v{a}")

    def gemm16(self, nsteps, ntile, acc, abuf, rd_addr, bfrag, hooks=None, first_zero=True):
        g = self.g
        hooks = hooks or {}
        def reads(s):
            out = []
            for t in range(ntile):
                for hi in range(2):
                    va, imm = rd_addr(s, t, hi)
                    d = abuf + (s % 2) * 4 * ntile + 4 * t + 2 * hi
                    out.append(f"ds_read_b64_tr_b16 v[{d}:{d+1}], v{va} offset:{imm}")
            return out
        if ("pre", 0) in hooks: hooks[("pre", 0)]()
        for r in reads(0): g(r)
        for s in range(nsteps):
            nxt = []
            if s + 1 < nsteps:
                if ("pre", s + 1) in hooks: hooks[("pre", s + 1)]()
                nxt = reads(s + 1)
            extra = list(hooks.get(("fill", s), []))
            for t in range(ntile):
                for Tp in range(2):
                    A = abuf + (s % 2) * 4 * ntile + 4 * t
                    D = acc + (Tp * ntile + t) * 4
                    C = "0" if (s == 0 and first_zero) else f"v[{D}:{D+3}]"
                    g(f"v_mfma_f32_16x16x32_bf16 v[{D}:{D+3}], v[{A}:{A+3}], {bfrag(s, Tp)}, {C}")
                    if nxt: g(nxt.pop(0))
                    if extra: extra.pop(0)()
            for r in nxt: g(r)
            for e in extra: e()

    def p1(self):
        g = self.g
        self.flag_off(S_TMP, F_H)
        g("v_and_b32 v2, 3, v1")
        g(f"s_lshl_b32 s{S_TMP+1}, s{S_W}, 2")
        g(f"v_add_u32 v2, s{S_TMP+1}, v2")
        g("v_lshlrev_b32 v2, 4, v2")
        self.poll(2, S_TMP, S_T0, 3)
        self.stamp("hseen")
        g("v_lshlrev_b32 v2, 4, v1")
        g(f"s_lshl_b32 s{S_TMP}, s{S_RB}, 2")
        g(f"s_add_u32 s{S_TMP}, s{S_TMP}, s{S_W}")
        g(f"s_mul_i32 s{S_TMP}, s{S_TMP}, 40960")
        g(f"s_add_u32 s{S_TMP}, s{S_TMP}, {WS_H}")
        g(f"s_add_u32 s{S_TMP+1}, s{S_TMP}, 20480")
        for s_ in range(20):
            for Tp in range(2):
                d = (Tp * 20 + s_) * 4
                g(f"buffer_load_dwordx4 a[{d}:{d+3}], v2, s[{R_WS}:{R_WS+3}], s{S_TMP+Tp} offen offset:{1024*(s_%4)} sc1")
            if s_ % 4 == 3 and s_ < 19:
                g(f"s_add_u32 s{S_TMP}, s{S_TMP}, 4096"); g(f"s_add_u32 s{S_TMP+1}, s{S_TMP+1}, 4096")
        g("v_lshrrev_b32 v3, 2, v1")
        g("v_and_b32 v4, 3, v1")
        g("v_mul_u32_u24 v5, 160, v3")
        g("v_lshl_add_u32 v5, v4, 3, v5")
        g("v_add_u32 v6, 51200, v5")
        g("v_and_b32 v7, 7, v3")
        g("v_lshlrev_b32 v7, 1, v7")
        g("v_lshrrev_b32 v8, 5, v1")
        g("v_add_u32 v7, v7, v8")
        g("v_mul_u32_u24 v7, 80, v7")
        g("v_lshl_add_u32 v7, v4, 3, v7")
        g(f"v_add_u32 v7, {L_WQ}, v7")
        g("v_lshrrev_b32 v8, 4, v1")
        g("v_and_b32 v9, 15, v1")
        g(f"s_lshl_b32 s{S_TMP}, s{S_W}, 5")
        g(f"v_add_u32 v9, s{S_TMP}, v9")
        g("v_mul_u32_u24 v9, 48, v9")
        for t in range(5):
            g(f"v_add_u32 v18, {4*t}, v8")
            self.divmod_const(19, 20, 18, 5)
            g("v_mul_u32_u24 v19, 18432, v19")
            g("v_lshl_add_u32 v19, v20, 3, v19")
            g("v_add_u32 v19, v19, v9")
            g(f"v_add_u32 v{10+t}, {L_KVB + 12288}, v19")
            if t < 3:
                self.divmod_const(19, 20, 18, 5)
                if t == 2:
                    g("v_min_u32 v21, 1, v20")
                    g(f"v_cmp_lt_u32 s[{S_TMP+2}:{S_TMP+3}], 1, v19")
                    g(f"v_cndmask_b32 v19, v19, v21, s[{S_TMP+2}:{S_TMP+3}]")
                    g(f"v_cndmask_b32 v20, v20, 5, s[{S_TMP+2}:{S_TMP+3}]")
                g("v_mul_u32_u24 v19, 6144, v19")
                g("v_lshl_add_u32 v19, v20, 3, v19")
                g("v_add_u32 v19, v19, v9")
                g(f"v_add_u32 v{15+t}, {L_QB}, v19")
        self.barrier()
        ACC, AB = 40, 80
        self.gemm16(20, 5, ACC, AB,
                    lambda s_, t, hi: (5 if s_ < 10 else 6, (s_ % 10) * 5120 + hi * 2560 + 32 * t),
                    lambda s_, Tp: a_((Tp * 20 + s_) * 4, 4))
        self.stamp("kvgemm")
        self.barrier()
        for Tp in range(2):
            for t in range(5):
                D = ACC + (Tp * 5 + t) * 4
                g(f"v_cvt_pk_bf16_f32 v{D}, v{D}, v{D+1}")
                g(f"v_cvt_pk_bf16_f32 v{D+1}, v{D+2}, v{D+3}")
                g(f"ds_write_b64 v{10+t}, v[{D}:{D+1}] offset:{768*Tp}")
        g("v_and_b32 v18, 127, v0")
        g("v_mul_u32_u24 v18, 48, v18")
        g("v_lshrrev_b32 v19, 7, v0")
        g("v_mul_u32_u24 v19, 18432, v19")
        g("v_add_u32 v18, v18, v19")
        g("v_mov_b32 v20, 0x3f800000"); g("v_mov_b32 v21, 0x3f803f80"); g("v_mov_b32 v22, 0x3f803f80"); g("v_mov_b32 v23, 0x3f803f80")
        g(f"ds_write_b64 v18, v[20:21] offset:{L_KVB + 12288 + 40}")
        g(f"ds_write_b64 v18, v[22:23] offset:{L_KVB + 36864 + 12288 + 40}")
        g(f"s_cmp_ge_u32 s{S_RB}, 2")
        g("s_cbranch_scc1 L_noinv")
        g(f"v_mov_b32 v20, {hx(0x3f800000 | (NEG_BIG >> 16))}")
        g(f"ds_write_b64 v18, v[20:21] offset:{L_KVB + 40}")
        g(f"s_cmp_ge_u32 s{S_RB}, 1")
        g("s_cbranch_scc1 L_noinv")
        g(f"ds_write_b64 v18, v[20:21] offset:{L_KVB + 6144 + 40}")
        g.label("L_noinv")
        g.wait_lg(0)
        self.barrier()
        g(f"s_mul_i32 s{S_TMP}, s{S_W}, 18432")
        g(f"s_add_u32 s{S_TMP}, s{S_TMP}, {L_KVB + 12288}")
        g(f"v_add_u32 v18, s{S_TMP}, v2")
        for i in range(6):
            g(f"ds_read_b128 v[{ACC+4*i}:{ACC+4*i+3}], v18 offset:{1024*i}")
        g(f"s_lshl_b32 s{S_TMP}, s{S_RB}, 4")
        g(f"s_add_u32 s{S_TMP}, s{S_TMP}, s{S_J}")
        g(f"s_lshl_b32 s{S_TMP}, s{S_TMP}, 2")
        g(f"s_add_u32 s{S_TMP}, s{S_TMP}, s{S_W}")
        g(f"s_mul_i32 s{S_TMP+10}, s{S_TMP}, 6144")
        g(f"s_add_u32 s{S_TMP+10}, s{S_TMP+10}, {WS_KV}")
        g(f"s_add_u32 s{S_TMP+1}, s{S_TMP+10}, 4096")
        for i in range(6):
            so = S_TMP + 10 if i < 4 else S_TMP + 1
            g(f"buffer_store_dwordx4 v[{ACC+4*i}:{ACC+4*i+3}], v2, s[{R_WS}:{R_WS+3}], s{so} offen offset:{(1024*i) % 4096} sc1")
        QACC = 120
        def flags():
            g.wait_vm(0)
            sc = self.SC; self.SC = "sc1"
            L1 = g.newlabel("Lnf")
            g(f"s_cmp_ge_u32 s{S_RB}, 15")
            g(f"s_cbranch_scc1 {L1}")
            self.send_flag(F_KV1, S_T1, 18, 19, 1)
            g(f"s_cmp_ge_u32 s{S_RB}, 14")
            g(f"s_cbranch_scc1 {L1}")
            self.send_flag(F_KV2, S_T2, 18, 19, 2)
            g.label(L1)
            g.forget_vm()
            self.SC = sc
        self.gemm16(20, 3, QACC, AB,
                    lambda s_, t, hi: (7, s_ * 2560 + hi * 1280 + 32 * t),
                    lambda s_, Tp: a_((Tp * 20 + s_) * 4, 4),
                    hooks={("pre", 12): flags})
        g(f"s_mov_b32 s{S_TMP}, {hx(fbits(QSCALE))}")
        for Tp in range(2):
            for t in range(3):
                D = QACC + (Tp * 3 + t) * 4
                for k in range(4): g(f"v_mul_f32 v{D+k}, s{S_TMP}, v{D+k}")
                g(f"v_cvt_pk_bf16_f32 v{D}, v{D}, v{D+1}")
                g(f"v_cvt_pk_bf16_f32 v{D+1}, v{D+2}, v{D+3}")
                g(f"ds_write_b64 v{15+t}, v[{D}:{D+1}] offset:{768*Tp}")
        self.stamp("qgemm")

    def finish(self):
        g = self.g
        if self.stamps:
            self.stamp("end")
            g.wait_vm(0)
            self.stamp("drained")
            g(f"s_lshl_b32 s{S_TMP}, s{S_B}, 2")
            g(f"s_add_u32 s{S_TMP}, s{S_TMP}, s{S_W}")
            g(f"s_lshl_b32 s{S_TMP}, s{S_TMP}, 7")
            g(f"s_add_u32 s{S_TMP}, s{S_TMP}, {WS_DBG}")
            g("v_lshlrev_b32 v2, 2, v1")
            g("s_mov_b64 exec, 0xffffffff")
            g(f"buffer_store_dword v255, v2, s[{R_WS}:{R_WS+3}], s{S_TMP} offen")
        g.wait_all()
        g.label("L_end")
        g("s_endpgm")

def forget_vm(self):
    self.vm = []
Gen.forget_vm = forget_vm
```

```python
import json
from kern2 import *

S_FAST = 55
R_T = 96
S_TT = 58

class Pacer:
    def __init__(self, lead=0):
        self.items = []; self.t = 0; self.free = -lead; self.step = -1
    def add(self, fn, cost, earliest=-1):
        self.items.append((fn, cost, earliest))
    def tick(self, dt, step):
        self.t += dt
        self.step = step
        if self.items and self.free <= self.t and self.items[0][2] <= step:
            fn, cost, _ = self.items.pop(0)
            fn()
            self.free = max(self.free, self.t - 2 * cost) + cost
            return True
        return False
    def force(self, n=1):
        for _ in range(n):
            if self.items:
                fn, cost, e = self.items.pop(0)
                assert e <= self.step, (e, self.step)
                fn(); self.free = max(self.free, self.t) + cost
    def drain(self):
        self.force(len(self.items))

L_WO_E = 73728
L_RB = 20480
L_FAST = L_SC + 3072

class V2(K2):
    def __init__(self, cfg=None, **kw):
        super().__init__(**kw)
        self.cfg = dict(kv_pre=12, kv_depth=12, fast=True, lb=3, touch_gu=5, gu_a=1, gu_b=2, gu_c=2, blead=3, wlead=4, dn_a=3, dn_b=2, dn_c=1, kvflag_step=9, la=6)
        self.cfg.update(cfg or {})
        self.SC = "" if self.cfg["fast"] else "sc1"
    def dma_items(self, regs, srd, soff, lds_sreg, lds_const, step_after=None, flags=""):
        g = self.g
        toks = []
        out = []
        for n, r in enumerate(regs):
            def f(n=n, r=r):
                if n % 4 == 0:
                    c = lds_const + n * 1024
                    if lds_sreg is None: g(f"s_mov_b32 m0, {c}")
                    else: g(f"s_add_u32 m0, s{lds_sreg}, {c}")
                toks.append(g(f"buffer_load_dwordx4 v{r}, s[{srd}:{srd+3}], s{soff} offen offset:{(n%4)*1024} {flags} lds"))
                if n == len(regs) - 1 and step_after: g(f"s_add_u32 s{soff}, s{soff}, {step_after}")
            out.append(f)
        return out, toks
    def tile_regs(self, dst, nreg, cpr, kmap, pitch, seg=None, add=0, T=200):
        g = self.g
        for n in range(nreg):
            for l in range(64):
                rho, ch = divmod(64 * n + l, cpr)
                off = kmap[1](rho) * pitch + 16 * ch + (seg[1] if seg and ch >= seg[0] else 0) + add - (n % 4) * 1024
                assert off >= 0, (n, l, off)
            g(f"v_add_u32 v{T}, {64*n}, v1")
            self.divmod_const(T+1, T+2, T, cpr)
            kmap[0](T+3, T+1, T+4)
            g(f"v_mul_u32_u24 v{T+3}, {pitch}, v{T+3}")
            g(f"v_lshl_add_u32 v{T+3}, v{T+2}, 4, v{T+3}")
            if seg:
                g(f"v_cmp_le_u32 s[{S_TT}:{S_TT+1}], {seg[0]}, v{T+2}")
                g(f"v_add_u32 v{T+4}, {seg[1]}, v{T+3}")
                g(f"v_cndmask_b32 v{T+3}, v{T+3}, v{T+4}, s[{S_TT}:{S_TT+1}]")
            c = add - (n % 4) * 1024
            if c >= 0: g(f"v_add_u32 v{dst+n}, {c}, v{T+3}")
            else: g(f"v_subrev_u32 v{dst+n}, {-c}, v{T+3}")
    def kmaps(self):
        g = self.g
        def nat(d, r, t):
            g(f"v_and_b32 v{d}, 3, v{r}"); g(f"v_lshrrev_b32 v{t}, 4, v{r}"); g(f"v_lshl_add_u32 v{d}, v{t}, 2, v{d}")
            g(f"v_bfe_u32 v{t}, v{r}, 2, 2"); g(f"v_lshl_add_u32 v{d}, v{t}, 3, v{d}")
        def act(d, r, t):
            g(f"v_and_b32 v{d}, 7, v{r}"); g(f"v_lshrrev_b32 v{t}, 4, v{r}"); g(f"v_lshl_add_u32 v{d}, v{t}, 3, v{d}")
            g(f"v_bfe_u32 v{t}, v{r}, 3, 1"); g(f"v_lshl_add_u32 v{d}, v{t}, 4, v{d}")
        def qm(d, r, t):
            g(f"v_and_b32 v{d}, 40, v{r}"); g(f"v_bfe_u32 v{t}, v{r}, 4, 1"); g(f"v_lshl_add_u32 v{d}, v{t}, 2, v{d}")
            g(f"v_bfe_u32 v{t}, v{r}, 1, 2"); g(f"v_add_u32 v{d}, v{d}, v{t}")
            g(f"v_and_b32 v{t}, 1, v{r}"); g(f"v_lshl_add_u32 v{d}, v{t}, 4, v{d}")
        def ident(d, r, t):
            g(f"v_mov_b32 v{d}, v{r}")
        return dict(nat=(nat, lambda r: 8*((r>>2)&3) + 4*(r>>4) + (r&3)),
                    act=(act, lambda r: 16*((r>>3)&1) + (r&7) + 8*(r>>4)),
                    q=(qm, lambda r: (r&40) + 4*((r>>4)&1) + ((r>>1)&3) + 16*(r&1)),
                    id=(ident, lambda r: r))
    def publish(self, kind, tag, vt0, vt1):
        g = self.g
        g.wait_vm(0)
        if not self.cfg["fast"]:
            self.send_flag(kind, tag, vt0, vt1); return
        self.flag_off(S_TMP, kind)
        g(f"s_lshl_b32 s{S_TMP+1}, s{S_J}, 4")
        g(f"s_lshl_b32 s{S_TMP+2}, s{S_W}, 2")
        g(f"s_add_u32 s{S_TMP+1}, s{S_TMP+1}, s{S_TMP+2}")
        g(f"v_mov_b32 v{vt0}, s{S_TMP+1}")
        g(f"v_mov_b32 v{vt1}, s{tag}")
        self.store_either(f"buffer_store_dword v{vt1}, v{vt0}, s[{R_WS}:{R_WS+3}], s{S_TMP} offen", "1", release=True)
    def store_either(self, ins, execmask, release=False):
        g = self.g
        Ls, Lj = g.newlabel("Lslow"), g.newlabel("Ljoin")
        g(f"s_mov_b64 exec, {execmask}")
        g(f"s_cmp_eq_u32 s{S_FAST}, 0")
        g(f"s_cbranch_scc1 {Ls}")
        g(ins)
        g.label(Lj)
        g("s_mov_b64 exec, -1")
        def slow():
            g.label(Ls)
            if release:
                g("buffer_wbl2 sc1")
                g.raw("s_waitcnt vmcnt(0)")
            g.raw(ins + " sc1")
            g.raw(f"s_branch {Lj}")
        self.cold.append(slow)
    def acquire(self):
        g = self.g
        if not self.cfg["fast"]: return
        Ls, Lj = g.newlabel("Lacq"), g.newlabel("Lacqj")
        g(f"s_cmp_eq_u32 s{S_FAST}, 0")
        g(f"s_cbranch_scc1 {Ls}")
        g.label(Lj)
        def slow():
            g.label(Ls)
            g.raw("buffer_inv sc1")
            g.raw("s_waitcnt vmcnt(0)")
            g.raw(f"s_branch {Lj}")
        self.cold.append(slow)

    def p0(self):
        g = self.g
        cfg = self.cfg
        km = self.kmaps()
        g(f"s_cmp_lg_u32 s{S_W}, 0")
        g("s_cbranch_scc1 L_p0_dma")
        snap = g.snapshot()
        self.srd(R_A, P_X, 2048 * 1280)
        g("v_and_b32 v2, 7, v1")
        g("v_lshrrev_b32 v3, 3, v1")
        g("v_mul_u32_u24 v4, 1280, v2")
        g("v_lshl_add_u32 v4, v3, 4, v4")
        g(f"s_lshl_b32 s{S_TMP}, s{S_RB}, 4")
        g(f"s_add_u32 s{S_TMP}, s{S_TMP}, s{S_J}")
        g(f"s_mul_i32 s{S_TMP}, s{S_TMP}, {8*1280}")
        X = 40
        for i in range(10):
            g(f"buffer_load_dwordx4 v[{X+4*i}:{X+4*i+3}], v4, s[{R_A}:{R_A+3}], s{S_TMP} offen offset:{128*i}")
        self.make_tags()
        if cfg["fast"]:
            g(f"s_getreg_b32 s{S_TMP+4}, hwreg(HW_REG_XCC_ID, 0, 4)")
            self.flag_off(S_TMP + 5, F_XC)
            g(f"s_lshl_b32 s{S_TMP+1}, s{S_J}, 4")
            g(f"v_mov_b32 v8, s{S_TMP+1}")
            g(f"v_mov_b32 v10, s{S_T0}")
            g(f"v_mov_b32 v11, s{S_TMP+4}")
            g("s_mov_b64 exec, 1")
            g(f"buffer_store_dwordx2 v[10:11], v8, s[{R_WS}:{R_WS+3}], s{S_TMP+5} offen sc1")
            g("s_mov_b64 exec, -1")
        g("v_mov_b32 v5, 0x3f803f80")
        g("v_mov_b32 v6, 0"); g("v_mov_b32 v7, 0")
        for r in range(X, X + 40):
            g(f"v_dot2_f32_bf16 v6, v{r}, v5, v6")
            g(f"v_dot2_f32_bf16 v7, v{r}, v{r}, v7")
        self.allreduce2(6, 7, 8, 9, (8, 16, 32))
        self.rstd(6, 7, 8)
        Z = 80
        for i in range(40):
            self.unpack(Z + 2*i, Z + 2*i + 1, X + i)
            g(f"v_fma_f32 v{Z+2*i}, v{Z+2*i}, v7, v6")
            g(f"v_fma_f32 v{Z+2*i+1}, v{Z+2*i+1}, v7, v6")
        self.stamp("z")
        g("v_lshlrev_b32 v8, 4, v1")
        g(f"s_mul_i32 s{S_TMP+1}, s{S_RB}, 15360")
        g(f"s_add_u32 s{S_TMP+1}, s{S_TMP+1}, {WS_MOD}")
        g(f"s_add_u32 s{S_TMP+2}, s{S_TMP+1}, 4096")
        g("v_and_b32 v12, 15, v1")
        g("v_lshlrev_b32 v12, 4, v12")
        L = g.newlabel("Lm"); D = g.newlabel("Lmd")
        g(f"s_mov_b32 s{S_CNT}, {POLL_MAX}")
        g.label(L)
        for i in range(5):
            so = S_TMP + 1 if i < 4 else S_TMP + 2
            g(f"buffer_load_dwordx4 v[{X+4*i}:{X+4*i+3}], v8, s[{R_WS}:{R_WS+3}], s{so} offen offset:{(1024*i) % 4096} sc1")
        if cfg["fast"]:
            g(f"buffer_load_dwordx2 v[14:15], v12, s[{R_WS}:{R_WS+3}], s{S_TMP+5} offen sc1")
        g.wait_vm(0)
        g(f"v_xor_b32 v9, s{S_T0}, v{X+1}")
        for r in [X + 4*i + k for i in range(5) for k in (1, 3)][1:] + ([14] if cfg["fast"] else []):
            g(f"v_xor_b32 v10, s{S_T0}, v{r}")
            g("v_or_b32 v9, v9, v10")
        g("v_cmp_ne_u32 vcc, 0, v9")
        g(f"s_cbranch_vccz {D}")
        g(f"s_sub_u32 s{S_CNT}, s{S_CNT}, 1")
        g(f"s_cbranch_scc0 {L}")
        g.label(D)
        self.stamp("mod")
        g(f"v_add_u32 v9, {L_SG}, v8")
        g(f"v_cndmask_b32 v10, 0, 1.0, s[{S_HALF}:{S_HALF+1}]")
        for i in range(5):
            b = 60 + 4 * (i % 2)
            self.unpack(b, b + 1, X + 4*i); self.unpack(b + 2, b + 3, X + 4*i + 2)
            if i >= 2:
                add = "v10" if i == 2 else "1.0"
                for k in range(4): g(f"v_add_f32 v{b+k}, {add}, v{b+k}")
                g(f"v_cvt_pk_bf16_f32 v{b}, v{b}, v{b+1}")
                g(f"v_cvt_pk_bf16_f32 v{b+2}, v{b+2}, v{b+3}")
                g(f"v_and_b32 v{b+1}, 0xffff0000, v{b}"); g(f"v_lshlrev_b32 v{b}, 16, v{b}")
                g(f"v_and_b32 v{b+3}, 0xffff0000, v{b+2}"); g(f"v_lshlrev_b32 v{b+2}, 16, v{b+2}")
            g(f"ds_write_b128 v9, v[{b}:{b+3}] offset:{1024*i}")
        if cfg["fast"]:
            g(f"v_cmp_ne_u32 vcc, s{S_TMP+4}, v15")
            g("s_cmp_eq_u64 vcc, 0")
            g(f"s_cselect_b32 s{S_FAST}, 1, 0")
            g(f"v_mov_b32 v14, s{S_FAST}")
            g(f"v_mov_b32 v15, {L_FAST}")
            g("ds_write_b32 v15, v14")
        g("v_lshlrev_b32 v9, 5, v3")
        g(f"v_add_u32 v9, {L_SG}, v9")
        g("v_lshlrev_b32 v10, 8, v3")
        g("v_lshl_add_u32 v10, v2, 4, v10")
        g(f"s_lshl_b32 s{S_TMP}, s{S_RB}, 3")
        g(f"s_add_u32 s{S_TMP}, s{S_TMP}, s{S_CQ}")
        g(f"s_mul_i32 s{S_TMP}, s{S_TMP}, 20480")
        g(f"s_lshl_b32 s{S_TMP+1}, s{S_RH}, 7")
        g(f"s_add_u32 s{S_TMP}, s{S_TMP}, s{S_TMP+1}")
        g(f"s_add_u32 s{S_TMP}, s{S_TMP}, {WS_H}")
        g.wait_lg(0)
        def rd(i):
            b = 160 + 16 * (i % 3)
            g(f"ds_read_b128 v[{b}:{b+3}], v9 offset:{256*i}")
            g(f"ds_read_b128 v[{b+4}:{b+7}], v9 offset:{256*i+16}")
            g(f"ds_read_b128 v[{b+8}:{b+11}], v9 offset:{2560+256*i}")
            return g(f"ds_read_b128 v[{b+12}:{b+15}], v9 offset:{2560+256*i+16}")
        tk = {0: rd(0), 1: rd(1)}
        for i in range(10):
            if i + 2 < 10: tk[i + 2] = rd(i + 2)
            b = 160 + 16 * (i % 3)
            g.wait(tk[i])
            for e in range(0, 8, 2):
                g(f"v_pk_fma_f32 v[{Z+8*i+e}:{Z+8*i+e+1}], v[{Z+8*i+e}:{Z+8*i+e+1}], v[{b+8+e}:{b+9+e}], v[{b+e}:{b+e+1}]")
            for e in range(4):
                g(f"v_cvt_pk_bf16_f32 v{X+4*i+e}, v{Z+8*i+2*e}, v{Z+8*i+2*e+1}")
            g(f"buffer_store_dwordx4 v[{X+4*i}:{X+4*i+3}], v10, s[{R_WS}:{R_WS+3}], s{S_TMP} offen offset:{2048*(i%2)} {self.SC}")
            if i % 2 == 1 and i < 9: g(f"s_add_u32 s{S_TMP}, s{S_TMP}, 4096")
        self.publish(F_H, S_T0, 8, 9)
        self.stamp("hpub")
        self.qkv_regs()
        g("s_branch L_p0_join")
        g.label("L_p0_dma")
        g.restore(snap)
        self.srd(R_A, P_WQKV, 640 * 3840)
        self.tile_regs(210, 5, 10, km["nat"], 3840, seg=(5, 1200), add=1280)
        g(f"s_mul_i32 s{S_TMP}, s{S_J}, 80")
        g(f"s_sub_u32 s{S_TMP+1}, s{S_W}, 1")
        g(f"s_mul_i32 s{S_TMP+2}, s{S_TMP+1}, {32*3840}")
        g(f"s_add_u32 s{S_TMP+2}, s{S_TMP+2}, s{S_TMP}")
        g(f"s_mul_i32 s{S_TMP+3}, s{S_TMP+1}, 5120")
        npre = cfg["kv_pre"]
        for it in range((npre + 2) // 3):
            rem = npre - 3 * it
            if rem < 3:
                g(f"s_cmp_gt_u32 s{S_W}, {rem}")
                g("s_cbranch_scc1 L_p0_kvdone")
            items, toks = self.dma_items(range(210, 215), R_A, S_TMP + 2, S_TMP + 3, L_WKV + it * 15360, step_after=3*32*3840)
            for f in items:
                f()
                if len(g.vm) > cfg["kv_depth"]: g.wait_vm(cfg["kv_depth"])
        g.label("L_p0_kvdone")
        self.make_tags()
        self.tile_regs(215, 5, 5, km["q"], 3840)
        g.label("L_p0_join")
        g.forget()
    def qkv_regs(self):
        km = self.kmaps()
        self.srd(R_A, P_WQKV, 640 * 3840)
        self.tile_regs(210, 5, 10, km["nat"], 3840, seg=(5, 1200), add=1280)
        self.tile_regs(215, 5, 5, km["q"], 3840)

    def gemm16(self, nsteps, ntile, acc, abuf, rd_addr, bfrag, pacer=None, hooks=None, btok=None):
        g = self.g
        hooks = hooks or {}
        def reads(s):
            out = []
            for t in range(ntile):
                for hi in range(2):
                    va, imm = rd_addr(s, t, hi)
                    d = abuf + (s % 2) * 4 * ntile + 4 * t + 2 * hi
                    out.append(f"ds_read_b64_tr_b16 v[{d}:{d+1}], v{va} offset:{imm}")
            return out
        if 0 in hooks: hooks[0]()
        cur = [g(r) for r in reads(0)]
        for s in range(nsteps):
            nxt = []
            if s + 1 < nsteps:
                if s + 1 in hooks: hooks[s + 1]()
                nxt = reads(s + 1)
            new = []
            if pacer: pacer.step = s
            if btok is not None:
                la = min(s + self.cfg["la"], nsteps - 1)
                while (la not in btok or len(btok[la]) < 2) and pacer.items[0][2] <= s: pacer.force(1)
                while s not in btok or len(btok[s]) < 2: pacer.force(1)
                g.wait(btok[s][-1], cur[min(5, len(cur) - 1)])
            for t in range(ntile):
                if t == 0 and btok is None: g.wait(cur[min(5, len(cur) - 1)])
                if t == 3: g.wait(cur[-1])
                for Tp in range(2):
                    A = abuf + (s % 2) * 4 * ntile + 4 * t
                    D = acc + (Tp * ntile + t) * 4
                    C = "0" if s == 0 else f"v[{D}:{D+3}]"
                    g(f"v_mfma_f32_16x16x32_bf16 v[{D}:{D+3}], v[{A}:{A+3}], {bfrag(s, Tp)}, {C}")
                    if nxt: new.append(g(nxt.pop(0)))
                    if pacer: pacer.tick(16, s)
            for r in nxt: new.append(g(r))
            cur = new
    def bitems(self, pacer, nsteps, so0, ntiles=2, cost=72):
        g = self.g
        btok = {}
        for s_ in range(nsteps):
            for Tp in range(ntiles):
                def f(s_=s_, Tp=Tp):
                    d = (Tp * nsteps + s_) * 4
                    t = g(f"buffer_load_dwordx4 a[{d}:{d+3}], v2, s[{R_WS}:{R_WS+3}], s{so0+Tp} offen offset:{1024*(s_%4)} sc1")
                    btok.setdefault(s_, []).append(t)
                    if s_ % 4 == 3 and s_ < nsteps - 1: g(f"s_add_u32 s{so0+Tp}, s{so0+Tp}, 4096")
                pacer.add(f, cost)
        return btok

    def p1(self):
        g = self.g
        cfg = self.cfg
        SB0 = S_TMP + 14
        g("v_lshlrev_b32 v2, 4, v1")
        g(f"s_lshl_b32 s{SB0}, s{S_RB}, 2")
        g(f"s_add_u32 s{SB0}, s{SB0}, s{S_W}")
        g(f"s_mul_i32 s{SB0}, s{SB0}, 40960")
        g(f"s_add_u32 s{SB0}, s{SB0}, {WS_H}")
        g(f"s_add_u32 s{SB0+1}, s{SB0}, 20480")
        g("v_lshrrev_b32 v3, 2, v1")
        g("v_and_b32 v4, 3, v1")
        g("v_mul_u32_u24 v5, 160, v3")
        g("v_lshl_add_u32 v5, v4, 3, v5")
        g("v_add_u32 v6, 51200, v5")
        g("v_and_b32 v7, 7, v3")
        g("v_lshlrev_b32 v7, 1, v7")
        g("v_lshrrev_b32 v8, 5, v1")
        g("v_add_u32 v7, v7, v8")
        g("v_mul_u32_u24 v7, 80, v7")
        g("v_lshl_add_u32 v7, v4, 3, v7")
        g(f"v_add_u32 v7, {L_WQ}, v7")
        g("v_lshrrev_b32 v8, 4, v1")
        g("v_and_b32 v9, 15, v1")
        g(f"s_lshl_b32 s{S_TMP}, s{S_W}, 5")
        g(f"v_add_u32 v9, s{S_TMP}, v9")
        g("v_mul_u32_u24 v9, 48, v9")
        for t in range(5):
            g(f"v_add_u32 v18, {4*t}, v8")
            self.divmod_const(19, 20, 18, 5)
            g("v_mul_u32_u24 v21, 18432, v19")
            g("v_lshl_add_u32 v21, v20, 3, v21")
            g("v_add_u32 v21, v21, v9")
            g(f"v_add_u32 v{10+t}, {L_KVB + 12288}, v21")
            if t < 3:
                if t == 2:
                    g("v_min_u32 v21, 1, v20")
                    g(f"v_cmp_lt_u32 s[{S_TMP+2}:{S_TMP+3}], 1, v19")
                    g(f"v_cndmask_b32 v19, v19, v21, s[{S_TMP+2}:{S_TMP+3}]")
                    g(f"v_cndmask_b32 v20, v20, 5, s[{S_TMP+2}:{S_TMP+3}]")
                g("v_mul_u32_u24 v19, 6144, v19")
                g("v_lshl_add_u32 v19, v20, 3, v19")
                g("v_add_u32 v19, v19, v9")
                g(f"v_add_u32 v{15+t}, {L_QB}, v19")
        npre = cfg["kv_pre"]
        SO, SL, SQ = S_TMP + 12, S_TMP + 13, S_TMP + 16
        g(f"s_mul_i32 s{S_TMP}, s{S_J}, 80")
        g(f"s_add_u32 s{SO}, s{S_W}, {npre}")
        g(f"s_mul_i32 s{SO}, s{SO}, {32*3840}")
        g(f"s_add_u32 s{SO}, s{SO}, s{S_TMP}")
        g(f"s_mul_i32 s{SL}, s{S_W}, 5120")
        g(f"s_mul_i32 s{SQ}, s{S_W}, {64*3840}")
        g(f"s_add_u32 s{SQ}, s{SQ}, s{S_TMP}")
        self.flag_off(S_TMP, F_H)
        g("v_and_b32 v3, 3, v1")
        g(f"s_lshl_b32 s{S_TMP+1}, s{S_W}, 2")
        g(f"v_add_u32 v3, s{S_TMP+1}, v3")
        g("v_lshlrev_b32 v3, 4, v3")
        self.poll(3, S_TMP, S_T0, 4)
        self.stamp("hseen")
        pc = Pacer()
        if cfg["fast"]:
            self.barrier()
            g(f"v_mov_b32 v3, {L_FAST}")
            g("ds_read_b32 v4, v3")
            g(f"v_readfirstlane_b32 s{S_FAST}, v4")
            self.acquire()
        btok = self.bitems(pc, 20, SB0)
        pc.force(2 * cfg["lb"])
        if not cfg["fast"]: self.barrier()
        rest = (20 - npre + 3) // 4
        assert (20 - npre) % 4 == 0
        bl = pc.items; pc.items = []
        wk = []
        wtoks = []
        for it in range(rest):
            items, toks = self.dma_items(range(210, 215), R_A, SO, SL, L_WKV + (npre + 4 * it) * 5120, step_after=4*32*3840)
            wk.append(items); wtoks.append(toks)
        order = []
        wpos = [max(0, 2 * (npre + 4 * it - 9) - 2 * cfg["lb"]) for it in range(rest)]
        for i, b in enumerate(bl):
            for it in range(rest):
                if wpos[it] == i: order += [(f, 150, -1) for f in wk[it]]
            order.append(b)
        qtoks = []
        for it in range(3):
            items, toks = self.dma_items(range(215, 220), R_A, SQ, SL, L_WQ + it * 20480, step_after=4*64*3840)
            order += [(f, 110, -1) for f in items]; qtoks.append(toks)
        pc.items = order
        hooks = {}
        for it in range(rest):
            def h(it=it):
                while len(wtoks[it]) < 5: pc.force(1)
                g.wait(wtoks[it][-1])
                self.barrier()
            hooks[npre + 4 * it] = h
        ACC, AB = 40, 80
        self.gemm16(20, 5, ACC, AB,
                    lambda s_, t, hi: (5 if s_ < 10 else 6, (s_ % 10) * 5120 + hi * 2560 + 32 * t),
                    lambda s_, Tp: a_((Tp * 20 + s_) * 4, 4), pacer=pc, hooks=hooks, btok=btok)
        self.stamp("kvgemm")
        cv = []
        for Tp in range(2):
            for t in range(5):
                D = ACC + (Tp * 5 + t) * 4
                g(f"v_cvt_pk_bf16_f32 v{D}, v{D}, v{D+1}")
                g(f"v_cvt_pk_bf16_f32 v{D+1}, v{D+2}, v{D+3}")
        g("v_and_b32 v18, 127, v0")
        g("v_mul_u32_u24 v18, 48, v18")
        g("v_lshrrev_b32 v19, 7, v0")
        g("v_mul_u32_u24 v19, 18432, v19")
        g("v_add_u32 v18, v18, v19")
        g("v_mov_b32 v20, 0x3f800000"); g("v_mov_b32 v21, 0x3f803f80"); g("v_mov_b32 v22, 0x3f803f80"); g("v_mov_b32 v23, 0x3f803f80")
        self.barrier()
        for Tp in range(2):
            for t in range(5):
                D = ACC + (Tp * 5 + t) * 4
                g(f"ds_write_b64 v{10+t}, v[{D}:{D+1}] offset:{768*Tp}")
        g(f"ds_write_b64 v18, v[20:21] offset:{L_KVB + 12288 + 40}")
        g(f"ds_write_b64 v18, v[22:23] offset:{L_KVB + 36864 + 12288 + 40}")
        g(f"s_cmp_ge_u32 s{S_RB}, 2")
        g("s_cbranch_scc1 L_noinv")
        g(f"v_mov_b32 v20, {hx(0x3f800000 | (NEG_BIG >> 16))}")
        g(f"ds_write_b64 v18, v[20:21] offset:{L_KVB + 40}")
        g(f"s_cmp_ge_u32 s{S_RB}, 1")
        g("s_cbranch_scc1 L_noinv")
        g(f"ds_write_b64 v18, v[20:21] offset:{L_KVB + 6144 + 40}")
        g.label("L_noinv")
        g(f"s_mul_i32 s{S_TMP}, s{S_W}, 18432")
        g(f"s_add_u32 s{S_TMP}, s{S_TMP}, {L_KVB + 12288}")
        g(f"v_add_u32 v18, s{S_TMP}, v2")
        g(f"s_lshl_b32 s{S_TMP}, s{S_RB}, 4")
        g(f"s_add_u32 s{S_TMP}, s{S_TMP}, s{S_J}")
        g(f"s_lshl_b32 s{S_TMP}, s{S_TMP}, 2")
        g(f"s_add_u32 s{S_TMP}, s{S_TMP}, s{S_W}")
        g(f"s_mul_i32 s{S_TMP+10}, s{S_TMP}, 6144")
        g(f"s_add_u32 s{S_TMP+10}, s{S_TMP+10}, {WS_KV}")
        g(f"s_add_u32 s{S_TMP+1}, s{S_TMP+10}, 4096")
        g.wait_lg(0)
        self.barrier()
        for i in range(6):
            g(f"ds_read_b128 v[{ACC+4*i}:{ACC+4*i+3}], v18 offset:{1024*i}")
        for i in range(6):
            so = S_TMP + 10 if i < 4 else S_TMP + 1
            sttok = g(f"buffer_store_dwordx4 v[{ACC+4*i}:{ACC+4*i+3}], v2, s[{R_WS}:{R_WS+3}], s{so} offen offset:{(1024*i) % 4096} sc1")
        self.stamp("kvst")
        QACC = 120
        def flags():
            self.stamp("q9")
            g.wait(sttok)
            self.stamp("kvdrain")
            keep = list(g.vm)
            sc = self.SC; self.SC = "sc1"
            L1 = g.newlabel("Lnf")
            g(f"s_cmp_ge_u32 s{S_RB}, 15")
            g(f"s_cbranch_scc1 {L1}")
            self.send_flag(F_KV1, S_T1, 18, 19, 1)
            g(f"s_cmp_ge_u32 s{S_RB}, 14")
            g(f"s_cbranch_scc1 {L1}")
            self.send_flag(F_KV2, S_T2, 18, 19, 2)
            g.label(L1)
            g.vm = keep
            self.SC = sc
        hooks = {cfg["kvflag_step"]: flags}
        for it in range(3):
            def h(it=it):
                while len(qtoks[it]) < 5: pc.force(1)
                g.wait(qtoks[it][-1])
                self.barrier()
            assert 8 * it not in hooks
            hooks[8 * it] = h
        pc.free = pc.t
        self.gemm16(20, 3, QACC, AB,
                    lambda s_, t, hi: (7, s_ * 2560 + hi * 1280 + 32 * t),
                    lambda s_, Tp: a_((Tp * 20 + s_) * 4, 4), pacer=pc, hooks=hooks)
        g(f"s_mov_b32 s{S_TMP}, {hx(fbits(QSCALE))}")
        for Tp in range(2):
            for t in range(3):
                D = QACC + (Tp * 3 + t) * 4
                for k in range(4): g(f"v_mul_f32 v{D+k}, s{S_TMP}, v{D+k}")
                g(f"v_cvt_pk_bf16_f32 v{D}, v{D}, v{D+1}")
                g(f"v_cvt_pk_bf16_f32 v{D+1}, v{D+2}, v{D+3}")
                g(f"ds_write_b64 v{15+t}, v[{D}:{D+1}] offset:{768*Tp}")
        self.stamp("qgemm")

    def p2(self):
        g = self.g
        cfg = self.cfg
        km = self.kmaps()
        BD, BF, S0, S1, O0, O1, P, VF, QF = 24, 40, 56, 72, 88, 104, 120, 128, 144
        XR, WA = 160, 170
        g("v_and_b32 v4, 31, v1")
        g("v_lshrrev_b32 v5, 5, v1")
        g("v_lshlrev_b32 v6, 2, v5")
        g("v_sub_u32 v6, v4, v6")
        g(f"v_mov_b32 v7, {hx(NEG_BIG)}")
        for r in range(16):
            kk = 8 * (r >> 2) + (r & 3)
            sp = S_TMP + 2 + 2 * (r % 4)
            g(f"v_cmp_le_i32 s[{sp}:{sp+1}], {kk}, v6")
            if r % 4 == 3:
                for r2 in range(r - 3, r + 1):
                    sp = S_TMP + 2 + 2 * (r2 % 4)
                    g(f"v_cndmask_b32 v{BD+r2}, v7, 0, s[{sp}:{sp+1}]")
                    g(f"v_cndmask_b32 v{BF+r2}, 0, v7, s[{sp}:{sp+1}]")
        self.tile_regs(WA, 5, 10, km["nat"], 1280)
        g(f"s_lshl_b32 s{S_TMP}, s{S_W}, 5")
        g(f"v_add_u32 v8, s{S_TMP}, v4")
        g("v_mul_u32_u24 v8, 48, v8")
        g("v_lshl_add_u32 v9, v5, 4, v8")
        g("v_lshl_add_u32 v10, v5, 3, v8")
        g("v_add_u32 v10, 32, v10")
        g(f"v_add_u32 v12, {L_QB}, v9")
        g(f"v_add_u32 v13, {L_QB}, v10")
        g("v_bfe_u32 v11, v1, 2, 2")
        g("v_lshl_add_u32 v11, v5, 2, v11")
        g(f"v_add_u32 v11, s{S_TMP}, v11")
        g("v_mul_u32_u24 v11, 48, v11")
        g("v_bfe_u32 v14, v1, 4, 1")
        g("v_lshl_add_u32 v11, v14, 5, v11")
        g("v_and_b32 v14, 3, v1")
        g("v_lshl_add_u32 v11, v14, 3, v11")
        g(f"v_add_u32 v11, {L_KVB + 36864}, v11")
        g.wait_lg(0)
        for u in range(2):
            g(f"ds_read_b128 v[{QF+8*u}:{QF+8*u+3}], v12 offset:{6144*u}")
            g(f"ds_read_b64 v[{QF+8*u+4}:{QF+8*u+5}], v13 offset:{6144*u}")
        g("v_mov_b32 v14, 0x3f80")
        for u in range(2):
            g(f"v_cndmask_b32 v{QF+8*u+4}, v{QF+8*u+4}, v14, s[{S_HALF}:{S_HALF+1}]")
            g(f"v_cndmask_b32 v{QF+8*u+5}, v{QF+8*u+5}, 0, s[{S_HALF}:{S_HALF+1}]")
        g("v_min_u32 v3, 19, v1")
        g("v_lshlrev_b32 v3, 4, v3")
        g(f"s_mul_i32 s{S_TMP}, s{S_RB}, 15360")
        g(f"s_mul_i32 s{S_TMP+1}, s{S_W}, 2560")
        g(f"s_add_u32 s{S_TMP}, s{S_TMP}, s{S_TMP+1}")
        g(f"s_mul_i32 s{S_TMP+1}, s{S_CQ}, 320")
        g(f"s_add_u32 s{S_TMP}, s{S_TMP}, s{S_TMP+1}")
        g(f"s_add_u32 s{S_TMP}, s{S_TMP}, {WS_MOD + 5120}")
        L = g.newlabel("Lv"); D = g.newlabel("Lvd")
        g(f"s_mov_b32 s{S_CNT}, {POLL_MAX}")
        g.label(L)
        g(f"buffer_load_dwordx4 v[16:19], v3, s[{R_WS}:{R_WS+3}], s{S_TMP} offen sc1")
        g.wait_vm(0)
        g(f"v_xor_b32 v12, s{S_T0}, v17")
        g(f"v_xor_b32 v13, s{S_T0}, v19")
        g("v_or_b32 v12, v12, v13")
        g("v_cmp_ne_u32 vcc, 0, v12")
        g(f"s_cbranch_vccz {D}")
        g(f"s_sub_u32 s{S_CNT}, s{S_CNT}, 1")
        g(f"s_cbranch_scc0 {L}")
        g.label(D)
        g(f"s_cmp_eq_u32 s{S_W}, 2")
        g(f"s_cselect_b32 s{S_TMP+2}, 1.0, 0")
        g(f"s_mov_b32 s{S_TMP+3}, {hx(fbits(NLOG2E))}")
        g(f"s_cmp_eq_u32 s{S_W}, 0")
        g(f"s_cselect_b32 s{S_TMP+3}, 1.0, s{S_TMP+3}")
        g(f"s_cmp_eq_u32 s{S_W}, 3")
        g(f"s_cselect_b32 s{S_TMP+3}, {hx(fbits(1/NLOG2E))}, s{S_TMP+3}")
        self.unpack(12, 13, 16); self.unpack(14, 15, 18)
        for k in range(12, 16): g(f"v_add_f32 v{k}, s{S_TMP+2}, v{k}")
        g("v_cvt_pk_bf16_f32 v16, v12, v13")
        g("v_cvt_pk_bf16_f32 v18, v14, v15")
        self.unpack(12, 13, 16); self.unpack(14, 15, 18)
        for k in range(12, 16): g(f"v_mul_f32 v{k}, s{S_TMP+3}, v{k}")
        g(f"s_mul_i32 s{S_TMP+2}, s{S_W}, 320")
        g(f"s_add_u32 s{S_TMP+2}, s{S_TMP+2}, {L_VEC}")
        g(f"v_add_u32 v3, s{S_TMP+2}, v3")
        g("ds_write_b128 v3, v[12:15]")
        self.stamp("prehalo")
        g(f"s_cmp_eq_u32 s{S_RB}, 0")
        g("s_cbranch_scc1 L_nohalo")
        self.flag_off(S_TMP, F_KV1)
        g(f"s_cmp_ge_u32 s{S_RB}, 2")
        g(f"s_cselect_b32 s{S_TMP+1}, 4096, 0")
        g("v_and_b32 v3, 1, v1")
        g(f"v_mul_lo_u32 v3, v3, s{S_TMP+1}")
        g(f"s_lshl_b32 s{S_TMP+1}, s{S_J}, 4")
        g(f"s_lshl_b32 s{S_TMP+2}, s{S_W}, 2")
        g(f"s_add_u32 s{S_TMP+1}, s{S_TMP+1}, s{S_TMP+2}")
        g(f"v_add_u32 v3, s{S_TMP+1}, v3")
        g(f"s_mul_i32 s{S_TMP+1}, s{S_W}, 18432")
        g(f"s_sub_u32 s{S_TMP+2}, s{S_TMP+10}, {64*6144}")
        g(f"s_add_u32 s{S_TMP+3}, s{S_TMP+2}, 4096")
        self.poll(3, S_TMP, S_T0, 12)
        def halo(blk):
            for i in range(6):
                if i % 4 == 0: g(f"s_add_u32 m0, s{S_TMP+1}, {L_KVB + 6144*blk + 1024*i}")
                g(f"buffer_load_dwordx4 v2, s[{R_WS}:{R_WS+3}], s{S_TMP+2+i//4} offen offset:{1024*(i%4)} sc1 lds")
        halo(1)
        g(f"s_cmp_eq_u32 s{S_RB}, 1")
        g("s_cbranch_scc1 L_nohalo")
        g(f"s_sub_u32 s{S_TMP+2}, s{S_TMP+10}, {128*6144}")
        g(f"s_add_u32 s{S_TMP+3}, s{S_TMP+2}, 4096")
        halo(0)
        g.label("L_nohalo")
        g.forget_vm()
        self.stamp("haloseen")
        self.srd(R_A, P_X, 2048 * 1280)
        self.srd(R_B, P_WO, 640 * 1280)
        g("v_and_b32 v12, 15, v1")
        g("v_mul_u32_u24 v12, 1280, v12")
        g("v_lshrrev_b32 v13, 4, v1")
        g("v_lshl_add_u32 v12, v13, 3, v12")
        g(f"s_lshl_b32 s{S_TMP+11}, s{S_RB}, 1")
        g(f"s_add_u32 s{S_TMP+11}, s{S_TMP+11}, s{S_RH}")
        g(f"s_lshl_b32 s{S_TMP+11}, s{S_TMP+11}, 2")
        g(f"s_add_u32 s{S_TMP+11}, s{S_TMP+11}, s{S_W}")
        g(f"s_mul_i32 s{S_TMP+11}, s{S_TMP+11}, {16*1280}")
        g(f"s_mul_i32 s{S_TMP+1}, s{S_CQ}, 160")
        g(f"s_add_u32 s{S_TMP+11}, s{S_TMP+11}, s{S_TMP+1}")
        SO, SL = S_TMP + 12, S_TMP + 13
        g(f"s_mul_i32 s{SO}, s{S_W}, {32*1280}")
        g(f"s_add_u32 s{SO}, s{SO}, s{S_TMP+1}")
        g(f"s_mul_i32 s{SL}, s{S_W}, 5120")
        g("s_waitcnt vmcnt(0) lgkmcnt(0)")
        self.barrier()
        self.stamp("attn0")
        pc = Pacer()
        for t in range(5):
            pc.add(lambda t=t: g(f"buffer_load_dwordx2 v[{XR+2*t}:{XR+2*t+1}], v12, s[{R_A}:{R_A+3}], s{S_TMP+11} offen offset:{32*t}"), 200)
        for it in range(4):
            items, _ = self.dma_items(range(WA, WA + 5), R_B, SO, SL, L_WO_E + it * 20480, step_after=4*32*1280)
            for f in items: pc.add(f, 130)
        ntouch = cfg["touch_gu"]
        if ntouch:
            g(f"s_cmp_lt_u32 s{S_W}, 2")
            g(f"s_cselect_b32 s{R_T}, s{P_WG}, s{P_WU}")
            g(f"s_cselect_b32 s{R_T+1}, s{P_WG+1}, s{P_WU+1}")
            g(f"s_mov_b32 s{R_T+2}, {640*3072}")
            g(f"s_mov_b32 s{R_T+3}, 0x20000")
            g("v_lshrrev_b32 v16, 1, v1")
            g(f"v_mul_u32_u24 v16, {4*3072}, v16")
            g("v_and_b32 v17, 1, v1")
            g("v_lshl_add_u32 v16, v17, 7, v16")
            g(f"s_and_b32 s{S_TMP}, s{S_RB}, 1")
            g(f"s_lshl_b32 s{S_TMP}, s{S_TMP}, 1")
            g(f"s_add_u32 s{S_TMP}, s{S_TMP}, s{S_KH}")
            g(f"s_mul_i32 s{S_TMP}, s{S_TMP}, 3072")
            g(f"s_mul_i32 s{S_TMP+1}, s{S_J}, 192")
            g(f"s_and_b32 s{S_TMP+1}, s{S_TMP+1}, 0xffffff80")
            g(f"s_add_u32 s{S_TMP+16}, s{S_TMP}, s{S_TMP+1}")
            for i in range(min(ntouch, 5)):
                def f(i=i):
                    g(f"buffer_load_dword v18, v16, s[{R_T}:{R_T+3}], s{S_TMP+16} offen")
                    g.vm[-1].dst = set()
                    g(f"s_add_u32 s{S_TMP+16}, s{S_TMP+16}, {128*3072}")
                pc.add(f, 500)
        S2 = 176
        SB = [S0, S1]
        def kread(u, tau):
            g(f"ds_read_b128 a[{8*tau}:{8*tau+3}], v9 offset:{L_KVB + 18432*u + 1536*tau}")
            return g(f"ds_read_b64 a[{8*tau+4}:{8*tau+5}], v10 offset:{L_KVB + 18432*u + 1536*tau}")
        def qk_a(u, tau):
            Sx = SB[tau % len(SB)]
            C = v(BF, 16) if tau == 0 else v(BD, 16) if tau == 8 else "0"
            g(f"v_mfma_f32_32x32x16_bf16 v[{Sx}:{Sx+15}], a[{8*tau}:{8*tau+3}], v[{QF+8*u}:{QF+8*u+3}], {C}")
        def qk_b(u, tau):
            Sx = SB[tau % len(SB)]
            g(f"v_mfma_f32_32x32x8_bf16 v[{Sx}:{Sx+15}], a[{8*tau+4}:{8*tau+5}], v[{QF+8*u+4}:{QF+8*u+5}], v[{Sx}:{Sx+15}]")
        def vread(u, tau):
            b = VF + 8 * (tau % 2)
            return [f"ds_read_b64_tr_b16 v[{b+4*kp+2*rd}:{b+4*kp+2*rd+1}], v11 offset:{18432*u + 1536*tau + 768*kp + 384*rd}"
                    for kp in range(2) for rd in range(2)]
        for u in range(2):
            O = (O0, O1)[u]
            kt = {}
            SB[:] = [S0, S1, S2]
            for tau in range(4): kt[tau] = kread(u, tau)
            g.wait(kt[1])
            qk_a(u, 0); kt[4] = kread(u, 4); qk_b(u, 0)
            qk_a(u, 1); kt[5] = kread(u, 5); qk_b(u, 1)
            def mx(tau, ks):
                Sx = (S0, S1, S2)[tau % 3]
                for k in ks:
                    m = 6 + (k & 1)
                    if tau == 0 and k < 2: g(f"v_max_f32 v{m}, v{Sx+2*k}, v{Sx+2*k+1}")
                    else: g(f"v_max3_f32 v{m}, v{Sx+2*k}, v{Sx+2*k+1}, v{m}")
            for tau in range(9):
                if tau + 2 < 9:
                    if tau % 2 == 0: g.wait(kt[min(tau + 3, 8)])
                    qk_a(u, tau + 2)
                    if tau + 6 < 9: kt[tau + 6] = kread(u, tau + 6)
                    else: pc.tick(64, 0)
                    mx(tau, range(0, 4))
                    qk_b(u, tau + 2)
                    mx(tau, range(4, 8))
                elif tau == 7:
                    SB[:] = [S0, S1]
                    qk_a(u, 0)
                    for r in vread(u, 0): g(r)
                    mx(tau, range(8))
                else:
                    mx(tau, range(8))
            g("v_max_f32 v6, v6, v7")
            g("v_mov_b32 v7, v6")
            g("v_permlane32_swap_b32 v6, v7")
            g("v_max_f32 v6, v6, v7")
            g("v_sub_f32 v6, 0, v6")
            g("v_and_b32 v7, 0xffff0000, v6")
            g("v_sub_f32 v6, v6, v7")
            g("v_or_b32 v7, 0x3f80, v7")
            g("v_and_b32 v15, 0xffff0000, v6")
            g("v_sub_f32 v6, v6, v15")
            g("v_lshrrev_b32 v15, 16, v15")
            g("v_and_b32 v6, 0xffff0000, v6")
            g("v_or_b32 v6, v6, v15")
            g(f"v_cndmask_b32 v{QF+8*u+4}, v{QF+8*u+4}, v7, s[{S_HALF}:{S_HALF+1}]")
            g(f"v_cndmask_b32 v{QF+8*u+5}, v{QF+8*u+5}, v6, s[{S_HALF}:{S_HALF+1}]")
            qk_b(u, 0)
            qk_a(u, 1)
            def pv(tau, kp):
                b = VF + 8 * (tau % 2) + 4 * kp
                C = "0" if (tau == 0 and kp == 0) else v(O, 16)
                g(f"v_mfma_f32_32x32x16_bf16 v[{O}:{O+15}], v[{b}:{b+3}], v[{P+4*kp}:{P+4*kp+3}], {C}")
            for tau in range(9):
                Sx = SB[tau % 2]
                vr_ = vread(u, tau + 1) if tau + 1 < 9 else []
                def ex(k0):
                    for k in range(k0, k0 + 4): g(f"v_exp_f32 v{Sx+k}, v{Sx+k}")
                def cv(k0):
                    for k in (k0, k0 + 2): g(f"v_cvt_pk_bf16_f32 v{P+k//2}, v{Sx+k}, v{Sx+k+1}")
                if tau > 0: pv(tau - 1, 1)
                ex(0)
                pc.tick(52, 0)
                if tau + 1 < 9: qk_b(u, tau + 1)
                ex(4); cv(0); cv(4)
                g.wait_lg(0)
                pc.tick(52, 0)
                pv(tau, 0)
                for r in vr_: g(r)
                ex(8)
                pc.tick(52, 0)
                ex(12)
                cv(8); cv(12)
                if tau + 2 < 9: qk_a(u, tau + 2)
                pc.tick(52, 0)
            pv(8, 1)
        pc.drain()
        E = 56
        g("v_bfe_u32 v16, v1, 4, 1")
        g("v_mul_u32_u24 v16, 20480, v16")
        g("v_and_b32 v7, 15, v1")
        g("v_lshl_add_u32 v16, v7, 4, v16")
        g("v_lshl_add_u32 v16, v5, 8, v16")
        g(f"s_lshl_b32 s{S_TMP}, s{S_RB}, 2")
        g(f"s_add_u32 s{S_TMP}, s{S_TMP}, s{S_W}")
        g(f"s_mul_i32 s{S_TMP}, s{S_TMP}, 40960")
        g(f"s_mul_i32 s{S_TMP+1}, s{S_J}, 1280")
        g(f"s_add_u32 s{S_TMP}, s{S_TMP}, s{S_TMP+1}")
        g(f"s_add_u32 s{S_TMP}, s{S_TMP}, {WS_O}")
        for u in range(2):
            O = (O0, O1)[u]
            g(f"v_mov_b32 v6, v{O+8}")
            g(f"v_mov_b32 v7, v{O+8}")
            g("v_permlane32_swap_b32 v6, v7")
            g("v_rcp_f32 v7, v7")
            for k in range(12): g(f"v_mul_f32 v{O+k}, v{O+k}, v7")
        for (dst, src) in ((E, O0), (E+2, O0+4), (E+4, O0+8), (E+6, O1), (E+8, O1+4), (E+10, O1+8)):
            g(f"v_cvt_pk_bf16_f32 v{dst}, v{src}, v{src+1}")
            g(f"v_cvt_pk_bf16_f32 v{dst+1}, v{src+2}, v{src+3}")
        for k in range(2):
            g(f"v_permlane32_swap_b32 v{E+k}, v{E+2+k}")
            g(f"v_permlane32_swap_b32 v{E+6+k}, v{E+10+k}")
        g(f"buffer_store_dwordx4 v[{E}:{E+3}], v16, s[{R_WS}:{R_WS+3}], s{S_TMP} offen {self.SC}")
        for k in range(2):
            g(f"v_cndmask_b32 v{E+12+k}, v{E+10+k}, v{E+8+k}, s[{S_HALF}:{S_HALF+1}]")
            g(f"v_cndmask_b32 v{E+14+k}, v{E+8+k}, v{E+6+k}, s[{S_HALF}:{S_HALF+1}]")
        g(f"buffer_store_dwordx4 v[{E+12}:{E+15}], v16, s[{R_WS}:{R_WS+3}], s{S_TMP} offen offset:768 {self.SC}")
        g("s_mov_b64 exec, 0xffffffff")
        g(f"buffer_store_dwordx4 v[{E+4}:{E+7}], v16, s[{R_WS}:{R_WS+3}], s{S_TMP} offen offset:512 {self.SC}")
        g("s_mov_b64 exec, -1")
        self.stamp("attn1")
        self.publish(F_O, S_T0, 8, 9)
        self.stamp("opub")

    def poll_half(self, kind):
        super().poll_half(kind)
        self.acquire()
    def bsetup_half(self, ws, nsteps, so0):
        g = self.g
        tile = nsteps * 2 * 1024
        g(f"s_lshl_b32 s{so0}, s{S_RB}, 1")
        g(f"s_add_u32 s{so0}, s{so0}, s{S_RH}")
        g(f"s_lshl_b32 s{so0}, s{so0}, 2")
        g(f"s_add_u32 s{so0}, s{so0}, s{S_W}")
        g(f"s_xor_b32 s{so0+1}, s{so0}, 1")
        g(f"s_mul_i32 s{S_TMP+2}, s{S_KH}, {nsteps*1024}")
        g(f"s_add_u32 s{S_TMP+2}, s{S_TMP+2}, {ws}")
        for i in range(2):
            g(f"s_mul_i32 s{so0+i}, s{so0+i}, {tile}")
            g(f"s_add_u32 s{so0+i}, s{so0+i}, s{S_TMP+2}")
    def gu_setup(self):
        g = self.g
        km = self.kmaps()
        g(f"s_cmp_lt_u32 s{S_W}, 2")
        g(f"s_cselect_b32 s{R_A}, s{P_WG}, s{P_WU}")
        g(f"s_cselect_b32 s{R_A+1}, s{P_WG+1}, s{P_WU+1}")
        g(f"s_mov_b32 s{R_A+2}, {640*3072}")
        g(f"s_mov_b32 s{R_A+3}, 0x20000")
        self.tile_regs(240, 3, 12, km["id"], 3072, T=220)
        SO, SL = S_TMP + 12, S_TMP + 13
        g(f"s_mul_i32 s{SO}, s{S_KH}, {16*3072}")
        g(f"s_mul_i32 s{S_TMP}, s{S_J}, 192")
        g(f"s_add_u32 s{SO}, s{SO}, s{S_TMP}")
        g(f"s_mul_i32 s{SL}, s{S_TP}, 6176")
        g(f"s_mul_i32 s{S_TMP}, s{S_KH}, 3072")
        g(f"s_add_u32 s{SL}, s{SL}, s{S_TMP}")
        self.gu_next = 0
        self.gu_tok = {}
    def gu_chunk_items(self):
        c = self.gu_next; self.gu_next += 1
        items, toks = self.dma_items(range(240, 243), R_A, S_TMP + 12, S_TMP + 13, ((c + 4) % GU_NSLOT) * GU_SLOT, step_after=32*3072)
        self.gu_tok[c] = toks
        return items
    def gu_issue(self, n):
        for _ in range(n):
            for f in self.gu_chunk_items(): f()

    def p3(self):
        g = self.g
        cfg = self.cfg
        XR, WA, X1 = 160, 170, 230
        ACC, AB = 40, 80
        SB0 = S_TMP + 14
        self.barrier()
        items, _ = self.dma_items(range(WA, WA + 5), R_B, S_TMP + 12, S_TMP + 13, 0)
        for f in items: f()
        g("v_lshrrev_b32 v5, 2, v1")
        g("v_mul_u32_u24 v5, 160, v5")
        g("v_and_b32 v6, 3, v1")
        g("v_lshl_add_u32 v20, v6, 3, v5")
        g(f"s_mul_i32 s{S_TMP+2}, s{S_KH}, 51200")
        g(f"s_add_u32 s{S_TMP+2}, s{S_TMP+2}, {L_WO_E}")
        g(f"v_add_u32 v5, s{S_TMP+2}, v20")
        g(f"s_cmp_eq_u32 s{S_KH}, 0")
        g(f"s_cselect_b32 s{S_TMP+2}, {L_WO_E + 30720}, 0")
        g(f"v_add_u32 v6, s{S_TMP+2}, v20")
        g("v_lshrrev_b32 v7, 4, v1")
        g("v_lshlrev_b32 v7, 4, v7")
        g(f"v_add_u32 v7, {L_VEC}, v7")
        GA, S2, G2 = 120, 180, 200
        for t in range(5):
            g(f"ds_read_b128 v[{GA+4*t}:{GA+4*t+3}], v7 offset:{64*t}")
            g(f"ds_read_b128 v[{S2+4*t}:{S2+4*t+3}], v7 offset:{320+64*t}")
        for t in range(5):
            g(f"ds_read_b128 v[{G2+4*t}:{G2+4*t+3}], v7 offset:{640+64*t}")
            g(f"ds_read_b128 a[{200+4*t}:{203+4*t}], v7 offset:{960+64*t}")
        XF = 140
        for i in range(10): self.unpack(XF + 2*i, XF + 2*i + 1, XR + i)
        self.bsetup_half(WS_O, 10, SB0)
        self.gu_setup()
        g.wait_lg(0)
        self.poll_half(F_O)
        self.stamp("oseen")
        pc = Pacer()
        btok = self.bitems(pc, 10, SB0)
        pc.force(2 * cfg["lb"])
        self.gemm16(10, 5, ACC, AB,
                    lambda s_, t, hi: (5, s_ * 5120 + hi * 2560 + 32 * t) if s_ < 6 else (6, (s_ - 6) * 5120 + hi * 2560 + 32 * t),
                    lambda s_, Tp: a_((Tp * 10 + s_) * 4, 4), pacer=pc, btok=btok,
                    hooks={6: self.barrier})
        self.stamp("ogemm")
        self.reduce_halves(ACC, L_RB)
        self.gu_issue(cfg["gu_a"])
        for k in range(20):
            g(f"v_add_f32 v{ACC+k}, v{ACC+k}, v{ACC+20+k}")
            g(f"v_fma_f32 v{XF+k}, v{ACC+k}, v{GA+k}, v{XF+k}")
        for i in range(10):
            g(f"v_cvt_pk_bf16_f32 v{X1+i}, v{XF+2*i}, v{XF+2*i+1}")
        g("v_mov_b32 v5, 0x3f803f80")
        g("v_mov_b32 v8, 0"); g("v_mov_b32 v9, 0")
        for i in range(10):
            g(f"v_dot2_f32_bf16 v8, v{X1+i}, v5, v8")
            g(f"v_dot2_f32_bf16 v9, v{X1+i}, v{X1+i}, v9")
        g("v_and_b32 v12, 15, v1")
        g("v_lshlrev_b32 v12, 4, v12")
        g(f"s_lshl_b32 s{S_TMP}, s{S_RB}, 14")
        g(f"s_lshl_b32 s{S_TMP+1}, s{S_RH}, 2")
        g(f"s_add_u32 s{S_TMP+1}, s{S_TMP+1}, s{S_W}")
        g(f"s_lshl_b32 s{S_TMP+1}, s{S_TMP+1}, 8")
        g(f"s_add_u32 s{S_TMP}, s{S_TMP}, s{S_TMP+1}")
        g(f"s_add_u32 s{S_TMP}, s{S_TMP}, {WS_ST}")
        g(f"s_lshl_b32 s{S_TMP+1}, s{S_CQ}, 11")
        g(f"s_add_u32 s{S_TMP+1}, s{S_TMP+1}, s{S_TMP}")
        self.allreduce2(8, 9, 10, 11, (16, 32))
        g(f"v_mov_b32 v10, s{S_T0}")
        g(f"v_mov_b32 v11, s{S_T0}")
        st = f"buffer_store_dwordx4 v[8:11], v12, s[{R_WS}:{R_WS+3}], s{S_TMP+1} offen"
        if cfg["fast"]:
            self.store_either(st, "0xffff")
        else:
            g("s_mov_b64 exec, 0xffff"); g(st + " sc1"); g("s_mov_b64 exec, -1")
        self.gu_issue(cfg["gu_b"])
        for i in range(10): self.unpack(XF + 2*i, XF + 2*i + 1, X1 + i)
        g("v_lshrrev_b32 v13, 4, v1")
        g("v_lshl_add_u32 v14, v13, 12, v12")
        g("v_bfe_u32 v16, v1, 4, 1")
        g("v_lshlrev_b32 v16, 10, v16")
        g("v_lshrrev_b32 v17, 5, v1")
        g("v_lshl_add_u32 v17, v17, 9, v12")
        g("v_add_u32 v16, v16, v17")
        g("v_add_u32 v17, 4096, v17")
        SH = S_TMP + 4
        g(f"s_lshl_b32 s{SH}, s{S_RB}, 1")
        g(f"s_add_u32 s{SH}, s{SH}, s{S_RH}")
        g(f"s_lshl_b32 s{SH}, s{SH}, 1")
        g(f"s_add_u32 s{SH}, s{SH}, s{S_TP}")
        g(f"s_mul_i32 s{SH}, s{SH}, 40960")
        g(f"s_mul_i32 s{S_TMP+1}, s{S_CQ}, 5120")
        g(f"s_add_u32 s{SH}, s{SH}, s{S_TMP+1}")
        g(f"s_lshl_b32 s{S_TMP+1}, s{S_KH}, 8")
        g(f"s_add_u32 s{SH}, s{SH}, s{S_TMP+1}")
        g(f"s_add_u32 s{SH}, s{SH}, {WS_H2}")
        L = g.newlabel("Ls"); D = g.newlabel("Lsd")
        g(f"s_mov_b32 s{S_CNT}, {POLL_MAX}")
        g.label(L)
        g(f"buffer_load_dwordx4 v[{ACC}:{ACC+3}], v14, s[{R_WS}:{R_WS+3}], s{S_TMP} offen sc1")
        g(f"buffer_load_dwordx4 v[{ACC+4}:{ACC+7}], v14, s[{R_WS}:{R_WS+3}], s{S_TMP} offen offset:2048 sc1")
        g.wait_vm(0)
        g(f"v_xor_b32 v15, s{S_T0}, v{ACC+2}")
        g(f"v_xor_b32 v18, s{S_T0}, v{ACC+6}")
        g("v_or_b32 v15, v15, v18")
        g("v_cmp_ne_u32 vcc, 0, v15")
        g(f"s_cbranch_vccz {D}")
        g(f"s_sub_u32 s{S_CNT}, s{S_CNT}, 1")
        g(f"s_cbranch_scc0 {L}")
        g.label(D)
        self.stamp("stseen")
        g(f"v_add_f32 v8, v{ACC}, v{ACC+4}")
        g(f"v_add_f32 v9, v{ACC+1}, v{ACC+5}")
        self.allreduce2(8, 9, 10, 11, (16, 32))
        self.rstd(8, 9, 10)
        for k in range(20):
            g(f"v_fma_f32 v{XF+k}, v{XF+k}, v9, v8")
            g(f"v_fma_f32 v{XF+k}, v{XF+k}, v{G2+k}, v{S2+k}")
        E = ACC
        self.pack_chunks(XF, E)
        g(f"buffer_store_dwordx4 v[{E}:{E+3}], v16, s[{R_WS}:{R_WS+3}], s{SH} offen {self.SC}")
        g(f"buffer_store_dwordx4 v[{E+4}:{E+7}], v16, s[{R_WS}:{R_WS+3}], s{SH} offen offset:2048 {self.SC}")
        g(f"buffer_store_dwordx4 v[{E+8}:{E+11}], v17, s[{R_WS}:{R_WS+3}], s{SH} offen {self.SC}")
        self.publish(F_H2, S_T0, 8, 9)
        g(f"s_or_b32 s{S_TMP}, s{S_J}, s{S_W}")
        g(f"s_cmp_lg_u32 s{S_TMP}, 0")
        g("s_cbranch_scc1 L_noepoch")
        g(f"s_lshl_b32 s{S_TMP}, s{S_RB}, 2")
        g(f"v_mov_b32 v8, s{S_TMP}")
        g(f"v_mov_b32 v9, s{S_T0}")
        g("s_mov_b64 exec, 1")
        g(f"buffer_store_dword v9, v8, s[{R_WS}:{R_WS+3}], 0 offen sc1")
        g("s_mov_b64 exec, -1")
        g.label("L_noepoch")
        g.forget_vm()
        self.stamp("h2pub")

    def dn_setup(self):
        g = self.g
        km = self.kmaps()
        self.srd(R_B, P_WD, 1536 * 1280)
        self.tile_regs(243, 5, 10, km["act"], 1280, T=220)
        SO, SL = S_TMP + 16, S_TMP + 17
        g(f"s_mul_i32 s{SO}, s{S_KH}, 24")
        g(f"s_add_u32 s{SO}, s{SO}, s{S_TP}")
        g(f"s_mul_i32 s{SO}, s{SO}, {32*1280}")
        g(f"s_mul_i32 s{S_TMP}, s{S_CQ}, 160")
        g(f"s_add_u32 s{SO}, s{SO}, s{S_TMP}")
        g(f"s_mul_i32 s{SL}, s{S_W}, 5120")
        self.dn_next = 0
        self.dn_tok = {}
    def dn_pair_items(self):
        p = self.dn_next; self.dn_next += 1
        items, toks = self.dma_items(range(243, 248), R_B, S_TMP + 16, S_TMP + 17, ((2 * p + 14) % 16) * 10240, step_after=2*32*1280)
        self.dn_tok[p] = toks
        return items

    def p4(self):
        g = self.g
        cfg = self.cfg
        ACC, AB = 40, 136
        SB0 = S_TMP + 14
        self.gu_issue(cfg["gu_c"])
        npre = self.gu_next
        assert npre <= 9
        self.dn_setup()
        g("v_lshrrev_b32 v3, 5, v1")
        g("v_lshlrev_b32 v3, 3, v3")
        g("v_bfe_u32 v4, v1, 2, 2")
        g("v_add_u32 v3, v3, v4")
        g("v_mul_u32_u24 v3, 192, v3")
        g("v_bfe_u32 v4, v1, 4, 1")
        g("v_mul_u32_u24 v4, 6176, v4")
        g("v_add_u32 v3, v3, v4")
        g("v_and_b32 v4, 3, v1")
        g("v_lshl_add_u32 v5, v4, 3, v3")
        g(f"v_add_u32 v6, {5*GU_SLOT}, v5")
        g(f"v_add_u32 v7, {10*GU_SLOT}, v5")
        g(f"s_lshl_b32 s{SB0}, s{S_RB}, 2")
        g(f"s_add_u32 s{SB0}, s{SB0}, s{S_W}")
        g(f"s_mul_i32 s{SB0}, s{SB0}, 40960")
        g(f"s_add_u32 s{SB0}, s{SB0}, {WS_H2}")
        self.flag_off(S_TMP, F_H2)
        g("v_bfe_u32 v3, v1, 1, 3")
        g("v_lshlrev_b32 v3, 5, v3")
        g("v_and_b32 v4, 1, v1")
        g("v_lshl_add_u32 v3, v4, 2, v3")
        g(f"s_lshl_b32 s{S_TMP+1}, s{S_TP}, 4")
        g(f"s_lshl_b32 s{S_TMP+2}, s{S_KH}, 3")
        g(f"s_add_u32 s{S_TMP+1}, s{S_TMP+1}, s{S_TMP+2}")
        g(f"v_add_u32 v3, s{S_TMP+1}, v3")
        self.poll(3, S_TMP, S_T0, 4)
        self.acquire()
        self.stamp("h2seen")
        pc = Pacer()
        btok = self.bitems(pc, 40, SB0, ntiles=1)
        pc.force(cfg["lb"] + 1)
        bl = [(cfg["lb"] + 1 + i - cfg["blead"], 0, it) for i, it in enumerate(pc.items)]
        for n in range(npre, 20):
            due = 2 * (n & ~1) - 1 - cfg["wlead"]
            bnd = 0 if n < 13 else (n - 13 + 2 + 1) & ~1
            for f in self.gu_chunk_items(): bl.append((max(due, 2 * bnd - 1), 1, (f, 96, 2 * bnd - 1)))
        for p in range(cfg["dn_a"]):
            bnd = 10 if p == 0 else 14
            for f in self.dn_pair_items(): bl.append((max(41 + p, 2 * bnd), 2, (f, 115, 2 * bnd - 1)))
        bl.sort(key=lambda x: (x[0], x[1]))
        pc.items = [x[2] for x in bl]
        def reads(s_):
            c, ks = s_ >> 1, s_ & 1
            slot = (c + 4) % GU_NSLOT
            va, so = (5, 6, 7)[slot // 5], (slot % 5) * GU_SLOT
            return [f"ds_read_b64_tr_b16 v[{AB + (s_%2)*24 + 4*m + 2*rd}:{AB + (s_%2)*24 + 4*m + 2*rd + 1}], v{va} offset:{so + ks*3072 + rd*768 + 32*m}"
                    for m in range(6) for rd in range(2)]
        def pre(s_):
            if s_ % 4: return
            c = s_ >> 1
            while len(self.gu_tok[c + 1]) < 3: pc.force(1)
            g.wait(self.gu_tok[c + 1][-1])
            self.barrier()
        pre(0)
        cur = [g(r) for r in reads(0)]
        for s_ in range(40):
            nxt = []
            if s_ + 1 < 40:
                pre(s_ + 1)
                nxt = reads(s_ + 1)
            new = []
            pc.step = s_
            la = min(s_ + cfg["la"], 39)
            while la not in btok and pc.items[0][2] <= s_: pc.force(1)
            while s_ not in btok: pc.force(1)
            g.wait(btok[s_][0], cur[5])
            for m in range(6):
                if m == 3: g.wait(cur[-1])
                A = AB + (s_ % 2) * 24 + 4 * m
                D = ACC + 16 * m
                C = "0" if s_ == 0 else v(D, 16)
                g(f"v_mfma_f32_32x32x16_bf16 v[{D}:{D+15}], v[{A}:{A+3}], a[{4*s_}:{4*s_+3}], {C}")
                for _ in range(2):
                    if nxt: new.append(g(nxt.pop(0)))
                pc.tick(32, s_)
            cur = new
        pc.drain()
        self.stamp("gugemm")
        self.barrier()
        g("v_bfe_u32 v3, v1, 4, 1")
        g("v_mul_u32_u24 v3, 49152, v3")
        g("v_and_b32 v4, 15, v1")
        g("v_lshl_add_u32 v3, v4, 4, v3")
        g("v_lshrrev_b32 v4, 5, v1")
        g("v_lshl_add_u32 v3, v4, 8, v3")
        g(f"s_lshl_b32 s{S_TMP}, s{S_RB}, 2")
        g(f"s_add_u32 s{S_TMP}, s{S_TMP}, s{S_W}")
        g(f"s_mul_i32 s{S_TMP}, s{S_TMP}, {2*49152}")
        g(f"s_mul_i32 s{S_TMP+1}, s{S_J}, 3072")
        g(f"s_add_u32 s{S_TMP}, s{S_TMP}, s{S_TMP+1}")
        g(f"s_add_u32 s{S_TMP}, s{S_TMP}, {WS_ACT}")
        extra = []
        for p in range(cfg["dn_b"]): extra += self.dn_pair_items()
        for m in range(6):
            D = ACC + 16 * m
            for k in range(8): g(f"v_exp_f32 v{D+k}, v{D+k}")
            if extra: extra.pop(0)()
            for k in range(8): g(f"v_add_f32 v{D+k}, 1.0, v{D+k}")
            for k in range(8): g(f"v_rcp_f32 v{D+k}, v{D+k}")
            if extra: extra.pop(0)()
            for k in range(8): g(f"v_mul_f32 v{D+8+k}, v{D+8+k}, v{D+k}")
            for k in range(4): g(f"v_cvt_pk_bf16_f32 v{D+k}, v{D+8+2*k}, v{D+9+2*k}")
            g(f"buffer_store_dwordx4 v[{D}:{D+3}], v3, s[{R_WS}:{R_WS+3}], s{S_TMP} offen offset:{512*m} {self.SC}")
        for f in extra: f()
        self.stamp("guepi")
        self.publish(F_ACT, S_T0, 8, 9)
        self.stamp("actpub")

    def p5(self):
        g = self.g
        cfg = self.cfg
        ACC, AB, X1 = 40, 80, 230
        SB0 = S_TMP + 14
        for p in range(cfg["dn_c"]):
            for f in self.dn_pair_items(): f()
        npre = self.dn_next
        assert npre <= 8
        g(f"s_mul_i32 s{S_TMP+2}, s{S_KH}, 5120")
        g(f"v_add_u32 v5, s{S_TMP+2}, v20")
        g("v_add_u32 v6, 61440, v5")
        g("v_add_u32 v7, 122880, v5")
        XF, GB = 140, 120
        for i in range(10): self.unpack(XF + 2*i, XF + 2*i + 1, X1 + i)
        for k in range(20): g(f"v_accvgpr_read_b32 v{GB+k}, a{200+k}")
        self.bsetup_half(WS_ACT, 24, SB0)
        self.poll_half(F_ACT)
        self.stamp("actseen")
        pc = Pacer()
        btok = self.bitems(pc, 24, SB0)
        pc.force(2 * cfg["lb"])
        bl = [(cfg["lb"] + i // 2 - cfg["blead"], 0, it) for i, it in enumerate(pc.items)]
        for p in range(npre, 12):
            due = 2 * p - 1 - cfg["wlead"]
            bnd = 0 if p < 8 else (2 * (p - 8) + 1 + 2 + 1) & ~1
            for f in self.dn_pair_items(): bl.append((max(due, bnd - 1), 1, (f, 115, bnd - 1)))
        bl.sort(key=lambda x: (x[0], x[1]))
        pc.items = [x[2] for x in bl]
        last_bnd = max([0] + [(2 * (p - 8) + 4) & ~1 for p in range(8, 12)])
        def pre(c):
            def f():
                p = c // 2
                if p >= npre:
                    while len(self.dn_tok[p]) < 5: pc.force(1)
                    g.wait(self.dn_tok[p][-1])
                if p >= npre or c == 0 or c <= last_bnd: self.barrier()
            return f
        def rd(s_, t, hi):
            slot = (s_ + 14) % 16
            return ((5, 6, 7)[slot // 6], (slot % 6) * 10240 + hi * 2560 + 32 * t)
        self.gemm16(24, 5, ACC, AB, rd, lambda s_, Tp: a_((Tp * 24 + s_) * 4, 4), pacer=pc, btok=btok,
                    hooks={c: pre(c) for c in range(0, 24, 2)})
        self.stamp("dgemm")
        self.reduce_halves(ACC, 81920)
        self.srd(R_A, P_OUT, 2048 * 1280)
        g("v_and_b32 v12, 15, v1")
        g("v_mul_u32_u24 v12, 1280, v12")
        g("v_lshrrev_b32 v15, 5, v1")
        g("v_lshl_add_u32 v15, v15, 4, v12")
        g("v_bfe_u32 v14, v1, 4, 1")
        g("v_lshl_add_u32 v14, v14, 5, v15")
        for k in range(20):
            g(f"v_add_f32 v{ACC+k}, v{ACC+k}, v{ACC+20+k}")
            g(f"v_fma_f32 v{XF+k}, v{ACC+k}, v{GB+k}, v{XF+k}")
        E = ACC
        self.pack_chunks(XF, E)
        g(f"buffer_store_dwordx4 v[{E}:{E+3}], v14, s[{R_A}:{R_A+3}], s{S_TMP+11} offen")
        g(f"buffer_store_dwordx4 v[{E+4}:{E+7}], v14, s[{R_A}:{R_A+3}], s{S_TMP+11} offen offset:64")
        g(f"buffer_store_dwordx4 v[{E+8}:{E+11}], v15, s[{R_A}:{R_A+3}], s{S_TMP+11} offen offset:128")

    def build(self):
        self.cold = []
        txt = super().build()
        g = self.g
        for f in self.cold: f()
        return g.text()

def make_all(tag, cls, cfg=None):
    k = make(f"{tag}.s", cls=cls, cfg=cfg)
    for kind, st in (("stamp", True), ("cyc", "cyc")):
        k2 = make(f"{tag}_{kind}.s", cls=cls, cfg=cfg, stamps=st)
        json.dump(k2.stamp_names, open(f"{tag}_{kind}.json", "w"))
    return k

if __name__ == "__main__":
    make_all("v2b", V2, dict(kv_pre=20, lb=6, la=8, wlead=8, blead=6, touch_gu=0))
    import re
    for tag, cfg in (("v2c", dict(kv_pre=20, lb=6, la=8, wlead=8, blead=6, touch_gu=0)), ("v2d", dict(kv_pre=20, lb=4, la=4, wlead=4, blead=3, touch_gu=0))):
        make_all(tag, V2, cfg)
        for kind in ("_stamp", "_cyc"):
            t = open(tag + kind + ".s").read()
            t = re.sub(r"s_mul_i32 (s\d+), s45, (80|192)\n", r"s_mov_b32 \1, 0\n", t)
            t = re.sub(r"s_mul_i32 s60, s51, 160\n", r"s_mov_b32 s60, 0\n", t)
            t = t.replace("s_add_u32 s72, s72, s61\n    s_mul_i32 s73, s46, 5120", "s_nop 0\n    s_mul_i32 s73, s46, 5120")
            open(tag + kind + ".s", "w").write(t)
    k = make_all("v2", V2, dict(kv_pre=16, lb=5, la=6, wlead=6, blead=4))
    print("instructions", k.g.count, "nop states", k.g.nops)
```

```python
import json
from v2 import *

F_H, F_KV, F_O, F_H2, F_ACT, F_XC = range(6)
WS_RF = 0x8000
WS_MODL = 0x20000
WS_MODP = 0x10000
WS_RWO = 0x1800000
WS_RWD = 0x1900000
WS_RGU = 0x1B00000
WS_O = WS_H2 = WS_H
L_PUB = 73728
GU_SLOT = 12288
S_T = 47
S_X = 48
OOB = 0x40000000
S_P, S_PK = 49, 101
S_TB = 40
V_L16 = 2
V_KV0, V_KV1, V_Q = 5, 6, 7
V_KVW, V_QW = 10, 15
V_T160 = 20
V_K1, V_K2, V_VT, V_OST, V_XR, V_VEC = 21, 22, 23, 24, 25, 26
V_QD = 27
V_BD, V_BF = 208, 224
A_STG = 100
A_GB = 80

class V5(V2):
    def __init__(self, cfg=None, **kw):
        base = dict(nq0=10, kv_depth=63, lb=5, la=6, wlead=6, blead=4, stage=8, rp_poll=0, gu_a=0, gu_b=0, gu_c=0,
                    dn_a=3, dn_b=2, dn_c=1, kvflag_step=9, attn_cost=110, q_early=1, fl_b=4, touch=1, act_touch=(14, 20, 26), rp_at='kv', coop=1, rot=1, wo_cost=90, gu_cost=140, vec_at=5, out_touch=0, setup_first=1)
        base.update(cfg or {})
        super().__init__(cfg=base, **kw)
    def make_tags(self):
        g = self.g
        g(f"s_mul_i32 s{S_T}, s{S_X}, {LCG_A}")
        g(f"s_add_u32 s{S_T}, s{S_T}, {LCG_C}")
        for i in range(4): g(f"s_bfe_u32 s{S_TB+i}, s{S_T}, {(8 << 16) | (8*i)}")
    def prologue(self):
        g = self.g
        g(f"s_cmp_ge_u32 s{S_B}, 256")
        g("s_cbranch_scc1 L_end")
        self.stamp("start")
        g("s_load_dwordx16 s[4:19], s[0:1], 0")
        g("s_load_dwordx8 s[20:27], s[0:1], 64")
        g(f"s_and_b32 s{S_RB}, s{S_B}, 7")
        g(f"s_lshl_b32 s{S_RB}, s{S_RB}, 1")
        g(f"s_lshr_b32 s{S_TMP}, s{S_B}, 7")
        g(f"s_add_u32 s{S_RB}, s{S_RB}, s{S_TMP}")
        g(f"s_lshr_b32 s{S_J}, s{S_B}, 3")
        g(f"s_and_b32 s{S_J}, s{S_J}, 15")
        g("v_lshrrev_b32 v2, 6, v0")
        g("v_and_b32 v1, 63, v0")
        g(f"v_readfirstlane_b32 s{S_W}, v2")
        g(f"s_and_b32 s{S_RH}, s{S_J}, 1")
        g(f"s_lshr_b32 s{S_CQ}, s{S_J}, 1")
        g(f"s_mov_b32 s{S_HALF}, 0")
        g(f"s_mov_b32 s{S_HALF+1}, -1")
        g(f"s_and_b32 s{S_KH}, s{S_W}, 1")
        g(f"s_lshr_b32 s{S_TP}, s{S_W}, 1")
        g(f"v_lshlrev_b32 v{V_L16}, 4, v1")
        g.wait_lg(0)
        g(f"s_load_dword s{S_X}, s[{P_WS}:{P_WS+1}], 0")
        self.srd(R_WS, P_WS, WS_SIZE)

    def gemv_index(self, lo, hi, skip):
        g = self.g
        rank = {0: 0, 2: 1, 5: 2, 7: 3, 8: 4, 10: 5, 13: 6, 15: 7}
        tab = sum(rank.get(j, 15) << (4 * j) for j in range(16))
        g(f"s_mov_b32 s{S_TMP+2}, {hx(tab)}")
        g(f"s_mov_b32 s{S_TMP+3}, {hx(tab >> 32)}")
        g(f"s_lshl_b32 s{S_TMP}, s{S_J}, 2")
        g(f"s_lshr_b64 s[{S_TMP+2}:{S_TMP+3}], s[{S_TMP+2}:{S_TMP+3}], s{S_TMP}")
        g(f"s_and_b32 s{S_TMP+2}, s{S_TMP+2}, 15")
        g(f"s_lshl_b32 s{S_TMP+2}, s{S_TMP+2}, 3")
        g(f"s_and_b32 s{S_TMP+3}, s{S_B}, 7")
        g(f"s_add_u32 s{S_TMP+2}, s{S_TMP+2}, s{S_TMP+3}")
        g(f"s_lshr_b32 s{S_TMP+3}, s{S_B}, 7")
        g(f"s_lshl_b32 s{S_TMP+3}, s{S_TMP+3}, 6")
        g(f"s_add_u32 s{S_P}, s{S_TMP+2}, s{S_TMP+3}")
        g(f"s_sub_u32 s{S_TMP+3}, s{S_P}, {lo}")
        g(f"s_cmp_ge_u32 s{S_TMP+3}, {hi - lo}")
        g(f"s_cbranch_scc1 {skip}")
    def gemv_loads(self, t, d, n):
        g = self.g
        self.srd(R_A, P_C, 1280)
        self.srd(R_B, P_WMOD, 640 * 7680)
        g(f"v_lshlrev_b32 v{t+3}, 3, v0")
        g(f"buffer_load_dwordx2 v[{t+4}:{t+5}], v{t+3}, s[{R_A}:{R_A+3}], 0 offen")
        g(f"v_lshrrev_b32 v{t+7}, 3, v0")
        g(f"v_mul_u32_u24 v{t+8}, {n*7680}, v{t+7}")
        g(f"v_and_b32 v{t+9}, 7, v0")
        g(f"v_lshl_add_u32 v{t+8}, v{t+9}, 4, v{t+8}")
        g(f"s_lshl_b32 s{S_TMP+4}, s{S_P}, 7")
        g(f"s_mul_i32 s{S_TMP+6}, s{S_PK}, {32*n*7680}")
        g(f"s_add_u32 s{S_TMP+4}, s{S_TMP+4}, s{S_TMP+6}")
        for i in range(n):
            g(f"buffer_load_dwordx4 v[{d+4*i}:{d+4*i+3}], v{t+8}, s[{R_B}:{R_B+3}], s{S_TMP+4} offen nt")
            if i < n - 1: g(f"s_add_u32 s{S_TMP+4}, s{S_TMP+4}, 7680")
    def gemv_finish(self, t, d, u, done, tags, n, dst, pitch):
        g = self.g
        self.unpack(t+10, t+11, t+4); self.unpack(t+12, t+13, t+5)
        R = range(t + 10, t + 14)
        for r in R: g(f"v_mul_f32 v{r+4}, {hx(fbits(NLOG2E))}, v{r}")
        for r in R: g(f"v_exp_f32 v{r+4}, v{r+4}")
        for r in R: g(f"v_add_f32 v{r+4}, 1.0, v{r+4}")
        for r in R: g(f"v_rcp_f32 v{r+4}, v{r+4}")
        for r in R: g(f"v_mul_f32 v{r}, v{r}, v{r+4}")
        g(f"v_cvt_pk_bf16_f32 v{t+14}, v{t+10}, v{t+11}")
        g(f"v_cvt_pk_bf16_f32 v{t+15}, v{t+12}, v{t+13}")
        self.unpack(t+16, t+17, t+14); self.unpack(t+18, t+19, t+15)
        g(f"v_lshlrev_b32 v{t+3}, 4, v0")
        g(f"v_add_u32 v{t+3}, {L_SC}, v{t+3}")
        g(f"ds_write_b128 v{t+3}, v[{t+16}:{t+19}]")
        g(f"v_mul_u32_u24 v{t+3}, {4*n}, v{t+7}")
        g(f"s_mul_i32 s{S_TMP+6}, s{S_PK}, {128*n}")
        g(f"s_add_u32 s{S_TMP+6}, s{S_TMP+6}, {L_SC}")
        g(f"v_add_u32 v{t+3}, s{S_TMP+6}, v{t+3}")
        g.wait_lg(0)
        self.barrier()
        for i in range(n // 2):
            g(f"ds_read_b64 v[{t+20+2*i}:{t+21+2*i}], v{t+3} offset:{8*i}")
        for k in range(8): g(f"v_mov_b32 v{t+10+k}, 0")
        for i in range(n):
            for k in range(4):
                q = u + 2 * (k % 2)
                self.unpack(q, q + 1, d + 4*i + k)
                s0 = t + 20 + (i & ~1)
                g(f"v_pk_fma_f32 v[{t+10+2*k}:{t+11+2*k}], v[{q}:{q+1}], v[{s0}:{s0+1}], v[{t+10+2*k}:{t+11+2*k}] op_sel:[0,{i&1},0] op_sel_hi:[1,{i&1},1]")
        for k in range(8):
            g(f"v_add_f32_dpp v{t+20+k}, v{t+10+k}, v{t+10+k} row_ror:8 row_mask:0xf bank_mask:0xf")
        for k in range(4): g(f"v_permlane16_swap_b32 v{t+20+k}, v{t+24+k}")
        for k in range(4): g(f"v_add_f32 v{t+20+k}, v{t+20+k}, v{t+24+k}")
        for k in range(2): g(f"v_permlane32_swap_b32 v{t+20+k}, v{t+22+k}")
        g(f"v_bfe_u32 v{t+3}, v1, 4, 1")
        g(f"v_lshlrev_b32 v{t+3}, 4, v{t+3}")
        g(f"v_bfe_u32 v{t+4}, v1, 5, 1")
        g(f"v_lshl_add_u32 v{t+3}, v{t+4}, 3, v{t+3}")
        g(f"v_lshl_add_u32 v{t+3}, v{t+9}, 5, v{t+3}")
        g(f"s_lshl_b32 s{S_TMP+4}, s{S_W}, 8")
        g(f"s_add_u32 s{S_TMP+4}, s{S_TMP+4}, {L_RED}")
        g(f"v_add_u32 v{t+3}, s{S_TMP+4}, v{t+3}")
        for k in range(2): g(f"v_add_f32 v{t+20+k}, v{t+20+k}, v{t+22+k}")
        g(f"ds_write_b64 v{t+3}, v[{t+20}:{t+21}]")
        g(f"v_and_b32 v{t+3}, 15, v1")
        g(f"v_lshlrev_b32 v{t+3}, 4, v{t+3}")
        g(f"v_add_u32 v{t+4}, {L_RED}, v{t+3}")
        if tags: self.make_tags()
        g.wait_lg(0)
        self.barrier()
        g(f"s_cmp_lg_u32 s{S_W}, 3")
        g(f"s_cbranch_scc1 {done}")
        for i in range(4):
            g(f"ds_read_b128 v[{t+20+4*i}:{t+23+4*i}], v{t+4} offset:{256*i}")
        g(f"s_lshl_b32 s{S_TMP+4}, s{S_P}, 8")
        g(f"s_mul_i32 s{S_TMP+5}, s{S_PK}, {pitch}")
        g(f"s_add_u32 s{S_TMP+4}, s{S_TMP+4}, s{S_TMP+5}")
        g(f"s_add_u32 s{S_TMP+4}, s{S_TMP+4}, {dst}")
        g(f"v_mov_b32 v{t+5}, 0xff")
        for k in range(4):
            g(f"v_add_f32 v{t+20+k}, v{t+20+k}, v{t+24+k}")
            g(f"v_add_f32 v{t+28+k}, v{t+28+k}, v{t+32+k}")
        for k in range(4): g(f"v_add_f32 v{t+20+k}, v{t+20+k}, v{t+28+k}")
        for k in range(4): g(f"v_bfi_b32 v{t+20+k}, v{t+5}, s{S_TB+k}, v{t+20+k}")
        g("s_mov_b64 exec, 0xffff")
        g(f"buffer_store_dwordx4 v[{t+20}:{t+23}], v{t+3}, s[{R_WS}:{R_WS+3}], s{S_TMP+4} offen sc1")
        g("s_mov_b64 exec, -1")
        g("s_nop 1")
    def gemv(self):
        g = self.g
        self.gemv_index(0, 40, "L_nogemv0")
        g(f"s_and_b32 s{S_PK}, s{S_P}, 1")
        g(f"s_lshr_b32 s{S_P}, s{S_P}, 1")
        self.gemv_loads(80, 40, 10)
        self.xloads()
        self.stamp("g_iss")
        self.setup()
        self.gemv_finish(80, 40, 120, "L_nogemv", True, 10, WS_MODP, 15360)
        self.stamp("g_end")
        g("s_branch L_nogemv")
        g.label("L_nogemv0")
        g.forget()
        self.xloads()
        self.setup()
        g.label("L_nogemv")
        g.forget()
        g.lg = [Tok("lg", {("s", S_X)}, smem=True)]
        g.vm = [Tok("vm", {("v", 160 + 4*i + k) for k in range(4)}) for i in range(10)]
    def xloads(self):
        g = self.g
        keep = g.snapshot()
        L = g.newlabel("Lx")
        g(f"s_cmp_lg_u32 s{S_W}, 0")
        g(f"s_cbranch_scc1 {L}")
        self.srd(R_T, P_X, 2048 * 1280)
        g("v_and_b32 v240, 7, v1")
        g("v_lshrrev_b32 v241, 3, v1")
        g("v_mul_u32_u24 v242, 1280, v240")
        g("v_lshl_add_u32 v242, v241, 4, v242")
        g(f"s_lshl_b32 s{S_TMP+8}, s{S_RB}, 4")
        g(f"s_add_u32 s{S_TMP+8}, s{S_TMP+8}, s{S_J}")
        g(f"s_mul_i32 s{S_TMP+8}, s{S_TMP+8}, {8*1280}")
        for i in range(10):
            g(f"buffer_load_dwordx4 v[{160+4*i}:{163+4*i}], v242, s[{R_T}:{R_T+3}], s{S_TMP+8} offen offset:{128*i} nt")
        g.label(L)
        g.restore(keep)
    def tagcheck(self, acc, regs, first):
        g = self.g
        regs = list(regs)
        for k, r in enumerate(regs): g(f"v_xor_b32 v{r}, s{S_TB+k}, v{r}")
        if first: g(f"v_or_b32 v{acc}, v{regs[0]}, v{regs[1]}")
        else: g(f"v_or3_b32 v{acc}, v{regs[0]}, v{regs[1]}, v{acc}")
        g(f"v_or3_b32 v{acc}, v{regs[2]}, v{regs[3]}, v{acc}")

    def setup(self):
        g = self.g
        T = 32
        g(f"v_lshrrev_b32 v{T}, 2, v1")
        g(f"v_and_b32 v{T+1}, 3, v1")
        g(f"v_mul_u32_u24 v{V_T160}, 160, v{T}")
        g(f"v_lshl_add_u32 v{V_T160}, v{T+1}, 3, v{V_T160}")
        g(f"v_mov_b32 v{V_KV0}, v{V_T160}")
        g(f"v_add_u32 v{V_KV1}, 51200, v{V_T160}")
        g(f"v_and_b32 v{T+2}, 7, v{T}")
        g(f"v_lshlrev_b32 v{T+2}, 1, v{T+2}")
        g(f"v_lshrrev_b32 v{T+3}, 5, v1")
        g(f"v_add_u32 v{T+2}, v{T+2}, v{T+3}")
        g(f"v_mul_u32_u24 v{T+2}, 80, v{T+2}")
        g(f"v_lshl_add_u32 v{T+2}, v{T+1}, 3, v{T+2}")
        g(f"v_add_u32 v{V_Q}, {L_WQ}, v{T+2}")
        g(f"v_lshrrev_b32 v{T+2}, 4, v1")
        g(f"v_and_b32 v{T+4}, 15, v1")
        g(f"s_lshl_b32 s{S_TMP}, s{S_W}, 5")
        g(f"v_add_u32 v{T+5}, s{S_TMP}, v{T+4}")
        g(f"v_mul_u32_u24 v{T+5}, 48, v{T+5}")
        g(f"v_add_u32 v{T+5}, {L_PUB}, v{T+5}")
        for t in range(5):
            g(f"v_add_u32 v{T+6}, {4*t}, v{T+2}")
            self.divmod_const(3, 4, T + 6, 5)
            g(f"v_mul_u32_u24 v{T+7}, 6144, v3")
            g(f"v_lshl_add_u32 v{T+7}, v4, 3, v{T+7}")
            g(f"v_add_u32 v{V_KVW+t}, v{T+7}, v{T+5}")
            if t < 2:
                g(f"v_mov_b32 v{V_QW+t}, v{V_KVW+t}")
            if t == 2:
                g(f"v_cmp_lt_u32 s[{S_TT}:{S_TT+1}], 1, v3")
                g(f"v_add_u32 v{T+7}, 40, v{T+5}")
                g(f"v_cndmask_b32 v{V_QW+2}, v{V_KVW+2}, v{T+7}, s[{S_TT}:{S_TT+1}]")
        g(f"v_and_b32 v{T+5}, 31, v1")
        g(f"v_add_u32 v{T+6}, s{S_TMP}, v{T+5}")
        g(f"v_mul_u32_u24 v{T+6}, 48, v{T+6}")
        g(f"v_lshl_add_u32 v{V_K1}, v{T+3}, 4, v{T+6}")
        g(f"v_lshl_add_u32 v{V_K2}, v{T+3}, 3, v{T+6}")
        g(f"v_add_u32 v{V_K2}, 32, v{V_K2}")
        g(f"v_bfe_u32 v{T+6}, v1, 2, 2")
        g(f"v_lshl_add_u32 v{T+6}, v{T+3}, 2, v{T+6}")
        g(f"v_add_u32 v{T+6}, s{S_TMP}, v{T+6}")
        g(f"v_mul_u32_u24 v{T+6}, 48, v{T+6}")
        g(f"v_bfe_u32 v{T+7}, v1, 4, 1")
        g(f"v_lshl_add_u32 v{T+6}, v{T+7}, 5, v{T+6}")
        g(f"v_lshl_add_u32 v{T+6}, v{T+1}, 3, v{T+6}")
        g(f"v_add_u32 v{V_VT}, {L_KVB + 36864}, v{T+6}")
        g(f"v_mul_u32_u24 v{V_OST}, 20480, v{T+7}")
        g(f"v_lshl_add_u32 v{V_OST}, v{T+4}, 4, v{V_OST}")
        g(f"v_lshl_add_u32 v{V_OST}, v{T+3}, 8, v{V_OST}")
        g(f"v_mul_u32_u24 v{V_XR}, 1280, v{T+4}")
        g(f"v_lshl_add_u32 v{V_XR}, v{T+2}, 3, v{V_XR}")
        g(f"v_min_u32 v{V_VEC}, 19, v1")
        g(f"v_lshlrev_b32 v{V_VEC}, 4, v{V_VEC}")
        g(f"v_lshlrev_b32 v{T+6}, 2, v{T+3}")
        g(f"v_sub_u32 v{T+6}, v{T+5}, v{T+6}")
        g(f"v_mov_b32 v{T+7}, {hx(NEG_BIG)}")
        for r in range(16):
            kk = 8 * (r >> 2) + (r & 3)
            sp = S_TMP + 2 + 2 * (r % 4)
            g(f"v_cmp_le_i32 s[{sp}:{sp+1}], {kk}, v{T+6}")
            if r % 4 == 3:
                for r2 in range(r - 3, r + 1):
                    sp = S_TMP + 2 + 2 * (r2 % 4)
                    g(f"v_cndmask_b32 v{V_BD+r2}, v{T+7}, 0, s[{sp}:{sp+1}]")
                    g(f"v_cndmask_b32 v{V_BF+r2}, 0, v{T+7}, s[{sp}:{sp+1}]")
        g(f"s_lshl_b32 s{S_TMP+11}, s{S_RB}, 1")
        g(f"s_add_u32 s{S_TMP+11}, s{S_TMP+11}, s{S_RH}")
        g(f"s_lshl_b32 s{S_TMP+11}, s{S_TMP+11}, 2")
        g(f"s_add_u32 s{S_TMP+11}, s{S_TMP+11}, s{S_W}")
        g(f"s_mul_i32 s{S_TMP+11}, s{S_TMP+11}, {16*1280}")
        g(f"s_mul_i32 s{S_TMP+1}, s{S_CQ}, 160")
        g(f"s_add_u32 s{S_TMP+11}, s{S_TMP+11}, s{S_TMP+1}")

    def p0(self):
        g = self.g
        cfg = self.cfg
        km = self.kmaps()
        g(f"s_cmp_lg_u32 s{S_W}, 0")
        g("s_cbranch_scc1 L_p0_dma")
        snap = g.snapshot()
        TK, Q = 240, 241
        X, X0 = 40, 160
        self.make_tags()
        SXC, SXF = S_TMP + 12, S_TMP + 13
        g(f"s_getreg_b32 s{SXC}, hwreg(HW_REG_XCC_ID, 0, 4)")
        self.flag_off(SXF, F_XC)
        g(f"s_lshl_b32 s{S_TMP+1}, s{S_J}, 4")
        g(f"v_mov_b32 v8, s{S_TMP+1}")
        g(f"v_mov_b32 v18, s{S_T}")
        g(f"v_mov_b32 v19, s{SXC}")
        g("s_mov_b64 exec, 1")
        g(f"buffer_store_dwordx2 v[18:19], v8, s[{R_WS}:{R_WS+3}], s{SXF} offen sc1")
        g("s_mov_b64 exec, -1")
        for r in range(88, 96): g(f"s_mov_b32 s{r}, {OOB}")
        self.srd(R_B, P_WO, 640 * 1280)
        self.srd(R_T, P_X, 2048 * 1280)
        for r in list(range(self.RP_A, self.RP_A + 5)) + list(range(self.RP_B, self.RP_B + 3)): g(f"v_mov_b32 v{r}, 0")
        g("v_mov_b32 v8, 0x3f803f80")
        g("v_mov_b32 v3, 0"); g("v_mov_b32 v4, 0")
        for r in range(X0, X0 + 40):
            g(f"v_dot2_f32_bf16 v3, v{r}, v8, v3")
            g(f"v_dot2_f32_bf16 v4, v{r}, v{r}, v4")
        if cfg["touch"]:
            g(f"s_lshl_b32 s{S_TMP+8}, s{S_RB}, 3")
            g(f"s_add_u32 s{S_TMP+8}, s{S_TMP+8}, s{S_CQ}")
            g(f"s_mul_i32 s{S_TMP+8}, s{S_TMP+8}, 20480")
            g(f"s_lshl_b32 s{S_TMP+9}, s{S_RH}, 7")
            g(f"s_add_u32 s{S_TMP+8}, s{S_TMP+8}, s{S_TMP+9}")
            g(f"s_add_u32 s{S_TMP+8}, s{S_TMP+8}, {WS_H}")
            g("v_lshlrev_b32 v243, 8, v1")
            g(f"buffer_load_dword v244, v243, s[{R_WS}:{R_WS+3}], s{S_TMP+8} offen")
            g("v_and_b32 v245, 15, v1")
            g("v_lshlrev_b32 v245, 8, v245")
            g(f"v_add_u32 v245, s{S_TMP+8}, v245")
            g("v_add_u32 v245, 16384, v245")
            g("v_bfe_u32 v246, v1, 1, 3")
            g("v_min_u32 v246, 5, v246")
            g("v_lshlrev_b32 v246, 12, v246")
            g("v_and_b32 v247, 1, v1")
            g("v_lshl_add_u32 v246, v247, 7, v246")
            g(f"s_lshl_b32 s{S_TMP+9}, s{S_RB}, 8")
            g(f"s_add_u32 s{S_TMP+9}, s{S_TMP+9}, {WS_FLAG}")
            g(f"v_add_u32 v246, s{S_TMP+9}, v246")
            g(f"v_cmp_lt_u32 s[{S_TT}:{S_TT+1}], 15, v1")
            g(f"v_cndmask_b32 v245, v245, v246, s[{S_TT}:{S_TT+1}]")
            g(f"buffer_load_dword v248, v245, s[{R_WS}:{R_WS+3}], 0 offen")
        self.allreduce2(3, 4, 8, 9, (8, 16, 32))
        self.rstd(3, 4, 8)
        Z = 80
        g("v_mov_b32 v8, v4"); g("v_mov_b32 v9, v4"); g("v_mov_b32 v18, v3"); g("v_mov_b32 v19, v3")
        for i in range(40):
            self.unpack(Z + 2*i, Z + 2*i + 1, X0 + i)
            g(f"v_pk_fma_f32 v[{Z+2*i}:{Z+2*i+1}], v[{Z+2*i}:{Z+2*i+1}], v[8:9], v[18:19]")
        self.stamp("z")
        M = 160
        g(f"s_mov_b32 s{S_TMP+1}, {WS_MODP}")
        g(f"s_mov_b32 s{S_TMP+2}, {WS_MODP + 4096}")
        g(f"s_mov_b32 s{S_TMP+3}, {WS_MODP + 15360}")
        g(f"s_mov_b32 s{S_TMP+4}, {WS_MODP + 15360 + 4096}")
        g("v_and_b32 v242, 15, v1")
        g("v_lshlrev_b32 v242, 4, v242")
        g(f"v_add_u32 v243, {L_SG}, v{V_L16}")
        g(f"v_cndmask_b32 v244, 0, 1.0, s[{S_HALF}:{S_HALF+1}]")
        g(f"v_lshlrev_b32 v245, 5, v{Q}")
        g(f"v_add_u32 v245, {L_SG}, v245")
        g(f"v_lshlrev_b32 v246, 8, v{Q}")
        g(f"v_lshl_add_u32 v246, v{TK}, 4, v246")
        g(f"s_lshl_b32 s{S_TMP}, s{S_RB}, 3")
        g(f"s_add_u32 s{S_TMP}, s{S_TMP}, s{S_CQ}")
        g(f"s_mul_i32 s{S_TMP}, s{S_TMP}, 20480")
        g(f"s_lshl_b32 s{S_TMP+5}, s{S_RH}, 7")
        g(f"s_add_u32 s{S_TMP}, s{S_TMP}, s{S_TMP+5}")
        g(f"s_add_u32 s{S_TMP}, s{S_TMP}, {WS_H}")
        L = g.newlabel("Lm"); D = g.newlabel("Lmd")
        g(f"s_mov_b32 s{S_CNT}, {POLL_MAX}")
        g.label(L)
        tk = []
        for i in range(5):
            for hf in range(2):
                so = S_TMP + 1 + 2 * hf + (i // 4)
                d = (X if hf == 0 else M) + 4 * i
                tk.append(g(f"buffer_load_dwordx4 v[{d}:{d+3}], v{V_L16}, s[{R_WS}:{R_WS+3}], s{so} offen offset:{(1024*i) % 4096} sc1"))
        g(f"buffer_load_dwordx2 v[248:249], v242, s[{R_WS}:{R_WS+3}], s{SXF} offen sc1")
        for i in range(5):
            for hf in range(2):
                d = (X if hf == 0 else M) + 4 * i
                self.tagcheck(247, range(d, d + 4), i == 0 and hf == 0)
        g("v_and_b32 v247, 0xff, v247")
        g(f"v_bitop3_b32 v247, v247, v248, s{S_T} bitop3:0xf6")
        g("v_cmp_ne_u32 vcc, 0, v247")
        g(f"s_cbranch_vccz {D}")
        g(f"s_sub_u32 s{S_CNT}, s{S_CNT}, 1")
        g(f"s_cbranch_scc0 {L}")
        g.label(D)
        self.stamp("mod")
        for i in range(5):
            b = X + 4 * i
            for k in (0, 2): g(f"v_pk_add_f32 v[{b+k}:{b+k+1}], v[{b+k}:{b+k+1}], v[{M+4*i+k}:{M+4*i+k+1}]")
            for rep in range(2 if i >= 2 else 1):
                if rep == 1:
                    add = "v244" if i == 2 else "1.0"
                    for k in range(4): g(f"v_add_f32 v{b+k}, {add}, v{b+k}")
                g(f"v_cvt_pk_bf16_f32 v{b}, v{b}, v{b+1}")
                g(f"v_cvt_pk_bf16_f32 v{b+2}, v{b+2}, v{b+3}")
                g(f"v_and_b32 v{b+1}, 0xffff0000, v{b}"); g(f"v_lshlrev_b32 v{b}, 16, v{b}")
                g(f"v_and_b32 v{b+3}, 0xffff0000, v{b+2}"); g(f"v_lshlrev_b32 v{b+2}, 16, v{b+2}")
            g(f"ds_write_b128 v243, v[{b}:{b+3}] offset:{1024*i}")
        g(f"v_cmp_ne_u32 vcc, s{SXC}, v249")
        g("s_cmp_eq_u64 vcc, 0")
        g(f"s_cselect_b32 s{S_FAST}, 1, 0")
        g(f"v_mov_b32 v248, s{S_FAST}")
        g(f"v_mov_b32 v249, {L_FAST}")
        g("ds_write_b32 v249, v248")
        g.wait_lg(0)
        def rd(i):
            b = 160 + 16 * (i % 3)
            g(f"ds_read_b128 v[{b}:{b+3}], v245 offset:{256*i}")
            g(f"ds_read_b128 v[{b+4}:{b+7}], v245 offset:{256*i+16}")
            g(f"ds_read_b128 v[{b+8}:{b+11}], v245 offset:{2560+256*i}")
            return g(f"ds_read_b128 v[{b+12}:{b+15}], v245 offset:{2560+256*i+16}")
        tk = {0: rd(0), 1: rd(1)}
        for i in range(10):
            if i + 2 < 10: tk[i + 2] = rd(i + 2)
            b = 160 + 16 * (i % 3)
            g.wait(tk[i])
            for e in range(0, 8, 2):
                g(f"v_pk_fma_f32 v[{Z+8*i+e}:{Z+8*i+e+1}], v[{Z+8*i+e}:{Z+8*i+e+1}], v[{b+8+e}:{b+9+e}], v[{b+e}:{b+e+1}]")
            for e in range(4):
                g(f"v_cvt_pk_bf16_f32 v{X+4*i+e}, v{Z+8*i+2*e}, v{Z+8*i+2*e+1}")
            g(f"buffer_store_dwordx4 v[{X+4*i}:{X+4*i+3}], v246, s[{R_WS}:{R_WS+3}], s{S_TMP} offen offset:{2048*(i%2)}")
            if i % 2 == 1 and i < 9: g(f"s_add_u32 s{S_TMP}, s{S_TMP}, 4096")
        self.publish(F_H, S_T, 8, 9)
        self.stamp("hpub")
        self.flag_off(S_TMP, F_H)
        self.poll(242, S_TMP, S_T, 4)
        g("s_branch L_p0_join")
        g.label("L_p0_dma")
        g.restore(snap)
        g.forget_vm()
        self.srd(R_A, P_WQKV, 640 * 3840)
        g("v_min_u32 v32, 39, v1")
        g(f"s_sub_u32 s{S_TMP+1}, s{S_W}, 1")
        g(f"s_mul_i32 s{S_TMP+2}, s{S_TMP+1}, 40")
        g(f"v_add_u32 v32, s{S_TMP+2}, v32")
        self.divmod_const(33, 34, 32, 30)
        g("v_mul_u32_u24 v33, 3840, v33")
        g("v_lshl_add_u32 v46, v34, 7, v33")
        ST, SO, SL, SR = S_TMP + 4, S_TMP + 2, S_TMP + 3, S_TMP + 5
        g(f"s_lshr_b32 s{ST}, s{S_B}, 3")
        g(f"s_mul_i32 s{ST}, s{ST}, {4*3840}")
        tt = []
        def touch(r):
            tt.append(g(f"buffer_load_dword v{47+r}, v46, s[{R_A}:{R_A+3}], s{ST} offen"))
            g(f"s_add_u32 s{ST}, s{ST}, {128*3840}")
        if cfg["coop"]:
            touch(0); touch(1)
        g(f"s_cmp_eq_u32 s{S_W}, 3")
        g("s_cbranch_scc1 L_p0_q")
        self.tile_regs(40, 5, 10, km["nat"], 3840, add=1280, T=32)
        g(f"s_mul_i32 s{SO}, s{S_J}, 160")
        g(f"s_mul_i32 s{S_TMP}, s{S_TMP+1}, {64*3840}")
        g(f"s_add_u32 s{SO}, s{SO}, s{S_TMP}")
        g(f"s_mul_i32 s{SL}, s{S_TMP+1}, 10240")
        g(f"s_mov_b32 s{SR}, {32*3840}")
        g(f"s_mov_b32 s{SR+1}, {96*3840}")
        g(f"s_mov_b32 s{SR+2}, 20480")
        g("s_branch L_p0_go")
        g.label("L_p0_q")
        self.tile_regs(40, 5, 5, km["q"], 3840, T=32)
        g(f"s_mul_i32 s{SO}, s{S_J}, 80")
        g(f"s_mov_b32 s{SL}, {L_WQ}")
        g(f"s_mov_b32 s{SR}, {64*3840}")
        g(f"s_mov_b32 s{SR+1}, {64*3840}")
        g(f"s_mov_b32 s{SR+2}, 10240")
        g.label("L_p0_go")
        for r in range(5):
            if cfg["coop"]: g.wait(tt[r])
            for h in range(2):
                items, toks = self.dma_items(range(40, 45), R_A, SO, SL, 5120 * h)
                for f in items: f()
                g(f"s_add_u32 s{SO}, s{SO}, s{SR+h}")
            g(f"s_add_u32 s{SL}, s{SL}, s{SR+2}")
            if cfg["coop"] and r + 2 < 5: touch(r + 2)
        self.make_tags()
        self.rp_setup(250)
        nyoung = 0
        if cfg["rp_at"] == "p0":
            for f in self.rp_load_items(): f()
            nyoung += 11
        self.stamp("l_iss")
        g.wait_vm(nyoung)
        self.stamp("l_kv")
        g.label("L_p0_join")
        g.forget()

    RP_A, RP_B, RP_D = 250, 37, 160
    def rp_setup(self, _):
        g = self.g
        km = self.kmaps()
        S = 84
        g(f"s_sub_u32 s{S}, s{S_W}, 1")
        g(f"s_lshl_b32 s{S}, s{S}, 8")
        g(f"s_add_u32 s{S}, s{S}, s{S_B}")
        g(f"s_and_b32 s{S+1}, s{S}, 1")
        g(f"s_lshr_b32 s{S+2}, s{S}, 1")
        g(f"s_and_b32 s{S+3}, s{S+2}, 15")
        g(f"s_lshr_b32 s{S+2}, s{S+2}, 4")
        g(f"s_cmp_eq_u32 s{S+1}, 0")
        g(f"s_cselect_b32 s{R_T}, s{P_WG}, s{P_WU}")
        g(f"s_cselect_b32 s{R_T+1}, s{P_WG+1}, s{P_WU+1}")
        g(f"s_mov_b32 s{R_T+2}, {640*3072}")
        g(f"s_mov_b32 s{R_T+3}, 0x20000")
        g(f"s_mul_i32 s{S+4}, s{S+2}, {32*3072}")
        g(f"s_mul_i32 s{S+5}, s{S+3}, 192")
        g(f"s_add_u32 s{S+4}, s{S+4}, s{S+5}")
        g(f"s_mul_i32 s{S+5}, s{S+3}, 245760")
        g(f"s_mul_i32 s{S+6}, s{S+2}, 6144")
        g(f"s_add_u32 s{S+5}, s{S+5}, s{S+6}")
        g(f"s_mul_i32 s{S+6}, s{S+1}, 3072")
        g(f"s_add_u32 s{S+5}, s{S+5}, s{S+6}")
        g(f"s_add_u32 s{S+5}, s{S+5}, {WS_RGU}")
        g(f"s_mul_i32 s{S+6}, s{S+3}, 20")
        g(f"s_add_u32 s{S+6}, s{S+6}, s{S+2}")
        g(f"s_lshl_b32 s{S+6}, s{S+6}, 1")
        g(f"s_add_u32 s{S+6}, s{S+6}, s{S+1}")
        g(f"s_lshl_b32 s{S+6}, s{S+6}, 2")
        g(f"s_sub_u32 s{S+7}, s{S}, 128")
        g(f"s_cmp_lt_u32 s{S}, 512")
        g(f"s_cselect_b32 s{S+7}, s{S}, s{S+7}")
        g(f"s_cmp_lt_u32 s{S}, 640")
        g(f"s_cselect_b32 s{S+8}, 1, 0")
        g(f"s_cmp_lt_u32 s{S}, 512")
        g(f"s_cselect_b32 s{S+9}, 1, 0")
        g(f"s_sub_u32 s{S+10}, s{S}, 640")
        g(f"s_cmp_lt_u32 s{S+10}, 32")
        g(f"s_cselect_b32 s{S+9}, 1, s{S+9}")
        g(f"s_cmp_lt_u32 s{S+7}, 160")
        g(f"s_cselect_b32 s{R_B}, s{P_WO}, s{P_WD}")
        g(f"s_cselect_b32 s{R_B+1}, s{P_WO+1}, s{P_WD+1}")
        g(f"s_mov_b32 s{R_B+2}, {640*1280}")
        g(f"s_cselect_b32 s{R_B+2}, s{R_B+2}, {1536*1280}")
        g(f"s_mov_b32 s{R_B+3}, 0x20000")
        g(f"s_cselect_b32 s{S+10}, 0, 160")
        g(f"s_cselect_b64 s[{S_TT}:{S_TT+1}], -1, 0")
        g(f"s_mov_b64 s[{S_TMP+6}:{S_TMP+7}], s[{S_TT}:{S_TT+1}]")
        g(f"s_cselect_b32 s{S+11}, 20, 48")
        g(f"s_mov_b32 s{S_TMP+8}, {WS_RWO}")
        g(f"s_cselect_b32 s{S_TMP+8}, s{S_TMP+8}, {WS_RWD}")
        g(f"s_mov_b32 s{S_TMP+9}, 4096")
        g(f"s_cselect_b32 s{S_TMP+9}, s{S_TMP+9}, 8192")
        g(f"s_sub_u32 s{S+7}, s{S+7}, s{S+10}")
        g(f"s_and_b32 s{S+10}, s{S+7}, 7")
        g(f"s_lshr_b32 s{S+7}, s{S+7}, 3")
        g(f"s_mul_i32 s{S+11}, s{S+11}, s{S+10}")
        g(f"s_add_u32 s{S+11}, s{S+11}, s{S+7}")
        g(f"s_mul_i32 s{S+7}, s{S+7}, {32*1280}")
        g(f"s_mul_i32 s{S+10}, s{S+10}, 160")
        g(f"s_add_u32 s{S+7}, s{S+7}, s{S+10}")
        g(f"s_mul_i32 s{S+10}, s{S+11}, 5120")
        g(f"s_add_u32 s{S+10}, s{S+10}, s{S_TMP+8}")
        g(f"s_lshl_b32 s{S+11}, s{S+11}, 2")
        g(f"s_add_u32 s{S+11}, s{S+11}, s{S_TMP+9}")
        g(f"s_cmp_eq_u32 s{S+8}, 0")
        for r in (S+4, S+5, S+6): g(f"s_cselect_b32 s{r}, {OOB}, s{r}")
        g(f"s_cmp_eq_u32 s{S+9}, 0")
        for r in (S+7, S+10, S+11): g(f"s_cselect_b32 s{r}, {OOB}, s{r}")
        g(f"s_add_u32 s{S+8}, s{S+5}, 122880")
        g(f"s_add_u32 s{S+9}, s{S+10}, 4096")
        T = 32
        for n in range(5):
            g(f"v_add_u32 v{T}, {64*n}, v1")
            self.divmod_const(T+1, T+2, T, 10)
            km["nat"][0](T+3, T+1, T+4)
            g(f"v_cndmask_b32 v{T+3}, v{T+1}, v{T+3}, s[{S_TMP+6}:{S_TMP+7}]")
            g(f"v_mul_u32_u24 v{T+3}, 1280, v{T+3}")
            g(f"v_lshl_add_u32 v{self.RP_A+n}, v{T+2}, 4, v{T+3}")
        for n in range(3):
            g(f"v_add_u32 v{T}, {64*n}, v1")
            self.divmod_const(T+1, T+2, T, 6)
            km["nat"][0](T+3, T+1, T+4)
            g(f"v_mul_u32_u24 v{T+3}, 3072, v{T+3}")
            g(f"v_lshl_add_u32 v{self.RP_B+n}, v{T+2}, 4, v{T+3}")
    def rp_load_items(self):
        g = self.g
        out = []
        for n in range(6):
            d = self.RP_D + 4 * n
            out.append(lambda n=n, d=d: g(f"buffer_load_dwordx4 v[{d}:{d+3}], v{self.RP_B+n%3}, s[{R_T}:{R_T+3}], s88 offen offset:{96*(n//3)} nt"))
        for n in range(5):
            d = self.RP_D + 24 + 4 * n
            out.append(lambda n=n, d=d: g(f"buffer_load_dwordx4 v[{d}:{d+3}], v{self.RP_A+n}, s[{R_B}:{R_B+3}], s91 offen nt"))
        return out
    def rp_store_items(self):
        g = self.g
        out = []
        for n in range(6):
            d = self.RP_D + 4 * n
            out.append(lambda n=n, d=d: g(f"buffer_store_dwordx4 v[{d}:{d+3}], v{V_L16}, s[{R_WS}:{R_WS+3}], s{89 if n < 3 else 92} offen offset:{1024*(n%3)} sc1"))
        for n in range(5):
            d = self.RP_D + 24 + 4 * n
            out.append(lambda n=n, d=d: g(f"buffer_store_dwordx4 v[{d}:{d+3}], v{V_L16}, s[{R_WS}:{R_WS+3}], s{94 if n < 4 else 93} offen offset:{1024*(n%4)} sc1"))
        return out
    def rp_flags(self):
        g = self.g
        g(f"v_mov_b32 v4, s{S_T}")
        g(f"s_mov_b32 s100, {WS_RF}")
        g("v_mov_b32 v3, s90")
        g("v_writelane_b32 v3, s95, 1")
        g("s_mov_b64 exec, 3")
        g(f"buffer_store_dword v4, v3, s[{R_WS}:{R_WS+3}], s100 offen sc1")
        g("s_mov_b64 exec, -1")
    def lin_items(self, n, soff, lds_sreg, lds_const, step_after=None, flags=""):
        g = self.g
        toks, out = [], []
        for i in range(n):
            def f(i=i):
                if i % 4 == 0:
                    c = lds_const + i * 1024
                    if lds_sreg is None: g(f"s_mov_b32 m0, {c}")
                    else: g(f"s_add_u32 m0, s{lds_sreg}, {c}")
                    if i == 4: g(f"s_add_u32 s{soff}, s{soff}, 4096")
                toks.append(g(f"buffer_load_dwordx4 v{V_L16}, s[{R_WS}:{R_WS+3}], s{soff} offen offset:{(i%4)*1024} {flags} lds"))
                if i == n - 1 and step_after is not None:
                    g(f"s_add_u32 s{soff}, s{soff}, {step_after - (4096 if n > 4 else 0)}")
            out.append(f)
        return out, toks

    def p1(self):
        g = self.g
        cfg = self.cfg
        SB0 = S_TMP + 14
        g(f"s_lshl_b32 s{SB0}, s{S_RB}, 2")
        g(f"s_add_u32 s{SB0}, s{SB0}, s{S_W}")
        g(f"s_mul_i32 s{SB0}, s{SB0}, 40960")
        g(f"s_add_u32 s{SB0}, s{SB0}, {WS_H}")
        g(f"s_add_u32 s{SB0+1}, s{SB0}, 20480")
        pc = Pacer()
        self.barrier()
        self.stamp("hseen")
        g(f"v_mov_b32 v3, {L_FAST}")
        g("ds_read_b32 v4, v3")
        g(f"v_readfirstlane_b32 s{S_FAST}, v4")
        self.acquire()
        btok = self.bitems(pc, 20, SB0)
        pc.force(2 * cfg["lb"])
        if cfg["rp_at"] == "p0":
            for f in self.rp_store_items(): pc.add(f, 60)
        else:
            for f in self.rp_load_items(): pc.add(f, 60)
        ACC, AB = 40, 80
        self.gemm16(20, 5, ACC, AB,
                    lambda s_, t, hi: (V_KV0 if s_ < 10 else V_KV1, (s_ % 10) * 5120 + hi * 2560 + 32 * t),
                    lambda s_, Tp: a_((Tp * 20 + s_) * 4, 4), pacer=pc, btok=btok)
        pc.drain()
        self.stamp("kvgemm")
        g("v_and_b32 v32, 127, v0")
        g("v_mul_u32_u24 v32, 48, v32")
        g("v_lshrrev_b32 v33, 7, v0")
        g("v_mul_u32_u24 v33, 6144, v33")
        g("v_add_u32 v32, v32, v33")
        g(f"v_add_u32 v32, {L_PUB + 40}, v32")
        g(f"s_cmp_lt_u32 s{S_J}, 8")
        g(f"s_mov_b32 s{S_TMP}, 0x3f803f80")
        g(f"s_cselect_b32 s{S_TMP+1}, 0x3f800000, s{S_TMP}")
        g(f"v_mov_b32 v34, s{S_TMP+1}"); g(f"v_mov_b32 v35, s{S_TMP}")
        for Tp in range(2):
            for t in range(5):
                D = ACC + (Tp * 5 + t) * 4
                g(f"v_cvt_pk_bf16_f32 v{D}, v{D}, v{D+1}")
                g(f"v_cvt_pk_bf16_f32 v{D+1}, v{D+2}, v{D+3}")
        self.barrier()
        for Tp in range(2):
            for t in range(5):
                D = ACC + (Tp * 5 + t) * 4
                g(f"ds_write_b64 v{V_KVW+t}, v[{D}:{D+1}] offset:{768*Tp}")
        g("ds_write_b64 v32, v[34:35]")
        g("ds_write_b64 v32, v[34:35] offset:12288")
        g(f"s_mul_i32 s{S_TMP}, s{S_W}, 6144")
        g(f"s_add_u32 s{S_TMP}, s{S_TMP}, {L_PUB}")
        g(f"v_add_u32 v33, s{S_TMP}, v{V_L16}")
        g(f"s_lshl_b32 s{S_TMP}, s{S_RB}, 4")
        g(f"s_add_u32 s{S_TMP}, s{S_TMP}, s{S_J}")
        g(f"s_lshl_b32 s{S_TMP}, s{S_TMP}, 2")
        g(f"s_add_u32 s{S_TMP}, s{S_TMP}, s{S_W}")
        g(f"s_mul_i32 s{S_TMP}, s{S_TMP}, 6144")
        g(f"s_add_u32 s{S_TMP}, s{S_TMP}, {WS_KV}")
        g(f"s_add_u32 s{S_TMP+1}, s{S_TMP}, 4096")
        g.wait_lg(0)
        self.barrier()
        for i in range(6):
            g(f"ds_read_b128 v[{ACC+4*i}:{ACC+4*i+3}], v33 offset:{1024*i}")
        for i in range(6):
            sttok = g(f"buffer_store_dwordx4 v[{ACC+4*i}:{ACC+4*i+3}], v{V_L16}, s[{R_WS}:{R_WS+3}], s{S_TMP + i//4} offen offset:{(1024*i) % 4096} sc1")
        self.stamp("kvst")
        QACC = 120
        pc = Pacer()
        hooks = {}
        rp_last = []
        if cfg["rp_at"] != "p0":
            for f in self.rp_store_items(): rp_last.append(f())
        def flags():
            g.wait(sttok)
            self.stamp("kvdrain")
            sc = self.SC; self.SC = "sc1"
            self.send_flag(F_KV, S_T, 3, 4)
            self.SC = sc
            if cfg["rp_at"] == "p0": self.rp_flags()
        hooks[cfg["kvflag_step"]] = flags
        def last():
            if rp_last:
                g.wait(rp_last[-1])
                self.rp_flags()
            self.barrier()
        hooks[19] = last
        self.gemm16(20, 3, QACC, AB,
                    lambda s_, t, hi: (V_Q, s_ * 2560 + hi * 1280 + 32 * t),
                    lambda s_, Tp: a_((Tp * 20 + s_) * 4, 4), pacer=pc, hooks=hooks)
        pc.drain()
        snap = g.snapshot()
        g(f"s_cmp_ge_u32 s{S_B}, 200")
        g("s_cbranch_scc1 L_late0")
        g(f"s_mul_i32 s{S_PK}, s{S_B}, 1639")
        g(f"s_lshr_b32 s{S_PK}, s{S_PK}, 16")
        g(f"s_mul_i32 s{S_P}, s{S_PK}, 40")
        g(f"s_sub_u32 s{S_P}, s{S_B}, s{S_P}")
        g(f"s_add_u32 s{S_P}, s{S_P}, 20")
        self.gemv_loads(80, 160, 4)
        g.label("L_late0")
        g.restore(snap)
        g(f"s_mov_b32 s{S_TMP}, {hx(fbits(QSCALE))}")
        for Tp in range(2):
            for t in range(3):
                D = QACC + (Tp * 3 + t) * 4
                for k in range(4): g(f"v_mul_f32 v{D+k}, s{S_TMP}, v{D+k}")
                g(f"v_cvt_pk_bf16_f32 v{D}, v{D}, v{D+1}")
                g(f"v_cvt_pk_bf16_f32 v{D+1}, v{D+2}, v{D+3}")
                g(f"ds_write_b64 v{V_QW+t}, v[{D}:{D+1}] offset:{768*Tp}")
        self.stamp("qgemm")
        snap = g.snapshot()
        g(f"s_cmp_ge_u32 s{S_B}, 200")
        g("s_cbranch_scc1 L_late1")
        g.vm.append(Tok("vm", {("v", 84), ("v", 85)}))
        g.vm += [Tok("vm", {("v", 160 + 4*i + k) for k in range(4)}) for i in range(4)]
        self.gemv_finish(80, 160, 200, "L_late1", False, 4, WS_MODL - 5120, 10240)
        g.label("L_late1")
        g.restore(snap)

    def p2(self):
        g = self.g
        cfg = self.cfg
        S0, S1, S2, O0, O1, P, VF, QF = 40, 56, 72, 88, 104, 120, 128, 144
        XR = 240
        g(f"s_cmp_lg_u32 s{S_W}, 0")
        g("s_cbranch_scc1 L_kvseen")
        self.flag_off(S_TMP, F_KV)
        g("v_lshrrev_b32 v3, 2, v1")
        g(f"s_min_u32 s{S_TMP+1}, s{S_RB}, 2")
        g(f"v_min_u32 v3, s{S_TMP+1}, v3")
        g(f"s_lshl_b32 s{S_TMP+1}, s{S_TMP+1}, 8")
        g(f"s_sub_u32 s{S_TMP}, s{S_TMP}, s{S_TMP+1}")
        g("v_lshlrev_b32 v3, 8, v3")
        g("v_bfe_u32 v4, v1, 1, 1")
        g("v_lshl_add_u32 v3, v4, 7, v3")
        g("v_and_b32 v4, 1, v1")
        g("v_lshl_add_u32 v3, v4, 2, v3")
        g(f"s_lshl_b32 s{S_TMP+1}, s{S_CQ}, 4")
        g(f"s_lshl_b32 s{S_TMP+2}, s{S_RH}, 3")
        g(f"s_add_u32 s{S_TMP+1}, s{S_TMP+1}, s{S_TMP+2}")
        g(f"v_add_u32 v3, s{S_TMP+1}, v3")
        g(f"s_min_u32 s{S_TMP+1}, s{S_RB}, 2")
        g(f"s_lshl_b32 s{S_TMP+1}, s{S_TMP+1}, 8")
        g("v_and_b32 v4, 15, v1")
        g("v_lshlrev_b32 v4, 4, v4")
        g(f"v_add_u32 v4, s{S_TMP+1}, v4")
        g(f"v_cndmask_b32 v3, v3, v4, s[{S_HALF}:{S_HALF+1}]")
        keep = g.snapshot()
        self.poll(3, S_TMP, S_T, 4)
        g.label("L_kvseen")
        g.restore(keep)
        SK = S_TMP + 2
        g(f"s_lshl_b32 s{SK}, s{S_RB}, 4")
        g(f"s_add_u32 s{SK}, s{SK}, s{S_CQ}")
        g(f"s_lshl_b32 s{SK}, s{SK}, 2")
        g(f"s_lshl_b32 s{S_TMP}, s{S_RH}, 1")
        g(f"s_add_u32 s{SK}, s{SK}, s{S_TMP}")
        g(f"s_add_u32 s{SK}, s{SK}, s{S_KH}")
        g(f"s_mul_i32 s{SK}, s{SK}, 6144")
        g(f"s_mul_i32 s{S_TMP}, s{S_TP}, 3072")
        g(f"s_add_u32 s{SK}, s{SK}, s{S_TMP}")
        g(f"s_add_u32 s{SK}, s{SK}, {WS_KV}")
        for d in (1, 2):
            g(f"s_sub_u32 s{SK+d}, s{SK}, {d*64*6144}")
            g(f"s_cmp_ge_u32 s{S_RB}, {d}")
            g(f"s_cselect_b32 s{SK+d}, s{SK+d}, {OOB}")
        g(f"s_mul_i32 s{S_TMP+1}, s{S_KH}, 18432")
        g(f"s_add_u32 s{S_TMP+1}, s{S_TMP+1}, s{S_TMP}")
        g(f"v_add_u32 v32, {L_QB}, v{V_K1}")
        g(f"v_add_u32 v33, {L_QB}, v{V_K2}")
        g.wait_lg(0)
        for u in range(2):
            g(f"ds_read_b128 v[{QF+8*u}:{QF+8*u+3}], v32 offset:{6144*u}")
            g(f"ds_read_b64 v[{QF+8*u+4}:{QF+8*u+5}], v33 offset:{6144*u}")
        g(f"s_mul_i32 s{S_TMP+5}, s{S_W}, 2560")
        g(f"s_mul_i32 s{S_TMP+6}, s{S_CQ}, 320")
        g(f"s_add_u32 s{S_TMP+5}, s{S_TMP+5}, s{S_TMP+6}")
        g(f"s_add_u32 s{S_TMP+5}, s{S_TMP+5}, {WS_MODL}")
        self.barrier()
        self.stamp("haloseen")
        for mv in range(2):
            for d in (2, 1, 0):
                g(f"s_add_u32 m0, s{S_TMP+1}, {L_KVB + 36864*mv + 6144*(2-d)}")
                if mv: g(f"s_add_u32 s{SK+d}, s{SK+d}, {32*6144}")
                for i in range(3):
                    t = g(f"buffer_load_dwordx4 v{V_L16}, s[{R_WS}:{R_WS+3}], s{SK+d} offen offset:{1024*i} sc1 lds")
            if mv == 0: ktok = t
            else: vtok = t
        g("v_mov_b32 v34, 0x3f80")
        for u in range(2):
            g(f"v_cndmask_b32 v{QF+8*u+4}, v{QF+8*u+4}, v34, s[{S_HALF}:{S_HALF+1}]")
            g(f"v_cndmask_b32 v{QF+8*u+5}, v{QF+8*u+5}, 0, s[{S_HALF}:{S_HALF+1}]")
        g(f"s_cmp_eq_u32 s{S_W}, 2")
        g(f"s_cselect_b32 s{S_TMP+7}, 1.0, 0")
        g(f"s_mov_b32 s{S_TMP+8}, {hx(fbits(NLOG2E))}")
        g(f"s_cmp_eq_u32 s{S_W}, 0")
        g(f"s_cselect_b32 s{S_TMP+8}, 1.0, s{S_TMP+8}")
        g(f"s_cmp_eq_u32 s{S_W}, 3")
        g(f"s_cselect_b32 s{S_TMP+8}, {hx(fbits(1/NLOG2E))}, s{S_TMP+8}")
        self.srd(R_A, P_X, 2048 * 1280)
        SO, SL, SG = S_TMP + 12, S_TMP + 13, S_TMP + 16
        g(f"s_mul_i32 s{SO}, s{S_CQ}, 20")
        g(f"s_add_u32 s{SO}, s{SO}, s{S_W}")
        g(f"s_lshl_b32 s{S_TMP+9}, s{SO}, 2")
        g(f"s_mul_i32 s{SO}, s{SO}, 5120")
        g(f"s_add_u32 s{SO}, s{SO}, {WS_RWO}")
        g(f"s_mul_i32 s{SL}, s{S_W}, 5120")
        g(f"s_mul_i32 s{SG}, s{S_J}, 245760")
        g(f"s_mul_i32 s{S_TMP+10}, s{S_W}, 3072")
        g(f"s_add_u32 s{SG}, s{SG}, s{S_TMP+10}")
        g(f"s_add_u32 s{SG}, s{SG}, {WS_RGU}")
        g("v_min_u32 v35, 9, v1")
        g("v_lshlrev_b32 v35, 4, v35")
        g(f"s_mul_i32 s{S_TMP+10}, s{S_J}, 160")
        g(f"s_lshl_b32 s{S_TMP}, s{S_W}, 2")
        g(f"s_add_u32 s{S_TMP+10}, s{S_TMP+10}, s{S_TMP}")
        g(f"v_add_u32 v35, s{S_TMP+10}, v35")
        g("v_subrev_u32 v36, 10, v1")
        g("v_lshlrev_b32 v36, 4, v36")
        g(f"s_add_u32 s{S_TMP+9}, s{S_TMP+9}, 4096")
        g(f"v_add_u32 v36, s{S_TMP+9}, v36")
        g(f"v_cmp_lt_u32 s[{S_TT}:{S_TT+1}], 9, v1")
        g(f"v_cndmask_b32 v35, v35, v36, s[{S_TT}:{S_TT+1}]")
        g("v_min_u32 v36, 26, v1")
        g("v_subrev_u32 v36, 15, v36")
        g("v_lshlrev_b32 v36, 3, v36")
        g(f"s_mul_i32 s{S_TMP+9}, s{S_CQ}, 48")
        g(f"s_mul_i32 s{S_TMP+10}, s{S_KH}, 24")
        g(f"s_add_u32 s{S_TMP+9}, s{S_TMP+9}, s{S_TMP+10}")
        g(f"s_add_u32 s{S_TMP+9}, s{S_TMP+9}, s{S_TP}")
        g(f"s_lshl_b32 s{S_TMP+9}, s{S_TMP+9}, 2")
        g(f"s_add_u32 s{S_TMP+9}, s{S_TMP+9}, 8192")
        g(f"v_add_u32 v36, s{S_TMP+9}, v36")
        g(f"v_cmp_lt_u32 s[{S_TT}:{S_TT+1}], 14, v1")
        g(f"v_cndmask_b32 v35, v35, v36, s[{S_TT}:{S_TT+1}]")
        g(f"s_mov_b32 s{S_TMP+10}, {WS_RF}")
        g.wait(ktok)
        g(f"s_cmp_ge_u32 s{S_RB}, 2")
        g("s_cbranch_scc1 L_noinv")
        g("v_mul_u32_u24 v3, 48, v1")
        g(f"v_add_u32 v3, s{S_TMP+1}, v3")
        g(f"v_mov_b32 v8, {hx(0x3f800000 | (NEG_BIG >> 16))}")
        g("v_mov_b32 v9, 0x3f803f80")
        g(f"ds_write_b64 v3, v[8:9] offset:{L_KVB + 40}")
        g(f"s_cmp_ge_u32 s{S_RB}, 1")
        g("s_cbranch_scc1 L_noinv")
        g(f"ds_write_b64 v3, v[8:9] offset:{L_KVB + 6144 + 40}")
        g.label("L_noinv")
        g.wait_lg(0)
        self.barrier()
        self.stamp("attn0")
        pc = Pacer()
        for t in range(5):
            pc.add(lambda t=t: g(f"buffer_load_dwordx2 v[{XR+2*t}:{XR+2*t+1}], v{V_XR}, s[{R_A}:{R_A+3}], s{S_TMP+11} offen offset:{32*t}"), 100)
        if cfg["touch"]:
            g(f"s_lshl_b32 s{S_TMP+9}, s{S_RB}, 3")
            g(f"s_add_u32 s{S_TMP+9}, s{S_TMP+9}, s{S_CQ}")
            g(f"s_lshl_b32 s{S_TMP+9}, s{S_TMP+9}, 3")
            g(f"s_lshl_b32 s{S_TMP}, s{S_RH}, 2")
            g(f"s_add_u32 s{S_TMP+9}, s{S_TMP+9}, s{S_TMP}")
            g(f"s_add_u32 s{S_TMP+9}, s{S_TMP+9}, s{S_W}")
            g(f"s_lshl_b32 s{S_TMP+9}, s{S_TMP+9}, 8")
            g(f"s_add_u32 s{S_TMP+9}, s{S_TMP+9}, {WS_ST}")
            g("v_lshlrev_b32 v32, 2, v1")
            pc.add(lambda: g(f"buffer_load_dword v33, v32, s[{R_WS}:{R_WS+3}], s{S_TMP+9} offen"), 100)
        cost = cfg["attn_cost"]
        for it in range(4):
            items, _ = self.lin_items(5, SO, SL, L_WO_E + it * 20480, step_after=20480, flags="sc1")
            for f in items: pc.add(f, cfg["wo_cost"], 1)
        for d in range(cfg["stage"]):
            for n in range(3):
                def f(d=d, n=n):
                    r = A_STG + 12 * d + 4 * n
                    g(f"buffer_load_dwordx4 a[{r}:{r+3}], v{V_L16}, s[{R_WS}:{R_WS+3}], s{SG} offen offset:{1024*n} sc1")
                    if n == 2: g(f"s_add_u32 s{SG}, s{SG}, 12288")
                pc.add(f, cfg["gu_cost"], 1)
        phase = [0]
        def tick(dt): pc.tick(dt, phase[0])
        def rp_issue():
            self.rp_tok = g(f"buffer_load_dword v36, v35, s[{R_WS}:{R_WS+3}], s{S_TMP+10} offen sc1")
        def rp_check():
            Ls, Lj = g.newlabel("Lrs"), g.newlabel("Lrj")
            g(f"v_cmp_ne_u32 vcc, s{S_T}, v36")
            g(f"s_cbranch_vccnz {Ls}")
            g.label(Lj)
            def slow():
                L2 = g.newlabel("Lrl")
                g.label(Ls)
                g.raw(f"s_mov_b32 s{S_CNT}, {POLL_MAX}")
                g.label(L2)
                g.raw(f"buffer_load_dword v36, v35, s[{R_WS}:{R_WS+3}], s{S_TMP+10} offen sc1")
                g.raw("s_waitcnt vmcnt(0)")
                g.raw(f"v_cmp_ne_u32 vcc, s{S_T}, v36")
                g.raw(f"s_cbranch_vccz {Lj}")
                g.raw(f"s_sub_u32 s{S_CNT}, s{S_CNT}, 1")
                g.raw(f"s_cbranch_scc0 {L2}")
                g.raw(f"s_branch {Lj}")
            self.cold.append(slow)
            phase[0] = 1
            pc.free = pc.t
        VG = 160
        def vec_issue():
            for k in range(5):
                g(f"s_add_u32 s{S_TMP+6}, s{S_TMP+5}, {10240*k}")
                g(f"buffer_load_dwordx4 v[{VG+4*k}:{VG+4*k+3}], v{V_VEC}, s[{R_WS}:{R_WS+3}], s{S_TMP+6} offen sc1")
        def vec_check():
            Ls, Lj = g.newlabel("Lvs"), g.newlabel("Lvj")
            def chk():
                for k in range(5): self.tagcheck(VG + 20, range(VG + 4*k, VG + 4*k + 4), k == 0)
                g(f"v_and_b32 v{VG+20}, 0xff, v{VG+20}")
                g(f"v_cmp_ne_u32 vcc, 0, v{VG+20}")
            chk()
            g(f"s_cbranch_vccnz {Ls}")
            g.label(Lj)
            def slow():
                L2 = g.newlabel("Lvl")
                g.label(Ls)
                g.forget()
                g(f"s_mov_b32 s{S_CNT}, {POLL_MAX}")
                g.label(L2)
                vec_issue()
                g.wait_vm(0)
                chk()
                g(f"s_cbranch_vccz {Lj}")
                g(f"s_sub_u32 s{S_CNT}, s{S_CNT}, 1")
                g(f"s_cbranch_scc0 {L2}")
                g(f"s_branch {Lj}")
            self.cold.append(slow)
            b = VG
            for q in range(1, 5):
                for k in (0, 2): g(f"v_pk_add_f32 v[{b+k}:{b+k+1}], v[{b+k}:{b+k+1}], v[{b+4*q+k}:{b+4*q+k+1}]")
            for rep in range(2):
                if rep:
                    for k in range(4): g(f"v_add_f32 v{b+k}, s{S_TMP+7}, v{b+k}")
                g(f"v_cvt_pk_bf16_f32 v{b+4}, v{b}, v{b+1}")
                g(f"v_cvt_pk_bf16_f32 v{b+5}, v{b+2}, v{b+3}")
                self.unpack(b, b + 1, b + 4); self.unpack(b + 2, b + 3, b + 5)
            for k in range(4): g(f"v_mul_f32 v{b+k}, s{S_TMP+8}, v{b+k}")
            g(f"s_mul_i32 s{S_TMP}, s{S_W}, 320")
            g(f"s_add_u32 s{S_TMP}, s{S_TMP}, {L_VEC}")
            g(f"v_add_u32 v3, s{S_TMP}, v{V_VEC}")
            g(f"ds_write_b128 v3, v[{b}:{b+3}]")
        SB = (S0, S1, S2)
        def kread(u, tau):
            g(f"ds_read_b128 a[{8*tau}:{8*tau+3}], v{V_K1} offset:{L_KVB + 18432*u + 1536*tau}")
            return g(f"ds_read_b64 a[{8*tau+4}:{8*tau+5}], v{V_K2} offset:{L_KVB + 18432*u + 1536*tau}")
        def qk_a(u, tau):
            Sx = SB[tau % 3]
            C = v(V_BF, 16) if tau == 0 else v(V_BD, 16) if tau == 8 else "0"
            g(f"v_mfma_f32_32x32x16_bf16 v[{Sx}:{Sx+15}], a[{8*tau}:{8*tau+3}], v[{QF+8*u}:{QF+8*u+3}], {C}")
        def qk_b(u, tau):
            Sx = SB[tau % 3]
            g(f"v_mfma_f32_32x32x8_bf16 v[{Sx}:{Sx+15}], a[{8*tau+4}:{8*tau+5}], v[{QF+8*u+4}:{QF+8*u+5}], v[{Sx}:{Sx+15}]")
        def vread(u, tau, kp):
            b = VF + 8 * (tau % 2)
            for rd in range(2):
                g(f"ds_read_b64_tr_b16 v[{b+4*kp+2*rd}:{b+4*kp+2*rd+1}], v{V_VT} offset:{18432*u + 1536*tau + 768*kp + 384*rd}")
        for u in range(2):
            O = (O0, O1)[u]
            kt = {}
            if u == 0 and not cfg["rp_poll"]: rp_issue()
            for tau in range(4): kt[tau] = kread(u, tau)
            g.wait(kt[1])
            qk_a(u, 0); kt[4] = kread(u, 4); qk_b(u, 0)
            qk_a(u, 1); kt[5] = kread(u, 5); qk_b(u, 1)
            def mx(tau, ks):
                Sx = SB[tau % 3]
                for k in ks:
                    m = 8 + (k & 1)
                    if tau == 0 and k < 2: g(f"v_max_f32 v{m}, v{Sx+2*k}, v{Sx+2*k+1}")
                    else: g(f"v_max3_f32 v{m}, v{Sx+2*k}, v{Sx+2*k+1}, v{m}")
            for tau in range(9):
                if tau + 2 < 9:
                    if tau % 2 == 0: g.wait(kt[min(tau + 3, 8)])
                    qk_a(u, tau + 2)
                    if tau + 6 < 9: kt[tau + 6] = kread(u, tau + 6)
                    else: tick(64)
                    mx(tau, range(0, 4))
                    qk_b(u, tau + 2)
                    mx(tau, range(4, 8))
                elif tau == 7:
                    if u == 0:
                        g.wait(vtok)
                        self.barrier()
                        if not cfg["rp_poll"]: rp_check()
                    qk_a(u, 0)
                    vread(u, 0, 0); vread(u, 0, 1)
                    mx(tau, range(8))
                else:
                    qk_a(u, 1)
                    mx(tau, range(8))
            g("v_max_f32 v8, v8, v9")
            g("v_mov_b32 v9, v8")
            g("v_permlane32_swap_b32 v8, v9")
            g("v_max_f32 v8, v8, v9")
            g("v_sub_f32 v8, 0, v8")
            g("v_and_b32 v9, 0xffff0000, v8")
            g("v_sub_f32 v8, v8, v9")
            g("v_or_b32 v9, 0x3f80, v9")
            g("v_and_b32 v3, 0xffff0000, v8")
            g("v_sub_f32 v8, v8, v3")
            g("v_lshrrev_b32 v3, 16, v3")
            g("v_and_b32 v8, 0xffff0000, v8")
            g("v_or_b32 v8, v8, v3")
            g(f"v_cndmask_b32 v{QF+8*u+4}, v{QF+8*u+4}, v9, s[{S_HALF}:{S_HALF+1}]")
            g(f"v_cndmask_b32 v{QF+8*u+5}, v{QF+8*u+5}, v8, s[{S_HALF}:{S_HALF+1}]")
            qk_b(u, 0)
            qk_b(u, 1)
            def pv(tau, kp):
                b = VF + 8 * (tau % 2) + 4 * kp
                C = "0" if (tau == 0 and kp == 0) else v(O, 16)
                g(f"v_mfma_f32_32x32x16_bf16 v[{O}:{O+15}], v[{b}:{b+3}], v[{P+4*kp}:{P+4*kp+3}], {C}")
            for tau in range(9):
                Sx = SB[tau % 3]
                def ex(k0):
                    for k in range(k0, k0 + 4): g(f"v_exp_f32 v{Sx+k}, v{Sx+k}")
                def cv(k0):
                    for k in (k0, k0 + 2): g(f"v_cvt_pk_bf16_f32 v{P+k//2}, v{Sx+k}, v{Sx+k+1}")
                if u == 0 and cfg["rp_poll"] and tau == cfg["rp_poll"]: rp_issue()
                if u == 0 and cfg["rp_poll"] and tau == cfg["rp_poll"] + 2: rp_check()
                if u == 1 and tau == cfg["vec_at"]: vec_issue()
                if tau > 0: pv(tau - 1, 1)
                ex(0)
                if tau + 1 < 9: vread(u, tau + 1, 0)
                tick(54)
                if tau + 2 < 9: qk_a(u, tau + 2)
                ex(4); cv(0); cv(4)
                if tau + 1 < 9: vread(u, tau + 1, 1)
                pv(tau, 0)
                tick(54)
                ex(8)
                if tau + 2 < 9: qk_b(u, tau + 2)
                tick(54)
                ex(12); cv(8); cv(12)
                tick(54)
            pv(8, 1)
        pc.drain()
        vec_check()
        E = S0
        g(f"s_lshl_b32 s{S_TMP}, s{S_RB}, 2")
        g(f"s_add_u32 s{S_TMP}, s{S_TMP}, s{S_W}")
        g(f"s_mul_i32 s{S_TMP}, s{S_TMP}, 40960")
        g(f"s_mul_i32 s{S_TMP+1}, s{S_J}, 1280")
        g(f"s_add_u32 s{S_TMP}, s{S_TMP}, s{S_TMP+1}")
        g(f"s_add_u32 s{S_TMP}, s{S_TMP}, {WS_O}")
        for u in range(2):
            O = (O0, O1)[u]
            g(f"v_mov_b32 v8, v{O+8}")
            g(f"v_mov_b32 v9, v{O+8}")
            g("v_permlane32_swap_b32 v8, v9")
            g("v_rcp_f32 v9, v9")
            for k in range(12): g(f"v_mul_f32 v{O+k}, v{O+k}, v9")
        for (dst, src) in ((E, O0), (E+2, O0+4), (E+4, O0+8), (E+6, O1), (E+8, O1+4), (E+10, O1+8)):
            g(f"v_cvt_pk_bf16_f32 v{dst}, v{src}, v{src+1}")
            g(f"v_cvt_pk_bf16_f32 v{dst+1}, v{src+2}, v{src+3}")
        for k in range(2):
            g(f"v_permlane32_swap_b32 v{E+k}, v{E+2+k}")
            g(f"v_permlane32_swap_b32 v{E+6+k}, v{E+10+k}")
        g(f"buffer_store_dwordx4 v[{E}:{E+3}], v{V_OST}, s[{R_WS}:{R_WS+3}], s{S_TMP} offen")
        for k in range(2):
            g(f"v_cndmask_b32 v{E+12+k}, v{E+10+k}, v{E+8+k}, s[{S_HALF}:{S_HALF+1}]")
            g(f"v_cndmask_b32 v{E+14+k}, v{E+8+k}, v{E+6+k}, s[{S_HALF}:{S_HALF+1}]")
        g(f"buffer_store_dwordx4 v[{E+12}:{E+15}], v{V_OST}, s[{R_WS}:{R_WS+3}], s{S_TMP} offen offset:768")
        g("s_mov_b64 exec, 0xffffffff")
        g(f"buffer_store_dwordx4 v[{E+4}:{E+7}], v{V_OST}, s[{R_WS}:{R_WS+3}], s{S_TMP} offen offset:512")
        g("s_mov_b64 exec, -1")
        self.stamp("attn1")
        self.publish(F_O, S_T, 8, 9)
        g.wait_lg(0)
        self.stamp("opub")

    def gu_items(self):
        d = self.gu_next; self.gu_next += 1
        items, toks = self.lin_items(3, S_TMP + 16, S_TMP + 17, ((d + 4) % GU_NSLOT) * GU_SLOT, step_after=12288, flags="sc1")
        self.gu_tok[d] = toks
        return items
    def gu_flush(self, n):
        g = self.g
        for _ in range(n):
            if self.fl_next >= self.cfg["stage"]: return
            d = self.fl_next; self.fl_next += 1
            slot = (d + 4) % GU_NSLOT
            va, so = (32, 33, 34)[slot // 5], (slot % 5) * GU_SLOT
            for k in range(3):
                r = A_STG + 12 * d + 4 * k
                g(f"ds_write_b128 v{va}, a[{r}:{r+3}] offset:{so + 1024*k}")

    def p3(self):
        g = self.g
        cfg = self.cfg
        XR, X1 = 240, 230
        ACC, AB = 40, 80
        SB0 = S_TMP + 14
        assert cfg["stage"] <= 9
        self.gu_next, self.gu_tok, self.fl_next = cfg["stage"], {}, 0
        self.barrier()
        items, _ = self.lin_items(5, S_TMP + 12, S_TMP + 13, 0, flags="sc1")
        for f in items: f()
        g(f"s_mul_i32 s{S_TMP+2}, s{S_KH}, 51200")
        g(f"s_add_u32 s{S_TMP+2}, s{S_TMP+2}, {L_WO_E}")
        g(f"v_add_u32 v5, s{S_TMP+2}, v{V_T160}")
        g(f"s_cmp_eq_u32 s{S_KH}, 0")
        g(f"s_cselect_b32 s{S_TMP+2}, {L_WO_E + 30720}, 0")
        g(f"v_add_u32 v6, s{S_TMP+2}, v{V_T160}")
        g("v_lshrrev_b32 v13, 4, v1")
        g("v_lshlrev_b32 v7, 4, v13")
        g(f"v_add_u32 v7, {L_VEC}, v7")
        GA, S2, G2 = 120, 180, 200
        for t in range(5):
            g(f"ds_read_b128 v[{GA+4*t}:{GA+4*t+3}], v7 offset:{64*t}")
            g(f"ds_read_b128 v[{S2+4*t}:{S2+4*t+3}], v7 offset:{320+64*t}")
        for t in range(5):
            g(f"ds_read_b128 v[{G2+4*t}:{G2+4*t+3}], v7 offset:{640+64*t}")
            g(f"ds_read_b128 a[{A_GB+4*t}:{A_GB+4*t+3}], v7 offset:{960+64*t}")
        XF = 140
        for i in range(10): self.unpack(XF + 2*i, XF + 2*i + 1, XR + i)
        self.bsetup_half(WS_O, 10, SB0)
        g(f"s_mul_i32 s{S_TMP+17}, s{S_W}, 3072")
        g(f"v_add_u32 v32, s{S_TMP+17}, v{V_L16}")
        g(f"v_add_u32 v33, {5*GU_SLOT}, v32")
        g(f"v_add_u32 v34, {10*GU_SLOT}, v32")
        g("v_and_b32 v12, 15, v1")
        g("v_lshlrev_b32 v12, 4, v12")
        g("v_lshl_add_u32 v14, v13, 12, v12")
        g("v_bfe_u32 v16, v1, 4, 1")
        g("v_lshlrev_b32 v16, 9, v16")
        g("v_lshrrev_b32 v17, 5, v1")
        g("v_lshl_add_u32 v17, v17, 8, v12")
        g("v_add_u32 v16, v16, v17")
        SS, SH = S_TMP + 4, S_TMP + 6
        g(f"s_lshl_b32 s{SS}, s{S_RB}, 14")
        g(f"s_lshl_b32 s{S_TMP+1}, s{S_RH}, 2")
        g(f"s_add_u32 s{S_TMP+1}, s{S_TMP+1}, s{S_W}")
        g(f"s_lshl_b32 s{S_TMP+2}, s{S_TMP+1}, 8")
        g(f"s_add_u32 s{SS}, s{SS}, s{S_TMP+2}")
        g(f"s_add_u32 s{SS}, s{SS}, {WS_ST}")
        g(f"s_lshl_b32 s{SS+1}, s{S_CQ}, 11")
        g(f"s_add_u32 s{SS+1}, s{SS+1}, s{SS}")
        g(f"s_lshl_b32 s{SH}, s{S_RB}, 3")
        g(f"s_add_u32 s{SH}, s{SH}, s{S_TMP+1}")
        g(f"s_mul_i32 s{SH}, s{SH}, 20480")
        g(f"s_mul_i32 s{S_TMP+1}, s{S_CQ}, 2560")
        g(f"s_add_u32 s{SH}, s{SH}, s{S_TMP+1}")
        g(f"s_add_u32 s{SH}, s{SH}, {WS_H2}")
        g.wait_lg(0)
        self.poll_half(F_O)
        self.stamp("oseen")
        pc = Pacer()
        btok = self.bitems(pc, 10, SB0)
        pc.force(2 * cfg["lb"])
        self.gemm16(10, 5, ACC, AB,
                    lambda s_, t, hi: (5, s_ * 5120 + hi * 2560 + 32 * t) if s_ < 6 else (6, (s_ - 6) * 5120 + hi * 2560 + 32 * t),
                    lambda s_, Tp: a_((Tp * 10 + s_) * 4, 4), pacer=pc, btok=btok,
                    hooks={6: self.barrier})
        self.stamp("ogemm")
        self.reduce_halves(ACC, L_RB)
        for _ in range(cfg["gu_a"]):
            for f in self.gu_items(): f()
        for k in range(0, 20, 2):
            g(f"v_pk_add_f32 v[{ACC+k}:{ACC+k+1}], v[{ACC+k}:{ACC+k+1}], v[{ACC+20+k}:{ACC+21+k}]")
            g(f"v_pk_fma_f32 v[{XF+k}:{XF+k+1}], v[{ACC+k}:{ACC+k+1}], v[{GA+k}:{GA+k+1}], v[{XF+k}:{XF+k+1}]")
        for i in range(10):
            g(f"v_cvt_pk_bf16_f32 v{X1+i}, v{XF+2*i}, v{XF+2*i+1}")
        g("v_mov_b32 v5, 0x3f803f80")
        g("v_mov_b32 v8, 0"); g("v_mov_b32 v9, 0")
        for i in range(10):
            g(f"v_dot2_f32_bf16 v8, v{X1+i}, v5, v8")
            g(f"v_dot2_f32_bf16 v9, v{X1+i}, v{X1+i}, v9")
        self.allreduce2(8, 9, 10, 11, (16, 32))
        g(f"v_mov_b32 v10, s{S_T}")
        g(f"v_mov_b32 v11, s{S_T}")
        self.store_either(f"buffer_store_dwordx4 v[8:11], v12, s[{R_WS}:{R_WS+3}], s{SS+1} offen", "0xffff")
        for _ in range(cfg["gu_b"]):
            for f in self.gu_items(): f()
        self.gu_flush(cfg["fl_b"])
        for i in range(10): self.unpack(XF + 2*i, XF + 2*i + 1, X1 + i)
        L = g.newlabel("Ls"); D = g.newlabel("Lsd")
        g(f"s_mov_b32 s{S_CNT}, {POLL_MAX}")
        g.label(L)
        g(f"buffer_load_dwordx4 v[{ACC}:{ACC+3}], v14, s[{R_WS}:{R_WS+3}], s{SS} offen sc1")
        g(f"buffer_load_dwordx4 v[{ACC+4}:{ACC+7}], v14, s[{R_WS}:{R_WS+3}], s{SS} offen offset:2048 sc1")
        g.wait_vm(0)
        g(f"v_xor_b32 v15, s{S_T}, v{ACC+2}")
        g(f"v_bitop3_b32 v15, v15, v{ACC+6}, s{S_T} bitop3:0xf6")
        g("v_cmp_ne_u32 vcc, 0, v15")
        g(f"s_cbranch_vccz {D}")
        g(f"s_sub_u32 s{S_CNT}, s{S_CNT}, 1")
        g(f"s_cbranch_scc0 {L}")
        g.label(D)
        self.stamp("stseen")
        g(f"v_add_f32 v8, v{ACC}, v{ACC+4}")
        g(f"v_add_f32 v9, v{ACC+1}, v{ACC+5}")
        self.allreduce2(8, 9, 10, 11, (16, 32))
        self.rstd(8, 9, 10)
        g("v_mov_b32 v10, v9"); g("v_mov_b32 v11, v9"); g("v_mov_b32 v9, v8")
        for k in range(0, 20, 2):
            g(f"v_pk_fma_f32 v[{XF+k}:{XF+k+1}], v[{XF+k}:{XF+k+1}], v[10:11], v[8:9]")
        for k in range(0, 20, 2):
            g(f"v_pk_fma_f32 v[{XF+k}:{XF+k+1}], v[{XF+k}:{XF+k+1}], v[{G2+k}:{G2+k+1}], v[{S2+k}:{S2+k+1}]")
        E = ACC
        self.pack_chunks(XF, E)
        g(f"buffer_store_dwordx4 v[{E}:{E+3}], v16, s[{R_WS}:{R_WS+3}], s{SH} offen")
        g(f"buffer_store_dwordx4 v[{E+4}:{E+7}], v16, s[{R_WS}:{R_WS+3}], s{SH} offen offset:1024")
        g(f"buffer_store_dwordx4 v[{E+8}:{E+11}], v17, s[{R_WS}:{R_WS+3}], s{SH} offen offset:2048")
        self.publish(F_H2, S_T, 8, 9)
        g(f"s_or_b32 s{S_TMP}, s{S_B}, s{S_W}")
        g(f"s_cmp_lg_u32 s{S_TMP}, 0")
        g("s_cbranch_scc1 L_noepoch")
        g("v_mov_b32 v8, 0")
        g(f"v_mov_b32 v9, s{S_T}")
        g("s_mov_b64 exec, 1")
        g(f"buffer_store_dword v9, v8, s[{R_WS}:{R_WS+3}], 0 offen sc1")
        g("s_mov_b64 exec, -1")
        g.label("L_noepoch")
        g.forget_vm()
        self.stamp("h2pub")

    def dn_setup(self):
        g = self.g
        SO, SL = S_TMP + 12, S_TMP + 13
        g(f"s_mul_i32 s{SO}, s{S_CQ}, 48")
        g(f"s_mul_i32 s{S_TMP}, s{S_KH}, 24")
        g(f"s_add_u32 s{SO}, s{SO}, s{S_TMP}")
        g(f"s_add_u32 s{SO}, s{SO}, s{S_TP}")
        g(f"s_mul_i32 s{SO}, s{SO}, 5120")
        g(f"s_add_u32 s{SO}, s{SO}, {WS_RWD}")
        g(f"s_mul_i32 s{SL}, s{S_W}, 5120")
        self.dn_next = 0
        self.dn_tok = {}
    def dn_pair_items(self):
        p = self.dn_next; self.dn_next += 1
        items, toks = self.lin_items(5, S_TMP + 12, S_TMP + 13, ((2 * p + 14) % 16) * 10240, step_after=10240, flags="sc1")
        self.dn_tok[p] = toks
        return items

    def p4(self):
        g = self.g
        cfg = self.cfg
        ACC, AB, E = 40, 136, 168
        SB0 = S_TMP + 14
        for _ in range(cfg["gu_c"]):
            for f in self.gu_items(): f()
        self.gu_flush(99)
        npre = self.gu_next
        assert npre <= 9
        self.dn_setup()
        g("v_lshrrev_b32 v3, 2, v1")
        g("v_mul_u32_u24 v3, 96, v3")
        g("v_and_b32 v4, 3, v1")
        g("v_lshl_add_u32 v5, v4, 3, v3")
        g(f"v_add_u32 v6, {5*GU_SLOT}, v5")
        g(f"v_add_u32 v7, {10*GU_SLOT}, v5")
        g(f"s_lshl_b32 s{SB0}, s{S_RB}, 2")
        g(f"s_add_u32 s{SB0}, s{SB0}, s{S_W}")
        SA = S_TMP + 4
        g(f"s_mul_i32 s{SA}, s{SB0}, {2*49152}")
        g(f"s_mul_i32 s{S_TMP+1}, s{S_J}, 3072")
        g(f"s_add_u32 s{SA}, s{SA}, s{S_TMP+1}")
        g(f"s_add_u32 s{SA}, s{SA}, {WS_ACT}")
        g(f"s_add_u32 s{SA+1}, s{SA}, 49152")
        g(f"s_mul_i32 s{SB0}, s{SB0}, 40960")
        g(f"s_add_u32 s{SB0}, s{SB0}, {WS_H2}")
        g(f"s_add_u32 s{SB0+1}, s{SB0}, 20480")
        self.flag_off(S_TMP, F_H2)
        g("v_bfe_u32 v3, v1, 1, 3")
        g("v_lshlrev_b32 v3, 5, v3")
        g("v_and_b32 v4, 1, v1")
        g("v_lshl_add_u32 v3, v4, 2, v3")
        g(f"s_lshl_b32 s{S_TMP+1}, s{S_TP}, 4")
        g(f"s_lshl_b32 s{S_TMP+2}, s{S_KH}, 3")
        g(f"s_add_u32 s{S_TMP+1}, s{S_TMP+1}, s{S_TMP+2}")
        g(f"v_add_u32 v3, s{S_TMP+1}, v3")
        g.wait_lg(0)
        self.poll(3, S_TMP, S_T, 4)
        self.acquire()
        self.stamp("h2seen")
        pc = Pacer()
        btok = {}
        def breg(s_, Tp): return (0, 100)[Tp] + 4 * s_
        for s_ in range(20):
            for Tp in range(2):
                def f(s_=s_, Tp=Tp):
                    d = breg(s_, Tp)
                    t = g(f"buffer_load_dwordx4 a[{d}:{d+3}], v{V_L16}, s[{R_WS}:{R_WS+3}], s{SB0+Tp} offen offset:{1024*(s_%4)} sc1")
                    btok.setdefault(s_, []).append(t)
                    if s_ % 4 == 3 and s_ < 19: g(f"s_add_u32 s{SB0+Tp}, s{SB0+Tp}, 4096")
                pc.add(f, 72)
        pc.force(2 * cfg["lb"])
        bl = [(cfg["lb"] + i // 2 - cfg["blead"], 0, it) for i, it in enumerate(pc.items)]
        for n in range(npre, 20):
            due = 2 * (n & ~1) - 1 - cfg["wlead"]
            bnd = 0 if n < 13 else (n - 13 + 2 + 1) & ~1
            for f in self.gu_items(): bl.append((max(due, 2 * bnd - 1), 1, (f, 72, 2 * bnd - 1)))
        if cfg["touch"]:
            g("v_and_b32 v8, 7, v1")
            g("v_bfe_u32 v9, v1, 3, 1")
            g("v_mul_u32_u24 v9, 49152, v9")
            g("v_lshl_add_u32 v9, v8, 7, v9")
            def touch(k):
                g("s_mov_b64 exec, 0xffff")
                t = g(f"buffer_load_dword v{10+k}, v9, s[{R_WS}:{R_WS+3}], s{SA} offen offset:{1024*k}")
                g("s_mov_b64 exec, -1")
            for k, at in enumerate(cfg["act_touch"]): bl.append((at, 1, (lambda k=k: touch(k), 100, -1)))
        for p in range(cfg["dn_a"]):
            bnd = 10 if p == 0 else 14
            for f in self.dn_pair_items(): bl.append((max(41 + p, 2 * bnd), 2, (f, 72, 2 * bnd - 1)))
        bl.sort(key=lambda x: (x[0], x[1]))
        pc.items = [x[2] for x in bl]
        def rd(i):
            st, m6 = divmod(i, 6)
            d, ks = st >> 1, st & 1
            slot = (d + 4) % GU_NSLOT
            va, so = (5, 6, 7)[slot // 5], (slot % 5) * GU_SLOT
            b = AB + 4 * (i % 8)
            return [f"ds_read_b64_tr_b16 v[{b+2*hi}:{b+2*hi+1}], v{va} offset:{so + ks*6144 + (m6&1)*3072 + hi*1536 + 32*(m6>>1)}" for hi in range(2)]
        def pre(st):
            if st % 4: return
            d = st >> 1
            if d + 1 in self.gu_tok:
                while len(self.gu_tok[d + 1]) < 3: pc.force(1)
                g.wait(self.gu_tok[d + 1][-1])
            self.barrier()
        def D_(ps, m6, Tp): return ACC + 48 * ps + (2 * m6 + Tp) * 4
        def epi(ps):
            out = []
            for m in range(3):
                for Tp in range(2):
                    G, U = D_(ps, 2 * m, Tp), D_(ps, 2 * m + 1, Tp)
                    t6 = 3 * ps + m
                    e = E + 12 * Tp + 2 * t6
                    out += [f"v_exp_f32 v{G+k}, v{G+k}" for k in range(4)]
                    out += [f"v_add_f32 v{G+k}, 1.0, v{G+k}" for k in range(4)]
                    out += [f"v_rcp_f32 v{G+k}, v{G+k}" for k in range(4)]
                    out += [f"v_mul_f32 v{U+k}, v{U+k}, v{G+k}" for k in range(4)]
                    out += [f"v_cvt_pk_bf16_f32 v{e+k}, v{U+2*k}, v{U+2*k+1}" for k in range(2)]
                    if t6 & 1:
                        out.append(f"buffer_store_dwordx4 v[{e-2}:{e+1}], v{V_L16}, s[{R_WS}:{R_WS+3}], s{SA+Tp} offen offset:{1024*(t6>>1)}")
            return out
        pre(0)
        tok = {}
        for i in range(6): tok[i] = [g(r) for r in rd(i)]
        fill = []
        for st in range(40):
            ps, s_ = divmod(st, 20)
            if st in (1, 8, 14, 20, 30) and cfg.get("gustamps"): self.stamp(f"gu{st}")
            if st + 1 < 40: pre(st + 1)
            pc.step = st
            if st == 21: fill = epi(0)
            if ps == 0:
                la = min(s_ + cfg["la"], 19)
                while (la not in btok or len(btok[la]) < 2) and pc.items[0][2] <= st: pc.force(1)
                while s_ not in btok or len(btok[s_]) < 2: pc.force(1)
            for m6 in range(6):
                i = 6 * st + m6
                if m6 % 3 == 0:
                    g.wait(tok[i + 2][-1], btok[s_][-1] if (ps == 0 and m6 == 0) else None)
                A = AB + 4 * (i % 8)
                nx = rd(i + 6) if i + 6 < 240 else []
                tok[i + 6] = []
                for Tp in range(2):
                    D = D_(ps, m6, Tp)
                    C = "0" if s_ == 0 else v(D, 4)
                    b = breg(s_, Tp)
                    g(f"v_mfma_f32_16x16x32_bf16 v[{D}:{D+3}], v[{A}:{A+3}], a[{b}:{b+3}], {C}")
                    if nx: tok[i + 6].append(g(nx.pop(0)))
                    if not pc.tick(16, st) and fill and Tp == 0: g(fill.pop(0))
        pc.drain()
        for f in fill: g(f)
        self.stamp("gugemm")
        self.barrier()
        extra = []
        for p in range(cfg["dn_b"]): extra += self.dn_pair_items()
        for n, f in enumerate(epi(1)):
            g(f)
            if n % 9 == 3 and extra: extra.pop(0)()
        for f in extra: f()
        pass
        self.publish(F_ACT, S_T, 8, 9)
        self.stamp("actpub")

    def p5(self):
        g = self.g
        cfg = self.cfg
        ACC, AB, X1 = 40, 80, 230
        SB0 = S_TMP + 14
        for p in range(cfg["dn_c"]):
            for f in self.dn_pair_items(): f()
        npre = self.dn_next
        assert npre <= 8
        g(f"s_mul_i32 s{S_TMP+2}, s{S_KH}, 5120")
        g(f"v_add_u32 v5, s{S_TMP+2}, v{V_T160}")
        g("v_add_u32 v6, 61440, v5")
        g("v_add_u32 v7, 122880, v5")
        XF, GB = 140, 120
        for i in range(10): self.unpack(XF + 2*i, XF + 2*i + 1, X1 + i)
        for k in range(20): g(f"v_accvgpr_read_b32 v{GB+k}, a{A_GB+k}")
        self.bsetup_half(WS_ACT, 24, SB0)
        self.srd(R_A, P_OUT, 2048 * 1280)
        g("v_and_b32 v12, 15, v1")
        g("v_mul_u32_u24 v12, 1280, v12")
        g("v_lshrrev_b32 v15, 5, v1")
        g("v_lshl_add_u32 v15, v15, 4, v12")
        g("v_bfe_u32 v14, v1, 4, 1")
        g("v_lshl_add_u32 v14, v14, 5, v15")
        if cfg["out_touch"]:
            g("v_lshrrev_b32 v8, 4, v1")
            g("v_min_u32 v8, 2, v8")
            g("v_mul_u32_u24 v8, 78, v8")
            g("v_and_b32 v8, -4, v8")
            g("v_add_u32 v8, v8, v12")
            g(f"buffer_load_dword v9, v8, s[{R_A}:{R_A+3}], s{S_TMP+11} offen")
        self.poll_half(F_ACT)
        self.stamp("actseen")
        pc = Pacer()
        btok = self.bitems(pc, 24, SB0)
        pc.force(2 * cfg["lb"])
        bl = [(cfg["lb"] + i // 2 - cfg["blead"], 0, it) for i, it in enumerate(pc.items)]
        for p in range(npre, 12):
            due = 2 * p - 1 - cfg["wlead"]
            bnd = 0 if p < 8 else (2 * (p - 8) + 1 + 2 + 1) & ~1
            for f in self.dn_pair_items(): bl.append((max(due, bnd - 1), 1, (f, 72, bnd - 1)))
        bl.sort(key=lambda x: (x[0], x[1]))
        pc.items = [x[2] for x in bl]
        need = {0} | {2 * p for p in range(npre, 12)} | {(2 * (p - 8) + 4) & ~1 for p in range(8, 12)}
        def pre(c):
            def f():
                p = c // 2
                if p >= npre:
                    while len(self.dn_tok[p]) < 5: pc.force(1)
                    g.wait(self.dn_tok[p][-1])
                self.barrier()
            return f
        def rd(s_, t, hi):
            slot = (s_ + 14) % 16
            return ((5, 6, 7)[slot // 6], (slot % 6) * 10240 + hi * 2560 + 32 * t)
        self.gemm16(24, 5, ACC, AB, rd, lambda s_, Tp: a_((Tp * 24 + s_) * 4, 4), pacer=pc, btok=btok,
                    hooks={c: pre(c) for c in need})
        self.stamp("dgemm")
        self.reduce_halves(ACC, 81920)
        for k in range(0, 20, 2):
            g(f"v_pk_add_f32 v[{ACC+k}:{ACC+k+1}], v[{ACC+k}:{ACC+k+1}], v[{ACC+20+k}:{ACC+21+k}]")
            g(f"v_pk_fma_f32 v[{XF+k}:{XF+k+1}], v[{ACC+k}:{ACC+k+1}], v[{GB+k}:{GB+k+1}], v[{XF+k}:{XF+k+1}]")
        E = ACC
        self.pack_chunks(XF, E)
        g(f"buffer_store_dwordx4 v[{E}:{E+3}], v14, s[{R_A}:{R_A+3}], s{S_TMP+11} offen")
        g(f"buffer_store_dwordx4 v[{E+4}:{E+7}], v14, s[{R_A}:{R_A+3}], s{S_TMP+11} offen offset:64")
        g(f"buffer_store_dwordx4 v[{E+8}:{E+11}], v15, s[{R_A}:{R_A+3}], s{S_TMP+11} offen offset:128")

if __name__ == "__main__":
    make_all("v5a", V5, dict(coop=0))
    make_all("v5b", V5, dict(rp_at="p0"))
    k = make_all("v5", V5)
    print("instructions", k.g.count, "nop states", k.g.nops)
```

```python
import sys
from v5 import *
def make_dbg(path, cls, cfg, sel, wg=8):
    class D(cls):
        def finish(self):
            g = self.g
            self.stamp("end")
            g.wait_vm(0)
            self.stamp("drained")
            g(f"s_cmp_lg_u32 s{S_B}, {wg}")
            g("s_cbranch_scc1 L_end")
            g(f"s_cmp_lg_u32 s{S_W}, 0")
            g("s_cbranch_scc1 L_end")
            self.srd(R_A, 24, 256)
            g(f"v_readlane_b32 s{S_TMP}, v255, 0")
            g("v_mov_b32 v2, 0")
            g(f"v_writelane_b32 v2, s{S_FAST}, 0")
            for i, nm in enumerate(sel):
                g(f"v_readlane_b32 s{S_TMP+1}, v255, {self.stamp_names.index(nm)}")
                g(f"s_sub_u32 s{S_TMP+1}, s{S_TMP+1}, s{S_TMP}")
                g(f"v_writelane_b32 v2, s{S_TMP+1}, {i+1}")
            g("v_lshlrev_b32 v3, 2, v1")
            g("s_mov_b64 exec, 0xffff")
            g(f"buffer_store_dword v2, v3, s[{R_A}:{R_A+3}], 0 offen")
            g.wait_all()
            g.label("L_end")
            g("s_endpgm")
    make(path, cls=D, cfg=cfg, stamps=True)
SEL = ["z", "mod", "hpub", "hseen", "kvgemm", "qgemm", "attn0", "attn1", "oseen", "ogemm", "h2seen", "gugemm", "actseen", "dgemm", "drained"]
if __name__ == "__main__":
    make_dbg("../cdna_kernels/dbg5a.s", V5, dict(coop=0), SEL)
    make_dbg("../cdna_kernels/dbg5a_b.s", V5, dict(coop=0), SEL, wg=141)
    print(SEL)
```

```python
import json
from v2 import *

F_H, F_KV, F_O, F_H2, F_ACT, F_XC = range(6)
WS_RF = 0x8000
WS_MODL = 0x20000
WS_MODP = 0x10000
WS_RWO = 0x1800000
WS_RWD = 0x1900000
WS_RQ = 0x1F00000
WS_RGU = 0x1B00000
WS_O = WS_H2 = WS_H
L_PUB = 0
GU_SLOT = 12288
S_T = 47
S_X = 48
OOB = 0x40000000
S_P, S_PK = 49, 101
S_TB = 40
V_L16 = 2
V_KV0, V_KV1, V_Q = 5, 6, 7
V_KVW, V_QW = 10, 15
V_T160 = 20
V_K1, V_K2, V_VT, V_OST, V_XR, V_VEC = 21, 22, 23, 24, 25, 26
V_QD = 27
V_BD, V_BF = 208, 224
A_STG = 100
A_GB = 80

class Sched:
    def __init__(self, cap):
        self.items = []; self.cap = cap; self.t = 0; self.free = 0; self.slots = []; self.step = -1
    def add(self, fn, cost, earliest=-1, due=10**6, hard=10**6):
        self.items.append([fn, cost, earliest, due, hard])
    def sort(self):
        self.items.sort(key=lambda x: max(x[3], x[2]))
    def force(self, n=1):
        for _ in range(n):
            if not self.items: return
            fn, cost, e, _, _ = self.items.pop(0)
            assert e <= self.step, (e, self.step)
            fn(); self.free = max(self.free, self.t) + cost
    def plan(self, s, nslots, dt):
        self.step = s
        n = hard = 0
        free = max(self.free, self.t)
        for i, (fn, cost, e, due, hd) in enumerate(self.items):
            if e > s: break
            if hd <= s: hard = i + 1
        for i, (fn, cost, e, due, hd) in enumerate(self.items):
            if e > s or n >= self.cap: break
            if due <= s or free <= self.t + dt - cost // 2:
                n += 1; free += cost
            else: break
        n = max(n, hard)
        self.slots = [min(nslots - 1, int((k + 0.3) * nslots / n)) for k in range(n)]
        self.dt = dt / nslots
    def slot(self, k):
        self.t += self.dt
        did = False
        while self.slots and self.slots[0] == k:
            self.slots.pop(0); self.force(1); did = True
        return did
    def drain(self):
        self.step = 10**6
        self.force(len(self.items))

class V8(V2):
    def __init__(self, cfg=None, **kw):
        base = dict(nq0=10, kv_depth=63, lb=3, la=3, lam=7, wlead=10, cap=4, prio=1, stage=6, rp_poll=0, gu_a=0, gu_b=0, gu_c=0,
                    dn_a=3, dn_b=2, dn_c=1, kvflag_step=9, attn_cost=110, q_early=1, fl_b=4, touch=1, act_touch=(14, 20, 26), rp_at='p0', coop=0, rp_ld=0, rp_st=2, rp2_step=2, rp2_flag=3, rp2_chk=0, rp2='s1', rot=3, wo_cost=90, gu_cost=140, vec_at=5, out_touch=0, setup_first=1)
        base.update(cfg or {})
        super().__init__(cfg=base, **kw)
    def greads(self, s, ntile, abuf, rd_addr):
        out = []
        for t in range(ntile):
            for hi in range(2):
                va, imm = rd_addr(s, t, hi)
                d = abuf + (s % 2) * 4 * ntile + 4 * t + 2 * hi
                out.append(f"ds_read_b64_tr_b16 v[{d}:{d+1}], v{va} offset:{imm}")
        return out
    def gemm16(self, nsteps, ntile, acc, abuf, rd_addr, bfrag, sc=None, hooks=None, btok=None, cur=None):
        g = self.g
        hooks = hooks or {}
        if 0 in hooks: hooks[0]()
        if cur is None: cur = [g(r) for r in self.greads(0, ntile, abuf, rd_addr)]
        for s in range(nsteps):
            nxt = []
            if s + 1 < nsteps:
                if s + 1 in hooks: hooks[s + 1]()
                nxt = self.greads(s + 1, ntile, abuf, rd_addr)
            new = []
            if sc: sc.plan(s, 2 * ntile, 32 * ntile + 8)
            g.wait(btok[s][-1] if btok else None, cur[min(5, len(cur) - 1)])
            for t in range(ntile):
                if t == 3: g.wait(cur[-1])
                for Tp in range(2):
                    A = abuf + (s % 2) * 4 * ntile + 4 * t
                    D = acc + (Tp * ntile + t) * 4
                    C = "0" if s == 0 else f"v[{D}:{D+3}]"
                    g(f"v_mfma_f32_16x16x32_bf16 v[{D}:{D+3}], v[{A}:{A+3}], {bfrag(s, Tp)}, {C}")
                    if nxt: new.append(g(nxt.pop(0)))
                    if sc: sc.slot(2 * t + Tp)
            cur = new
    def bitems(self, sc, nsteps, so0, la, breg=None):
        g = self.g
        btok = {}
        breg = breg or (lambda s_, Tp: (Tp * nsteps + s_) * 4)
        for s_ in range(nsteps):
            for Tp in range(2):
                def f(s_=s_, Tp=Tp):
                    d = breg(s_, Tp)
                    t = g(f"buffer_load_dwordx4 a[{d}:{d+3}], v{V_L16}, s[{R_WS}:{R_WS+3}], s{so0+Tp} offen offset:{1024*(s_%4)} sc1")
                    btok.setdefault(s_, []).append(t)
                    if s_ % 4 == 3 and s_ < nsteps - 1: g(f"s_add_u32 s{so0+Tp}, s{so0+Tp}, 4096")
                sc.add(f, 72, -1, s_ - la, s_ - 2)
        sc.force(2 * self.cfg["lb"])
        return btok
    def code_touch(self, start, lanes, wave, vt):
        if not self.cfg.get("ctouch"): return
        g = self.g
        L, P = g.newlabel("Lct"), g.newlabel("Lpc")
        snap = g.snapshot()
        g(f"s_cmp_lg_u32 s{S_W}, {wave}")
        g(f"s_cbranch_scc1 {L}")
        g(f"s_getpc_b64 s[{S_TT}:{S_TT+1}]")
        g.label(P)
        g.raw(f"s_add_u32 s{S_TT}, s{S_TT}, {start}-{P}")
        g(f"s_addc_u32 s{S_TT+1}, s{S_TT+1}, 0")
        g(f"s_lshr_b32 s100, s{S_B}, 3")
        g(f"v_lshl_add_u32 v{vt}, v1, 5, s100")
        g(f"v_lshlrev_b32 v{vt}, 7, v{vt}")
        g.raw(f"v_min_u32 v{vt}, L_last-{start}, v{vt}")
        g(f"s_mov_b64 exec, {(1 << lanes) - 1}")
        g(f"global_load_dword v{vt+1}, v{vt}, s[{S_TT}:{S_TT+1}]")
        g("s_mov_b64 exec, -1")
        g.label(L)
        g.restore(snap)
    def make_tags(self):
        g = self.g
        g(f"s_mul_i32 s{S_T}, s{S_X}, {LCG_A}")
        g(f"s_add_u32 s{S_T}, s{S_T}, {LCG_C}")
        for i in range(4): g(f"s_bfe_u32 s{S_TB+i}, s{S_T}, {(8 << 16) | (8*i)}")
    def prologue(self):
        g = self.g
        g(f"s_cmp_ge_u32 s{S_B}, 256")
        g("s_cbranch_scc1 L_end")
        self.stamp("start")
        g("s_load_dwordx16 s[4:19], s[0:1], 0")
        g("s_load_dwordx8 s[20:27], s[0:1], 64")
        if self.cfg.get("ctouch", 0) >= 2:
            m, lanes = {2: (7, 20), 3: (1, 80), 4: (31, 5)}[self.cfg["ctouch"]]
            sh = m.bit_length()
            g(f"s_getpc_b64 s[{S_TT}:{S_TT+1}]")
            g.label("L_c00")
            g(f"s_lshr_b32 s100, s{S_B}, 3")
            g(f"s_and_b32 s100, s100, {m}")
            g(f"v_lshl_add_u32 v204, v0, {sh}, s100")
            g("v_lshlrev_b32 v204, 7, v204")
            g(f"v_cmp_gt_u32 vcc, {lanes}, v0")
            g("s_and_saveexec_b64 s[60:61], vcc")
            g("s_cbranch_execz L_c01")
            g(f"global_load_dword v205, v204, s[{S_TT}:{S_TT+1}]")
            g.label("L_c01")
            g("s_mov_b64 exec, -1")
            g.forget_vm()
        g(f"s_and_b32 s{S_RB}, s{S_B}, 7")
        g(f"s_lshl_b32 s{S_RB}, s{S_RB}, 1")
        g(f"s_lshr_b32 s{S_TMP}, s{S_B}, 7")
        g(f"s_add_u32 s{S_RB}, s{S_RB}, s{S_TMP}")
        g(f"s_lshr_b32 s{S_J}, s{S_B}, 3")
        g(f"s_and_b32 s{S_J}, s{S_J}, 15")
        g("v_lshrrev_b32 v2, 6, v0")
        g("v_and_b32 v1, 63, v0")
        g(f"v_readfirstlane_b32 s{S_W}, v2")
        g(f"s_and_b32 s{S_RH}, s{S_J}, 1")
        g(f"s_lshr_b32 s{S_CQ}, s{S_J}, 1")
        g(f"s_mov_b32 s{S_HALF}, 0")
        g(f"s_mov_b32 s{S_HALF+1}, -1")
        g(f"s_and_b32 s{S_KH}, s{S_W}, 1")
        g(f"s_lshr_b32 s{S_TP}, s{S_W}, 1")
        g(f"v_lshlrev_b32 v{V_L16}, 4, v1")
        g.wait_lg(0)
        g(f"s_load_dword s{S_X}, s[{P_WS}:{P_WS+1}], 0")
        self.srd(R_WS, P_WS, WS_SIZE)
        if self.cfg.get("ctouch", 0) < 2: self.code_touch("L_c0", 6, 1, 204)
        g.label("L_c0")
        if self.cfg.get("pages"):
            L = g.newlabel("Lpg")
            g(f"s_cmp_lg_u32 s{S_W}, 2")
            g(f"s_cbranch_scc1 {L}")
            g("v_min_u32 v3, 15, v1")
            g("v_lshlrev_b32 v3, 21, v3")
            g(f"v_add_co_u32 v4, vcc, s{P_WS}, v3")
            g(f"v_mov_b32 v5, s{P_WS+1}")
            g("v_addc_co_u32 v5, vcc, 0, v5, vcc")
            lane = 16
            for p, nb in ((P_WO, 819200), (P_WG, 1966080), (P_WU, 1966080), (P_WD, 1966080), (P_OUT, 2621440), (P_X, 2621440), (P_WQKV, 2457600), (P_WMOD, 4915200)):
                for off in sorted({0, nb - 4} | set(range(1 << 21, nb, 1 << 21))):
                    g(f"s_add_u32 s{S_TMP}, s{p}, {off}")
                    g(f"s_addc_u32 s{S_TMP+1}, s{p+1}, 0")
                    g(f"v_writelane_b32 v4, s{S_TMP}, {lane}")
                    g(f"v_writelane_b32 v5, s{S_TMP+1}, {lane}")
                    lane += 1
            g("global_load_dword v204, v[4:5], off")
            g.label(L)
            g.forget_vm()

    def gemv_index(self, lo, hi, skip):
        g = self.g
        rank = {0: 0, 2: 1, 5: 2, 7: 3, 8: 4, 10: 5, 13: 6, 15: 7}
        tab = sum(rank.get(j, 15) << (4 * j) for j in range(16))
        g(f"s_mov_b32 s{S_TMP+2}, {hx(tab)}")
        g(f"s_mov_b32 s{S_TMP+3}, {hx(tab >> 32)}")
        g(f"s_lshl_b32 s{S_TMP}, s{S_J}, 2")
        g(f"s_lshr_b64 s[{S_TMP+2}:{S_TMP+3}], s[{S_TMP+2}:{S_TMP+3}], s{S_TMP}")
        g(f"s_and_b32 s{S_TMP+2}, s{S_TMP+2}, 15")
        g(f"s_lshl_b32 s{S_TMP+2}, s{S_TMP+2}, 3")
        g(f"s_and_b32 s{S_TMP+3}, s{S_B}, 7")
        g(f"s_add_u32 s{S_TMP+2}, s{S_TMP+2}, s{S_TMP+3}")
        g(f"s_lshr_b32 s{S_TMP+3}, s{S_B}, 7")
        g(f"s_lshl_b32 s{S_TMP+3}, s{S_TMP+3}, 6")
        g(f"s_add_u32 s{S_P}, s{S_TMP+2}, s{S_TMP+3}")
        g(f"s_sub_u32 s{S_TMP+3}, s{S_P}, {lo}")
        g(f"s_cmp_ge_u32 s{S_TMP+3}, {hi - lo}")
        g(f"s_cbranch_scc1 {skip}")
    def gemv_loads(self, t, d, n):
        g = self.g
        self.srd(R_A, P_C, 1280)
        self.srd(R_B, P_WMOD, 640 * 7680)
        self.gv = (t, d)
        g(f"v_lshlrev_b32 v{t+3}, 3, v0")
        g(f"buffer_load_dwordx2 v[{t+4}:{t+5}], v{t+3}, s[{R_A}:{R_A+3}], 0 offen")
        g(f"v_lshrrev_b32 v{t+7}, 3, v0")
        g(f"v_mul_u32_u24 v{t+8}, {n*7680}, v{t+7}")
        g(f"v_and_b32 v{t+9}, 7, v0")
        g(f"v_lshl_add_u32 v{t+8}, v{t+9}, 4, v{t+8}")
        g(f"s_lshl_b32 s{S_TMP+4}, s{S_P}, 7")
        g(f"s_mul_i32 s{S_TMP+6}, s{S_PK}, {32*n*7680}")
        g(f"s_add_u32 s{S_TMP+4}, s{S_TMP+4}, s{S_TMP+6}")
        for i in range(n):
            g(f"buffer_load_dwordx4 v[{d+4*i}:{d+4*i+3}], v{t+8}, s[{R_B}:{R_B+3}], s{S_TMP+4} offen nt")
            if i < n - 1: g(f"s_add_u32 s{S_TMP+4}, s{S_TMP+4}, 7680")
    def gemv_finish(self, t, d, u, done, tags, n, dst, pitch):
        g = self.g
        self.unpack(t+10, t+11, t+4); self.unpack(t+12, t+13, t+5)
        R = range(t + 10, t + 14)
        for r in R: g(f"v_mul_f32 v{r+4}, {hx(fbits(NLOG2E))}, v{r}")
        for r in R: g(f"v_exp_f32 v{r+4}, v{r+4}")
        for r in R: g(f"v_add_f32 v{r+4}, 1.0, v{r+4}")
        for r in R: g(f"v_rcp_f32 v{r+4}, v{r+4}")
        for r in R: g(f"v_mul_f32 v{r}, v{r}, v{r+4}")
        g(f"v_cvt_pk_bf16_f32 v{t+14}, v{t+10}, v{t+11}")
        g(f"v_cvt_pk_bf16_f32 v{t+15}, v{t+12}, v{t+13}")
        self.unpack(t+16, t+17, t+14); self.unpack(t+18, t+19, t+15)
        g(f"v_lshlrev_b32 v{t+3}, 4, v0")
        g(f"v_add_u32 v{t+3}, {L_SC}, v{t+3}")
        g(f"ds_write_b128 v{t+3}, v[{t+16}:{t+19}]")
        g(f"v_mul_u32_u24 v{t+3}, {4*n}, v{t+7}")
        g(f"s_mul_i32 s{S_TMP+6}, s{S_PK}, {128*n}")
        g(f"s_add_u32 s{S_TMP+6}, s{S_TMP+6}, {L_SC}")
        g(f"v_add_u32 v{t+3}, s{S_TMP+6}, v{t+3}")
        g.wait_lg(0)
        self.barrier()
        for i in range(n // 2):
            g(f"ds_read_b64 v[{t+20+2*i}:{t+21+2*i}], v{t+3} offset:{8*i}")
        for k in range(8): g(f"v_mov_b32 v{t+10+k}, 0")
        for i in range(n):
            for k in range(4):
                q = u + 2 * (k % 2)
                self.unpack(q, q + 1, d + 4*i + k)
                s0 = t + 20 + (i & ~1)
                g(f"v_pk_fma_f32 v[{t+10+2*k}:{t+11+2*k}], v[{q}:{q+1}], v[{s0}:{s0+1}], v[{t+10+2*k}:{t+11+2*k}] op_sel:[0,{i&1},0] op_sel_hi:[1,{i&1},1]")
        for k in range(8):
            g(f"v_add_f32_dpp v{t+20+k}, v{t+10+k}, v{t+10+k} row_ror:8 row_mask:0xf bank_mask:0xf")
        for k in range(4): g(f"v_permlane16_swap_b32 v{t+20+k}, v{t+24+k}")
        for k in range(4): g(f"v_add_f32 v{t+20+k}, v{t+20+k}, v{t+24+k}")
        for k in range(2): g(f"v_permlane32_swap_b32 v{t+20+k}, v{t+22+k}")
        g(f"v_bfe_u32 v{t+3}, v1, 4, 1")
        g(f"v_lshlrev_b32 v{t+3}, 4, v{t+3}")
        g(f"v_bfe_u32 v{t+4}, v1, 5, 1")
        g(f"v_lshl_add_u32 v{t+3}, v{t+4}, 3, v{t+3}")
        g(f"v_lshl_add_u32 v{t+3}, v{t+9}, 5, v{t+3}")
        g(f"s_lshl_b32 s{S_TMP+4}, s{S_W}, 8")
        g(f"s_add_u32 s{S_TMP+4}, s{S_TMP+4}, {L_RED}")
        g(f"v_add_u32 v{t+3}, s{S_TMP+4}, v{t+3}")
        for k in range(2): g(f"v_add_f32 v{t+20+k}, v{t+20+k}, v{t+22+k}")
        g(f"ds_write_b64 v{t+3}, v[{t+20}:{t+21}]")
        g(f"v_and_b32 v{t+3}, 15, v1")
        g(f"v_lshlrev_b32 v{t+3}, 4, v{t+3}")
        g(f"v_add_u32 v{t+4}, {L_RED}, v{t+3}")
        if tags: self.make_tags()
        g.wait_lg(0)
        self.barrier()
        g(f"s_cmp_lg_u32 s{S_W}, 3")
        g(f"s_cbranch_scc1 {done}")
        for i in range(4):
            g(f"ds_read_b128 v[{t+20+4*i}:{t+23+4*i}], v{t+4} offset:{256*i}")
        g(f"s_lshl_b32 s{S_TMP+4}, s{S_P}, 8")
        g(f"s_mul_i32 s{S_TMP+5}, s{S_PK}, {pitch}")
        g(f"s_add_u32 s{S_TMP+4}, s{S_TMP+4}, s{S_TMP+5}")
        g(f"s_add_u32 s{S_TMP+4}, s{S_TMP+4}, {dst}")
        g(f"v_mov_b32 v{t+5}, 0xff")
        for k in range(4):
            g(f"v_add_f32 v{t+20+k}, v{t+20+k}, v{t+24+k}")
            g(f"v_add_f32 v{t+28+k}, v{t+28+k}, v{t+32+k}")
        for k in range(4): g(f"v_add_f32 v{t+20+k}, v{t+20+k}, v{t+28+k}")
        for k in range(4): g(f"v_bfi_b32 v{t+20+k}, v{t+5}, s{S_TB+k}, v{t+20+k}")
        g("s_mov_b64 exec, 0xffff")
        g(f"buffer_store_dwordx4 v[{t+20}:{t+23}], v{t+3}, s[{R_WS}:{R_WS+3}], s{S_TMP+4} offen sc1")
        g("s_mov_b64 exec, -1")
        g("s_nop 1")
    def gemv(self):
        g = self.g
        self.gemv_index(0, 40, "L_nogemv0")
        g(f"s_and_b32 s{S_PK}, s{S_P}, 1")
        g(f"s_lshr_b32 s{S_P}, s{S_P}, 1")
        self.gemv_loads(80, 40, 10)
        self.xloads()
        pass
        self.setup()
        self.gemv_finish(80, 40, 120, "L_nogemv", True, 10, WS_MODP, 15360)
        self.stamp("g_end")
        g("s_branch L_nogemv")
        g.label("L_nogemv0")
        g.forget()
        self.xloads()
        self.setup()
        g.label("L_nogemv")
        g.forget()
        g.lg = [Tok("lg", {("s", S_X)}, smem=True)]
        g.vm = [Tok("vm", {("v", 160 + 4*i + k) for k in range(4)}) for i in range(10)]
    def xloads(self):
        g = self.g
        keep = g.snapshot()
        L = g.newlabel("Lx")
        g(f"s_cmp_lg_u32 s{S_W}, 0")
        g(f"s_cbranch_scc1 {L}")
        self.srd(R_T, P_X, 2048 * 1280)
        g("v_and_b32 v240, 7, v1")
        g("v_lshrrev_b32 v241, 3, v1")
        g("v_mul_u32_u24 v242, 1280, v240")
        g("v_lshl_add_u32 v242, v241, 4, v242")
        g(f"s_lshl_b32 s{S_TMP+8}, s{S_RB}, 4")
        g(f"s_add_u32 s{S_TMP+8}, s{S_TMP+8}, s{S_J}")
        g(f"s_mul_i32 s{S_TMP+8}, s{S_TMP+8}, {8*1280}")
        for i in range(10):
            g(f"buffer_load_dwordx4 v[{160+4*i}:{163+4*i}], v242, s[{R_T}:{R_T+3}], s{S_TMP+8} offen offset:{128*i} nt")
        g.label(L)
        g.restore(keep)
    def tagcheck(self, acc, regs, first):
        g = self.g
        regs = list(regs)
        for k, r in enumerate(regs): g(f"v_xor_b32 v{r}, s{S_TB+k}, v{r}")
        if first: g(f"v_or_b32 v{acc}, v{regs[0]}, v{regs[1]}")
        else: g(f"v_or3_b32 v{acc}, v{regs[0]}, v{regs[1]}, v{acc}")
        g(f"v_or3_b32 v{acc}, v{regs[2]}, v{regs[3]}, v{acc}")

    def setup(self):
        g = self.g
        T = 32
        g(f"v_lshrrev_b32 v{T}, 2, v1")
        g(f"v_and_b32 v{T+1}, 3, v1")
        g(f"v_mul_u32_u24 v{V_T160}, 160, v{T}")
        g(f"v_lshl_add_u32 v{V_T160}, v{T+1}, 3, v{V_T160}")
        g(f"v_mov_b32 v{V_KV0}, v{V_T160}")
        g(f"v_add_u32 v{V_KV1}, 51200, v{V_T160}")
        g(f"v_and_b32 v{T+2}, 7, v{T}")
        g(f"v_lshlrev_b32 v{T+2}, 1, v{T+2}")
        g(f"v_lshrrev_b32 v{T+3}, 5, v1")
        g(f"v_add_u32 v{T+2}, v{T+2}, v{T+3}")
        g(f"v_mul_u32_u24 v{T+2}, 80, v{T+2}")
        g(f"v_lshl_add_u32 v{T+2}, v{T+1}, 3, v{T+2}")
        g(f"v_add_u32 v{V_Q}, {L_WQ}, v{T+2}")
        g(f"v_lshrrev_b32 v{T+2}, 4, v1")
        g(f"v_and_b32 v{T+4}, 15, v1")
        g(f"s_lshl_b32 s{S_TMP}, s{S_W}, 5")
        g(f"v_add_u32 v{T+5}, s{S_TMP}, v{T+4}")
        g(f"v_mul_u32_u24 v{T+5}, 48, v{T+5}")
        g(f"v_add_u32 v{T+5}, {L_PUB}, v{T+5}")
        for t in range(5):
            g(f"v_add_u32 v{T+6}, {4*t}, v{T+2}")
            self.divmod_const(3, 4, T + 6, 5)
            g(f"v_mul_u32_u24 v{T+7}, 6144, v3")
            g(f"v_lshl_add_u32 v{T+7}, v4, 3, v{T+7}")
            g(f"v_add_u32 v{V_KVW+t}, v{T+7}, v{T+5}")
            if t < 2:
                g(f"v_add_u32 v{V_QW+t}, {L_QB - L_PUB}, v{V_KVW+t}")
            if t == 2:
                g(f"v_cmp_lt_u32 s[{S_TT}:{S_TT+1}], 1, v3")
                g(f"v_add_u32 v{T+7}, 40, v{T+5}")
                g(f"v_cndmask_b32 v{V_QW+2}, v{V_KVW+2}, v{T+7}, s[{S_TT}:{S_TT+1}]")
                g(f"v_add_u32 v{V_QW+2}, {L_QB - L_PUB}, v{V_QW+2}")
        g(f"v_and_b32 v{T+5}, 31, v1")
        g(f"v_add_u32 v{T+6}, s{S_TMP}, v{T+5}")
        g(f"v_mul_u32_u24 v{T+6}, 48, v{T+6}")
        g(f"v_lshl_add_u32 v{V_K1}, v{T+3}, 4, v{T+6}")
        g(f"v_lshl_add_u32 v{V_K2}, v{T+3}, 3, v{T+6}")
        g(f"v_add_u32 v{V_K2}, 32, v{V_K2}")
        g(f"v_bfe_u32 v{T+6}, v1, 2, 2")
        g(f"v_lshl_add_u32 v{T+6}, v{T+3}, 2, v{T+6}")
        g(f"v_add_u32 v{T+6}, s{S_TMP}, v{T+6}")
        g(f"v_mul_u32_u24 v{T+6}, 48, v{T+6}")
        g(f"v_bfe_u32 v{T+7}, v1, 4, 1")
        g(f"v_lshl_add_u32 v{T+6}, v{T+7}, 5, v{T+6}")
        g(f"v_lshl_add_u32 v{T+6}, v{T+1}, 3, v{T+6}")
        g(f"v_add_u32 v{V_VT}, {L_KVB + 36864}, v{T+6}")
        g(f"v_mul_u32_u24 v{V_OST}, 20480, v{T+7}")
        g(f"v_lshl_add_u32 v{V_OST}, v{T+4}, 4, v{V_OST}")
        g(f"v_lshl_add_u32 v{V_OST}, v{T+3}, 8, v{V_OST}")
        g(f"v_mul_u32_u24 v{V_XR}, 1280, v{T+4}")
        g(f"v_lshl_add_u32 v{V_XR}, v{T+2}, 3, v{V_XR}")
        g(f"v_min_u32 v{V_VEC}, 19, v1")
        g(f"v_lshlrev_b32 v{V_VEC}, 4, v{V_VEC}")
        g(f"v_lshlrev_b32 v{T+6}, 2, v{T+3}")
        g(f"v_sub_u32 v{T+6}, v{T+5}, v{T+6}")
        g(f"v_mov_b32 v{T+7}, {hx(NEG_BIG)}")
        for r in range(16):
            kk = 8 * (r >> 2) + (r & 3)
            sp = S_TMP + 2 + 2 * (r % 4)
            g(f"v_cmp_le_i32 s[{sp}:{sp+1}], {kk}, v{T+6}")
            if r % 4 == 3:
                for r2 in range(r - 3, r + 1):
                    sp = S_TMP + 2 + 2 * (r2 % 4)
                    g(f"v_cndmask_b32 v{V_BD+r2}, v{T+7}, 0, s[{sp}:{sp+1}]")
                    g(f"v_cndmask_b32 v{V_BF+r2}, 0, v{T+7}, s[{sp}:{sp+1}]")
        g(f"s_lshl_b32 s{S_TMP+11}, s{S_RB}, 1")
        g(f"s_add_u32 s{S_TMP+11}, s{S_TMP+11}, s{S_RH}")
        g(f"s_lshl_b32 s{S_TMP+11}, s{S_TMP+11}, 2")
        g(f"s_add_u32 s{S_TMP+11}, s{S_TMP+11}, s{S_W}")
        g(f"s_mul_i32 s{S_TMP+11}, s{S_TMP+11}, {16*1280}")
        g(f"s_mul_i32 s{S_TMP+1}, s{S_CQ}, 160")
        g(f"s_add_u32 s{S_TMP+11}, s{S_TMP+11}, s{S_TMP+1}")

    def p0(self):
        g = self.g
        cfg = self.cfg
        km = self.kmaps()
        g(f"s_cmp_lg_u32 s{S_W}, 0")
        g("s_cbranch_scc1 L_p0_dma")
        snap = g.snapshot()
        TK, Q = 240, 241
        if cfg["prio"]: g("s_setprio 3")
        X, X0 = 40, 160
        self.make_tags()
        SXC, SXF = S_TMP + 12, S_TMP + 13
        g(f"s_getreg_b32 s{SXC}, hwreg(HW_REG_XCC_ID, 0, 4)")
        self.flag_off(SXF, F_XC)
        g(f"s_lshl_b32 s{S_TMP+1}, s{S_J}, 4")
        g(f"v_mov_b32 v8, s{S_TMP+1}")
        g(f"v_mov_b32 v18, s{S_T}")
        g(f"v_mov_b32 v19, s{SXC}")
        g("s_mov_b64 exec, 1")
        g(f"buffer_store_dwordx2 v[18:19], v8, s[{R_WS}:{R_WS+3}], s{SXF} offen sc1")
        g("s_mov_b64 exec, -1")
        for r in range(88, 96): g(f"s_mov_b32 s{r}, {OOB}")
        self.srd(R_T, P_X, 2048 * 1280)
        for r in list(range(self.RP_A, self.RP_A + 5)) + list(range(self.RP_B, self.RP_B + 3)): g(f"v_mov_b32 v{r}, 0")
        g("v_mov_b32 v8, 0x3f803f80")
        g("v_mov_b32 v3, 0"); g("v_mov_b32 v4, 0")
        for r in range(X0, X0 + 40):
            g(f"v_dot2_f32_bf16 v3, v{r}, v8, v3")
            g(f"v_dot2_f32_bf16 v4, v{r}, v{r}, v4")
        if cfg["touch"]:
            g(f"s_lshl_b32 s{S_TMP+8}, s{S_RB}, 3")
            g(f"s_add_u32 s{S_TMP+8}, s{S_TMP+8}, s{S_CQ}")
            g(f"s_mul_i32 s{S_TMP+8}, s{S_TMP+8}, 20480")
            g(f"s_lshl_b32 s{S_TMP+9}, s{S_RH}, 7")
            g(f"s_add_u32 s{S_TMP+8}, s{S_TMP+8}, s{S_TMP+9}")
            g(f"s_add_u32 s{S_TMP+8}, s{S_TMP+8}, {WS_H}")
            g("v_lshlrev_b32 v243, 8, v1")
            g(f"buffer_load_dword v244, v243, s[{R_WS}:{R_WS+3}], s{S_TMP+8} offen")
            g("v_and_b32 v245, 15, v1")
            g("v_lshlrev_b32 v245, 8, v245")
            g(f"v_add_u32 v245, s{S_TMP+8}, v245")
            g("v_add_u32 v245, 16384, v245")
            g("v_bfe_u32 v246, v1, 1, 3")
            g("v_min_u32 v246, 5, v246")
            g("v_lshlrev_b32 v246, 12, v246")
            g("v_and_b32 v247, 1, v1")
            g("v_lshl_add_u32 v246, v247, 7, v246")
            g(f"s_lshl_b32 s{S_TMP+9}, s{S_RB}, 8")
            g(f"s_add_u32 s{S_TMP+9}, s{S_TMP+9}, {WS_FLAG}")
            g(f"v_add_u32 v246, s{S_TMP+9}, v246")
            g(f"v_cmp_lt_u32 s[{S_TT}:{S_TT+1}], 15, v1")
            g(f"v_cndmask_b32 v245, v245, v246, s[{S_TT}:{S_TT+1}]")
            g(f"buffer_load_dword v248, v245, s[{R_WS}:{R_WS+3}], 0 offen")
        self.allreduce2(3, 4, 8, 9, (8, 16, 32))
        self.rstd(3, 4, 8)
        Z = 80
        g("v_mov_b32 v8, v4"); g("v_mov_b32 v9, v4"); g("v_mov_b32 v18, v3"); g("v_mov_b32 v19, v3")
        for i in range(40):
            self.unpack(Z + 2*i, Z + 2*i + 1, X0 + i)
            g(f"v_pk_fma_f32 v[{Z+2*i}:{Z+2*i+1}], v[{Z+2*i}:{Z+2*i+1}], v[8:9], v[18:19]")
        self.stamp("z")
        M = 160
        g(f"s_mov_b32 s{S_TMP+1}, {WS_MODP}")
        g(f"s_mov_b32 s{S_TMP+2}, {WS_MODP + 4096}")
        g(f"s_mov_b32 s{S_TMP+3}, {WS_MODP + 15360}")
        g(f"s_mov_b32 s{S_TMP+4}, {WS_MODP + 15360 + 4096}")
        g("v_and_b32 v242, 15, v1")
        g("v_lshlrev_b32 v242, 4, v242")
        g(f"v_add_u32 v243, {L_SG}, v{V_L16}")
        g(f"v_cndmask_b32 v244, 0, 1.0, s[{S_HALF}:{S_HALF+1}]")
        g(f"v_lshlrev_b32 v245, 5, v{Q}")
        g(f"v_add_u32 v245, {L_SG}, v245")
        g(f"v_lshlrev_b32 v246, 8, v{Q}")
        g(f"v_lshl_add_u32 v246, v{TK}, 4, v246")
        g(f"s_lshl_b32 s{S_TMP}, s{S_RB}, 3")
        g(f"s_add_u32 s{S_TMP}, s{S_TMP}, s{S_CQ}")
        g(f"s_mul_i32 s{S_TMP}, s{S_TMP}, 20480")
        g(f"s_lshl_b32 s{S_TMP+5}, s{S_RH}, 7")
        g(f"s_add_u32 s{S_TMP}, s{S_TMP}, s{S_TMP+5}")
        g(f"s_add_u32 s{S_TMP}, s{S_TMP}, {WS_H}")
        L = g.newlabel("Lm"); D = g.newlabel("Lmd")
        g(f"s_mov_b32 s{S_CNT}, {POLL_MAX}")
        g.label(L)
        tk = []
        for i in range(5):
            for hf in range(2):
                so = S_TMP + 1 + 2 * hf + (i // 4)
                d = (X if hf == 0 else M) + 4 * i
                tk.append(g(f"buffer_load_dwordx4 v[{d}:{d+3}], v{V_L16}, s[{R_WS}:{R_WS+3}], s{so} offen offset:{(1024*i) % 4096} sc1"))
        g(f"buffer_load_dwordx2 v[248:249], v242, s[{R_WS}:{R_WS+3}], s{SXF} offen sc1")
        for i in range(5):
            for hf in range(2):
                d = (X if hf == 0 else M) + 4 * i
                self.tagcheck(247, range(d, d + 4), i == 0 and hf == 0)
        g("v_and_b32 v247, 0xff, v247")
        g(f"v_bitop3_b32 v247, v247, v248, s{S_T} bitop3:0xf6")
        g("v_cmp_ne_u32 vcc, 0, v247")
        g(f"s_cbranch_vccz {D}")
        g(f"s_sub_u32 s{S_CNT}, s{S_CNT}, 1")
        g(f"s_cbranch_scc0 {L}")
        g.label(D)
        self.stamp("mod")
        for i in range(5):
            b = X + 4 * i
            for k in (0, 2): g(f"v_pk_add_f32 v[{b+k}:{b+k+1}], v[{b+k}:{b+k+1}], v[{M+4*i+k}:{M+4*i+k+1}]")
            for rep in range(2 if i >= 2 else 1):
                if rep == 1:
                    add = "v244" if i == 2 else "1.0"
                    for k in range(4): g(f"v_add_f32 v{b+k}, {add}, v{b+k}")
                g(f"v_cvt_pk_bf16_f32 v{b}, v{b}, v{b+1}")
                g(f"v_cvt_pk_bf16_f32 v{b+2}, v{b+2}, v{b+3}")
                g(f"v_and_b32 v{b+1}, 0xffff0000, v{b}"); g(f"v_lshlrev_b32 v{b}, 16, v{b}")
                g(f"v_and_b32 v{b+3}, 0xffff0000, v{b+2}"); g(f"v_lshlrev_b32 v{b+2}, 16, v{b+2}")
            g(f"ds_write_b128 v243, v[{b}:{b+3}] offset:{1024*i}")
        g(f"v_cmp_ne_u32 vcc, s{SXC}, v249")
        g("s_cmp_eq_u64 vcc, 0")
        g(f"s_cselect_b32 s{S_FAST}, 1, 0")
        g(f"v_mov_b32 v248, s{S_FAST}")
        g(f"v_mov_b32 v249, {L_FAST}")
        g("ds_write_b32 v249, v248")
        g.wait_lg(0)
        def rd(i):
            b = 160 + 16 * (i % 3)
            g(f"ds_read_b128 v[{b}:{b+3}], v245 offset:{256*i}")
            g(f"ds_read_b128 v[{b+4}:{b+7}], v245 offset:{256*i+16}")
            g(f"ds_read_b128 v[{b+8}:{b+11}], v245 offset:{2560+256*i}")
            return g(f"ds_read_b128 v[{b+12}:{b+15}], v245 offset:{2560+256*i+16}")
        tk = {0: rd(0), 1: rd(1)}
        for i in range(10):
            if i + 2 < 10: tk[i + 2] = rd(i + 2)
            b = 160 + 16 * (i % 3)
            g.wait(tk[i])
            for e in range(0, 8, 2):
                g(f"v_pk_fma_f32 v[{Z+8*i+e}:{Z+8*i+e+1}], v[{Z+8*i+e}:{Z+8*i+e+1}], v[{b+8+e}:{b+9+e}], v[{b+e}:{b+e+1}]")
            for e in range(4):
                g(f"v_cvt_pk_bf16_f32 v{X+4*i+e}, v{Z+8*i+2*e}, v{Z+8*i+2*e+1}")
            g(f"buffer_store_dwordx4 v[{X+4*i}:{X+4*i+3}], v246, s[{R_WS}:{R_WS+3}], s{S_TMP} offen offset:{2048*(i%2)}")
            if i % 2 == 1 and i < 9: g(f"s_add_u32 s{S_TMP}, s{S_TMP}, 4096")
        self.publish(F_H, S_T, 8, 9)
        self.stamp("hpub")
        self.flag_off(S_TMP, F_H)
        g(f"v_add_u32 v242, s{S_TMP}, v242")
        g("v_and_b32 v243, 15, v1")
        g("v_min_u32 v243, 9, v243")
        g("v_lshlrev_b32 v243, 2, v243")
        g(f"s_mul_i32 s{S_TMP}, s{S_J}, 40")
        g(f"s_add_u32 s{S_TMP}, s{S_TMP}, {WS_RF + 12288}")
        g(f"v_add_u32 v243, s{S_TMP}, v243")
        g(f"v_cmp_lt_u32 s[{S_TT}:{S_TT+1}], 15, v1")
        g(f"v_cndmask_b32 v242, v242, v243, s[{S_TT}:{S_TT+1}]")
        g("v_and_b32 v243, 31, v1")
        g("v_min_u32 v243, 19, v243")
        g("v_lshlrev_b32 v243, 2, v243")
        g(f"s_mul_i32 s{S_TMP}, s{S_CQ}, 80")
        g(f"s_add_u32 s{S_TMP}, s{S_TMP}, {WS_RF + 4096}")
        g(f"v_add_u32 v243, s{S_TMP}, v243")
        g(f"v_cndmask_b32 v242, v242, v243, s[{S_HALF}:{S_HALF+1}]")
        g(f"s_mov_b32 s{S_TMP}, 0")
        self.poll(242, S_TMP, S_T, 4)
        if cfg["prio"]: g("s_setprio 0")
        g("s_branch L_p0_join")
        g.label("L_p0_dma")
        g.restore(snap)
        g.forget_vm()
        self.srd(R_A, P_WQKV, 640 * 3840)
        self.tile_regs(40, 5, 10, km["nat"], 3840, add=1280, T=32)
        SS, SO, SL, SC = S_TMP + 1, S_TMP + 2, S_TMP + 3, S_TMP + 10
        g(f"s_mul_i32 s{SC}, s{S_J}, 160")
        g(f"s_mul_i32 s{SS}, s{S_RB}, 205"); g(f"s_lshr_b32 s{SS}, s{SS}, 10"); g(f"s_mul_i32 s{SS}, s{SS}, 5")
        g(f"s_sub_u32 s{SS}, s{S_RB}, s{SS}")
        g(f"s_mul_i32 s{SS}, s{SS}, {4 if cfg['rot'] else 0}")
        g(f"s_add_u32 s{SS}, s{SS}, s{S_W}")
        g(f"s_sub_u32 s{SS}, s{SS}, 4")
        st_last = None
        for it in range(7):
            if it == cfg["rp_ld"]:
                self.make_tags()
                self.rp_setup1()
                for f in self.rp_load_items()[6:]: f()
            if it == cfg["rp_st"]:
                for f in self.rp_store_items()[6:]: st_last = f()
            if it == cfg["rp_st"] + 2:
                g.wait(st_last)
                self.rp_flags()
            if cfg["rp2"] == it:
                assert it >= cfg["rp_st"] + 2
                self.rp_setup2()
                self.srd(R_B, P_WD, 1536 * 1280)
                for f in self.rp_load_items(): f()
            if it == 6:
                keep = g.snapshot()
                g(f"s_cmp_eq_u32 s{S_W}, 3")
                g("s_cbranch_scc1 L_p0_kvdone")
            g(f"s_add_u32 s{SS}, s{SS}, 3")
            g(f"s_sub_u32 s{SO}, s{SS}, 20")
            g(f"s_cmp_ge_i32 s{SO}, 0")
            g(f"s_cselect_b32 s{SS}, s{SO}, s{SS}")
            g(f"s_mul_i32 s{SO}, s{SS}, {32*3840}")
            g(f"s_add_u32 s{SO}, s{SO}, s{SC}")
            g(f"s_mul_i32 s{SL}, s{SS}, 5120")
            items, toks = self.dma_items(range(40, 45), R_A, SO, SL, L_WKV)
            for f in items: f()
        g.label("L_p0_kvdone")
        g.restore(keep)
        if cfg["rp2"] in ("s1", 7): self.rp_setup2()
        if cfg["rp2"] == 7:
            g.forget_vm()
            self.srd(R_B, P_WD, 1536 * 1280)
            for f in self.rp_load_items(): f()
            g.wait_vm(11)
        else:
            g.wait_vm(0)
        self.stamp("l_kv")
        g.label("L_p0_join")
        g.forget()

    RP_A, RP_B, RP_D = 250, 37, 160
    def rp_regs(self, dst, n, cpr, kmap, pitch):
        g = self.g; T = 32
        for k in range(n):
            g(f"v_add_u32 v{T}, {64*k}, v1")
            self.divmod_const(T+1, T+2, T, cpr)
            kmap[0](T+3, T+1, T+4)
            g(f"v_mul_u32_u24 v{T+3}, {pitch}, v{T+3}")
            g(f"v_lshl_add_u32 v{dst+k}, v{T+2}, 4, v{T+3}")
    def rp_setup1(self):
        g = self.g; km = self.kmaps(); S = 84
        Lq, Lj = g.newlabel("Lrq"), g.newlabel("Lrj")
        g(f"s_sub_u32 s{S}, s{S_B}, 96")
        g(f"s_cmp_eq_u32 s{S_W}, 2")
        g(f"s_cbranch_scc1 {Lq}")
        self.srd(R_B, P_WO, 640 * 1280)
        g(f"s_and_b32 s{S+1}, s{S}, 7")
        g(f"s_lshr_b32 s{S+2}, s{S}, 3")
        g(f"s_mul_i32 s91, s{S+2}, {32*1280}")
        g(f"s_mul_i32 s{S+3}, s{S+1}, 160")
        g(f"s_add_u32 s91, s91, s{S+3}")
        g(f"s_mul_i32 s95, s{S+1}, 20")
        g(f"s_add_u32 s95, s95, s{S+2}")
        g("s_mul_i32 s94, s95, 5120")
        g(f"s_add_u32 s94, s94, {WS_RWO}")
        g("s_lshl_b32 s95, s95, 2")
        g("s_add_u32 s95, s95, 4096")
        self.rp_regs(self.RP_A, 5, 10, km["nat"], 1280)
        g(f"s_branch {Lj}")
        g.label(Lq)
        self.srd(R_B, P_WQKV, 640 * 3840)
        g(f"s_and_b32 s{S+1}, s{S}, 15")
        g(f"s_lshr_b32 s{S+2}, s{S}, 4")
        g(f"s_mul_i32 s91, s{S+2}, {64*3840}")
        g(f"s_mul_i32 s{S+3}, s{S+1}, 80")
        g(f"s_add_u32 s91, s91, s{S+3}")
        g(f"s_mul_i32 s95, s{S+1}, 10")
        g(f"s_add_u32 s95, s95, s{S+2}")
        g("s_mul_i32 s94, s95, 5120")
        g(f"s_add_u32 s94, s94, {WS_RQ}")
        g("s_lshl_b32 s95, s95, 2")
        g("s_add_u32 s95, s95, 12288")
        self.rp_regs(self.RP_A, 5, 5, km["q"], 3840)
        g.label(Lj)
        g(f"s_cmp_lt_u32 s{S_B}, 96")
        g(f"s_cselect_b32 s{S}, 1, s{S_W}")
        g(f"s_cmp_eq_u32 s{S}, 1")
        for r in (91, 94, 95): g(f"s_cselect_b32 s{r}, {OOB}, s{r}")
        g("s_add_u32 s93, s94, 4096")
        g(f"s_mov_b32 s90, {OOB}")
    def rp_setup2(self):
        g = self.g; km = self.kmaps(); S = 84
        g(f"s_sub_u32 s{S}, s{S_W}, 1")
        g(f"s_lshl_b32 s{S}, s{S}, 8")
        g(f"s_add_u32 s{S}, s{S}, s{S_B}")
        g(f"s_and_b32 s{S+1}, s{S}, 1")
        g(f"s_lshr_b32 s{S+2}, s{S}, 1")
        g(f"s_and_b32 s{S+3}, s{S+2}, 15")
        g(f"s_lshr_b32 s{S+2}, s{S+2}, 4")
        g(f"s_cmp_eq_u32 s{S+1}, 0")
        g(f"s_cselect_b32 s{R_T}, s{P_WG}, s{P_WU}")
        g(f"s_cselect_b32 s{R_T+1}, s{P_WG+1}, s{P_WU+1}")
        g(f"s_mov_b32 s{R_T+2}, {640*3072}")
        g(f"s_mov_b32 s{R_T+3}, 0x20000")
        g(f"s_mul_i32 s88, s{S+2}, {32*3072}")
        g(f"s_mul_i32 s89, s{S+3}, 192")
        g("s_add_u32 s88, s88, s89")
        g(f"s_mul_i32 s89, s{S+3}, 245760")
        g(f"s_mul_i32 s90, s{S+2}, 6144")
        g("s_add_u32 s89, s89, s90")
        g(f"s_mul_i32 s90, s{S+1}, 3072")
        g("s_add_u32 s89, s89, s90")
        g(f"s_add_u32 s89, s89, {WS_RGU}")
        g(f"s_mul_i32 s90, s{S+3}, 20")
        g(f"s_add_u32 s90, s90, s{S+2}")
        g("s_lshl_b32 s90, s90, 1")
        g(f"s_add_u32 s90, s90, s{S+1}")
        g("s_lshl_b32 s90, s90, 2")
        g(f"s_cmp_ge_u32 s{S}, 640")
        for r in (88, 89, 90): g(f"s_cselect_b32 s{r}, {OOB}, s{r}")
        g("s_add_u32 s92, s89, 122880")
        g(f"s_sub_u32 s{S+1}, s{S}, 384")
        g(f"s_cmp_lt_u32 s{S}, 256")
        g(f"s_cselect_b32 s{S+1}, s{S}, s{S+1}")
        g(f"s_cselect_b32 s{S+2}, 1, 0")
        g(f"s_sub_u32 s{S+3}, s{S}, 640")
        g(f"s_cmp_lt_u32 s{S+3}, 128")
        g(f"s_cselect_b32 s{S+2}, 1, s{S+2}")
        g(f"s_and_b32 s{S+3}, s{S+1}, 7")
        g(f"s_lshr_b32 s{S+1}, s{S+1}, 3")
        g(f"s_mul_i32 s91, s{S+1}, {32*1280}")
        g(f"s_mul_i32 s94, s{S+3}, 160")
        g("s_add_u32 s91, s91, s94")
        g(f"s_mul_i32 s95, s{S+3}, 48")
        g(f"s_add_u32 s95, s95, s{S+1}")
        g("s_mul_i32 s94, s95, 5120")
        g(f"s_add_u32 s94, s94, {WS_RWD}")
        g("s_lshl_b32 s95, s95, 2")
        g("s_add_u32 s95, s95, 8192")
        g(f"s_cmp_eq_u32 s{S+2}, 0")
        for r in (91, 94, 95): g(f"s_cselect_b32 s{r}, {OOB}, s{r}")
        g("s_add_u32 s93, s94, 4096")
        self.rp_regs(self.RP_A, 5, 10, km["id"], 1280)
        self.rp_regs(self.RP_B, 3, 6, km["nat"], 3072)
    def rp_load_items(self):
        g = self.g
        out = []
        for n in range(6):
            d = self.RP_D + 4 * n
            out.append(lambda n=n, d=d: g(f"buffer_load_dwordx4 v[{d}:{d+3}], v{self.RP_B+n%3}, s[{R_T}:{R_T+3}], s88 offen offset:{96*(n//3)} nt"))
        for n in range(5):
            d = self.RP_D + 24 + 4 * n
            out.append(lambda n=n, d=d: g(f"buffer_load_dwordx4 v[{d}:{d+3}], v{self.RP_A+n}, s[{R_B}:{R_B+3}], s91 offen nt"))
        return out
    def rp_store_items(self):
        g = self.g
        out = []
        for n in range(6):
            d = self.RP_D + 4 * n
            out.append(lambda n=n, d=d: g(f"buffer_store_dwordx4 v[{d}:{d+3}], v{V_L16}, s[{R_WS}:{R_WS+3}], s{89 if n < 3 else 92} offen offset:{1024*(n%3)} sc1"))
        for n in range(5):
            d = self.RP_D + 24 + 4 * n
            out.append(lambda n=n, d=d: g(f"buffer_store_dwordx4 v[{d}:{d+3}], v{V_L16}, s[{R_WS}:{R_WS+3}], s{94 if n < 4 else 93} offen offset:{1024*(n%4)} sc1"))
        return out
    def rp_flags(self):
        g = self.g
        g(f"v_mov_b32 v4, s{S_T}")
        g(f"s_mov_b32 s100, {WS_RF}")
        g("v_mov_b32 v3, s90")
        g("v_writelane_b32 v3, s95, 1")
        g("s_mov_b64 exec, 3")
        g(f"buffer_store_dword v4, v3, s[{R_WS}:{R_WS+3}], s100 offen sc1")
        g("s_mov_b64 exec, -1")
    def lin_items(self, n, soff, lds_sreg, lds_const, step_after=None, flags=""):
        g = self.g
        toks, out = [], []
        if self.cfg.get("x_nodma"):
            t = Tok("vm", set()); t.done = True
            return [lambda: toks.append(t)] * n, toks
        for i in range(n):
            def f(i=i):
                if i % 4 == 0:
                    c = lds_const + i * 1024
                    if lds_sreg is None: g(f"s_mov_b32 m0, {c}")
                    else: g(f"s_add_u32 m0, s{lds_sreg}, {c}")
                    if i == 4: g(f"s_add_u32 s{soff}, s{soff}, 4096")
                toks.append(g(f"buffer_load_dwordx4 v{V_L16}, s[{R_WS}:{R_WS+3}], s{soff} offen offset:{(i%4)*1024} {flags} lds"))
                if i == n - 1 and step_after is not None:
                    g(f"s_add_u32 s{soff}, s{soff}, {step_after - (4096 if n > 4 else 0)}")
            out.append(f)
        return out, toks

    def p1(self):
        g = self.g
        cfg = self.cfg
        SB0 = S_TMP + 14
        g(f"s_lshl_b32 s{SB0}, s{S_RB}, 2")
        g(f"s_add_u32 s{SB0}, s{SB0}, s{S_W}")
        g(f"s_mul_i32 s{SB0}, s{SB0}, 40960")
        g(f"s_add_u32 s{SB0}, s{SB0}, {WS_H}")
        g(f"s_add_u32 s{SB0+1}, s{SB0}, 20480")
        pc = Sched(cfg["cap"])
        self.barrier()
        self.stamp("hseen")
        self.code_touch("L_c2", 4, 1, 204)
        g(f"v_mov_b32 v3, {L_FAST}")
        g("ds_read_b32 v4, v3")
        g(f"v_readfirstlane_b32 s{S_FAST}, v4")
        self.acquire()
        btok = self.bitems(pc, 20, SB0, cfg["la"])
        SQ, SQL = S_TMP + 12, S_TMP + 13
        g(f"s_mul_i32 s{SQL}, s{S_W}, 13312")
        g(f"s_mul_i32 s{SQ}, s{S_J}, 51200")
        g(f"s_add_u32 s{SQ}, s{SQ}, s{SQL}")
        g(f"s_add_u32 s{SQ}, s{SQ}, {WS_RQ}")
        qtok = []
        for q in range(4):
            items, toks = self.lin_items(4 if q < 3 else 1, SQ, SQL, L_WQ + 4096 * q, step_after=4096, flags="sc1")
            for f in items: pc.add(f, 72)
            qtok.append(toks)
        if cfg["rp2"] != "s1":
            for f in self.rp_store_items(): pc.add(f, 60)
        ACC, AB = 40, 80
        self.gemm16(20, 5, ACC, AB,
                    lambda s_, t, hi: (V_KV0 if s_ < 10 else V_KV1, (s_ % 10) * 5120 + hi * 2560 + 32 * t),
                    lambda s_, Tp: a_((Tp * 20 + s_) * 4, 4), sc=pc, btok=btok, hooks={13: self.barrier})
        pc.drain()
        self.stamp("kvgemm")
        g("v_and_b32 v32, 127, v0")
        g("v_mul_u32_u24 v32, 48, v32")
        g("v_lshrrev_b32 v33, 7, v0")
        g("v_mul_u32_u24 v33, 6144, v33")
        g("v_add_u32 v32, v32, v33")
        g(f"v_add_u32 v32, {L_PUB + 40}, v32")
        g(f"s_cmp_lt_u32 s{S_J}, 8")
        g(f"s_mov_b32 s{S_TMP}, 0x3f803f80")
        g(f"s_cselect_b32 s{S_TMP+1}, 0x3f800000, s{S_TMP}")
        g(f"v_mov_b32 v34, s{S_TMP+1}"); g(f"v_mov_b32 v35, s{S_TMP}")
        for Tp in range(2):
            for t in range(5):
                D = ACC + (Tp * 5 + t) * 4
                g(f"v_cvt_pk_bf16_f32 v{D}, v{D}, v{D+1}")
                g(f"v_cvt_pk_bf16_f32 v{D+1}, v{D+2}, v{D+3}")
        for Tp in range(2):
            for t in range(5):
                D = ACC + (Tp * 5 + t) * 4
                g(f"ds_write_b64 v{V_KVW+t}, v[{D}:{D+1}] offset:{768*Tp}")
        g("ds_write_b64 v32, v[34:35]")
        g("ds_write_b64 v32, v[34:35] offset:12288")
        g(f"s_mul_i32 s{S_TMP}, s{S_W}, 6144")
        g(f"s_add_u32 s{S_TMP}, s{S_TMP}, {L_PUB}")
        g(f"v_add_u32 v33, s{S_TMP}, v{V_L16}")
        g(f"s_lshl_b32 s{S_TMP}, s{S_RB}, 4")
        g(f"s_add_u32 s{S_TMP}, s{S_TMP}, s{S_J}")
        g(f"s_lshl_b32 s{S_TMP}, s{S_TMP}, 2")
        g(f"s_add_u32 s{S_TMP}, s{S_TMP}, s{S_W}")
        g(f"s_mul_i32 s{S_TMP}, s{S_TMP}, 6144")
        g(f"s_add_u32 s{S_TMP}, s{S_TMP}, {WS_KV}")
        g(f"s_add_u32 s{S_TMP+1}, s{S_TMP}, 4096")
        g.wait_lg(0)
        self.barrier()
        ACC = 52
        for i in range(6):
            g(f"ds_read_b128 v[{ACC+4*i}:{ACC+4*i+3}], v33 offset:{1024*i}")
        for i in range(6):
            sttok = g(f"buffer_store_dwordx4 v[{ACC+4*i}:{ACC+4*i+3}], v{V_L16}, s[{R_WS}:{R_WS+3}], s{S_TMP + i//4} offen offset:{(1024*i) % 4096} sc1")
        self.stamp("kvst")
        g(f"s_mul_i32 s{S_PK}, s{S_B}, 1639")
        g(f"s_lshr_b32 s{S_PK}, s{S_PK}, 16")
        g(f"s_mul_i32 s{S_P}, s{S_PK}, 40")
        g(f"s_sub_u32 s{S_P}, s{S_B}, s{S_P}")
        g(f"s_add_u32 s{S_P}, s{S_P}, 20")
        self.gemv_loads(40, 104, 4)
        self.srd(R_B, P_WD, 1536 * 1280)
        g.wait(qtok[-1][-1])
        self.barrier()
        QACC = 120
        hooks = {}
        pc = Sched(2)
        if cfg["rp2"] == "s1":
            for f in self.rp_load_items(): pc.add(f, 90, cfg["rp2_step"])
        def flags():
            g.wait(sttok)
            self.stamp("kvdrain")
            sc = self.SC; self.SC = "sc1"
            self.send_flag(F_KV, S_T, 3, 4)
            self.SC = sc
            if cfg["rp2"] != "s1": self.rp_flags()
        hooks[cfg["kvflag_step"]] = flags
        self.gemm16(20, 3, QACC, AB,
                    lambda s_, t, hi: (V_Q, s_ * 2560 + hi * 1280 + 32 * t),
                    lambda s_, Tp: a_((Tp * 20 + s_) * 4, 4), sc=pc, hooks=hooks)
        pc.drain()
        g(f"s_mov_b32 s{S_TMP}, {hx(fbits(QSCALE))}")
        for Tp in range(2):
            for t in range(3):
                D = QACC + (Tp * 3 + t) * 4
                for k in range(4): g(f"v_mul_f32 v{D+k}, s{S_TMP}, v{D+k}")
                g(f"v_cvt_pk_bf16_f32 v{D}, v{D}, v{D+1}")
                g(f"v_cvt_pk_bf16_f32 v{D+1}, v{D+2}, v{D+3}")
                g(f"ds_write_b64 v{V_QW+t}, v[{D}:{D+1}] offset:{768*Tp}")
        self.stamp("qgemm")

    def p2(self):
        g = self.g
        cfg = self.cfg
        S0, S1, S2, O0, O1, P, VF, QF = 40, 56, 72, 88, 104, 120, 128, 144
        g.label("L_c2")
        XR = 240
        g(f"s_cmp_lg_u32 s{S_W}, 0")
        g("s_cbranch_scc1 L_kvseen")
        self.flag_off(S_TMP, F_KV)
        g("v_lshrrev_b32 v3, 2, v1")
        g(f"s_min_u32 s{S_TMP+1}, s{S_RB}, 2")
        g(f"v_min_u32 v3, s{S_TMP+1}, v3")
        g(f"s_lshl_b32 s{S_TMP+1}, s{S_TMP+1}, 8")
        g(f"s_sub_u32 s{S_TMP}, s{S_TMP}, s{S_TMP+1}")
        g("v_lshlrev_b32 v3, 8, v3")
        g("v_bfe_u32 v4, v1, 1, 1")
        g("v_lshl_add_u32 v3, v4, 7, v3")
        g("v_and_b32 v4, 1, v1")
        g("v_lshl_add_u32 v3, v4, 2, v3")
        g(f"s_lshl_b32 s{S_TMP+1}, s{S_CQ}, 4")
        g(f"s_lshl_b32 s{S_TMP+2}, s{S_RH}, 3")
        g(f"s_add_u32 s{S_TMP+1}, s{S_TMP+1}, s{S_TMP+2}")
        g(f"v_add_u32 v3, s{S_TMP+1}, v3")
        g(f"s_min_u32 s{S_TMP+1}, s{S_RB}, 2")
        g(f"s_lshl_b32 s{S_TMP+1}, s{S_TMP+1}, 8")
        g("v_and_b32 v4, 15, v1")
        g("v_lshlrev_b32 v4, 4, v4")
        g(f"v_add_u32 v4, s{S_TMP+1}, v4")
        g(f"v_cndmask_b32 v3, v3, v4, s[{S_HALF}:{S_HALF+1}]")
        keep = g.snapshot()
        self.poll(3, S_TMP, S_T, 4)
        g.label("L_kvseen")
        g.restore(keep)
        SK = S_TMP + 2
        g(f"s_lshl_b32 s{SK}, s{S_RB}, 4")
        g(f"s_add_u32 s{SK}, s{SK}, s{S_CQ}")
        g(f"s_lshl_b32 s{SK}, s{SK}, 2")
        g(f"s_lshl_b32 s{S_TMP}, s{S_RH}, 1")
        g(f"s_add_u32 s{SK}, s{SK}, s{S_TMP}")
        g(f"s_add_u32 s{SK}, s{SK}, s{S_KH}")
        g(f"s_mul_i32 s{SK}, s{SK}, 6144")
        g(f"s_mul_i32 s{S_TMP}, s{S_TP}, 3072")
        g(f"s_add_u32 s{SK}, s{SK}, s{S_TMP}")
        g(f"s_add_u32 s{SK}, s{SK}, {WS_KV}")
        for d in (1, 2):
            g(f"s_sub_u32 s{SK+d}, s{SK}, {d*64*6144}")
            g(f"s_cmp_ge_u32 s{S_RB}, {d}")
            g(f"s_cselect_b32 s{SK+d}, s{SK+d}, {OOB}")
        g(f"s_mul_i32 s{S_TMP+1}, s{S_KH}, 18432")
        g(f"s_add_u32 s{S_TMP+1}, s{S_TMP+1}, s{S_TMP}")
        g(f"v_add_u32 v32, {L_QB}, v{V_K1}")
        g(f"v_add_u32 v33, {L_QB}, v{V_K2}")
        g.wait_lg(0)
        for u in range(2):
            g(f"ds_read_b128 v[{QF+8*u}:{QF+8*u+3}], v32 offset:{6144*u}")
            g(f"ds_read_b64 v[{QF+8*u+4}:{QF+8*u+5}], v33 offset:{6144*u}")
        g(f"s_mul_i32 s{S_TMP+5}, s{S_W}, 2560")
        g(f"s_mul_i32 s{S_TMP+6}, s{S_CQ}, 320")
        g(f"s_add_u32 s{S_TMP+5}, s{S_TMP+5}, s{S_TMP+6}")
        g(f"s_add_u32 s{S_TMP+5}, s{S_TMP+5}, {WS_MODL}")
        self.barrier()
        self.stamp("haloseen")
        for mv in range(2):
            for d in (2, 1, 0):
                g(f"s_add_u32 m0, s{S_TMP+1}, {L_KVB + 36864*mv + 6144*(2-d)}")
                if mv: g(f"s_add_u32 s{SK+d}, s{SK+d}, {32*6144}")
                for i in range(3):
                    t = g(f"buffer_load_dwordx4 v{V_L16}, s[{R_WS}:{R_WS+3}], s{SK+d} offen offset:{1024*i} sc1 lds")
            if mv == 0: ktok = t
            else: vtok = t
        if cfg["rp2"] == "s1":
            for f in self.rp_store_items(): rp_last = f()
        CU = 1 if cfg["rp2"] == "s1" else 0
        g("v_mov_b32 v34, 0x3f80")
        for u in range(2):
            g(f"v_cndmask_b32 v{QF+8*u+4}, v{QF+8*u+4}, v34, s[{S_HALF}:{S_HALF+1}]")
            g(f"v_cndmask_b32 v{QF+8*u+5}, v{QF+8*u+5}, 0, s[{S_HALF}:{S_HALF+1}]")
        g(f"s_cmp_eq_u32 s{S_W}, 2")
        g(f"s_cselect_b32 s{S_TMP+7}, 1.0, 0")
        g(f"s_mov_b32 s{S_TMP+8}, {hx(fbits(NLOG2E))}")
        g(f"s_cmp_eq_u32 s{S_W}, 0")
        g(f"s_cselect_b32 s{S_TMP+8}, 1.0, s{S_TMP+8}")
        g(f"s_cmp_eq_u32 s{S_W}, 3")
        g(f"s_cselect_b32 s{S_TMP+8}, {hx(fbits(1/NLOG2E))}, s{S_TMP+8}")
        self.srd(R_A, P_X, 2048 * 1280)
        SO, SL, SG = S_TMP + 12, S_TMP + 13, S_TMP + 16
        g(f"s_mul_i32 s{SO}, s{S_CQ}, 20")
        g(f"s_add_u32 s{SO}, s{SO}, s{S_W}")
        g(f"s_lshl_b32 s{S_TMP+9}, s{SO}, 2")
        g(f"s_mul_i32 s{SO}, s{SO}, 5120")
        g(f"s_add_u32 s{SO}, s{SO}, {WS_RWO}")
        g(f"s_mul_i32 s{SL}, s{S_W}, 5120")
        g(f"s_mul_i32 s{SG}, s{S_J}, 245760")
        g(f"s_mul_i32 s{S_TMP+10}, s{S_W}, 3072")
        g(f"s_add_u32 s{SG}, s{SG}, s{S_TMP+10}")
        g(f"s_add_u32 s{SG}, s{SG}, {WS_RGU}")
        g("v_min_u32 v35, 9, v1")
        g("v_lshlrev_b32 v35, 4, v35")
        g(f"s_mul_i32 s{S_TMP+10}, s{S_J}, 160")
        g(f"s_lshl_b32 s{S_TMP}, s{S_W}, 2")
        g(f"s_add_u32 s{S_TMP+10}, s{S_TMP+10}, s{S_TMP}")
        g(f"v_add_u32 v35, s{S_TMP+10}, v35")
        g("v_subrev_u32 v36, 10, v1")
        g("v_lshlrev_b32 v36, 4, v36")
        g(f"s_add_u32 s{S_TMP+9}, s{S_TMP+9}, 4096")
        g(f"v_add_u32 v36, s{S_TMP+9}, v36")
        g(f"v_cmp_lt_u32 s[{S_TT}:{S_TT+1}], 9, v1")
        g(f"v_cndmask_b32 v35, v35, v36, s[{S_TT}:{S_TT+1}]")
        g("v_min_u32 v36, 26, v1")
        g("v_subrev_u32 v36, 15, v36")
        g("v_lshlrev_b32 v36, 3, v36")
        g(f"s_mul_i32 s{S_TMP+9}, s{S_CQ}, 48")
        g(f"s_mul_i32 s{S_TMP+10}, s{S_KH}, 24")
        g(f"s_add_u32 s{S_TMP+9}, s{S_TMP+9}, s{S_TMP+10}")
        g(f"s_add_u32 s{S_TMP+9}, s{S_TMP+9}, s{S_TP}")
        g(f"s_lshl_b32 s{S_TMP+9}, s{S_TMP+9}, 2")
        g(f"s_add_u32 s{S_TMP+9}, s{S_TMP+9}, 8192")
        g(f"v_add_u32 v36, s{S_TMP+9}, v36")
        g(f"v_cmp_lt_u32 s[{S_TT}:{S_TT+1}], 14, v1")
        g(f"v_cndmask_b32 v35, v35, v36, s[{S_TT}:{S_TT+1}]")
        g(f"s_mov_b32 s{S_TMP+10}, {WS_RF}")
        snap = g.snapshot()
        g(f"s_cmp_ge_u32 s{S_B}, 200")
        g("s_cbranch_scc1 L_late1")
        SAVE = (S_TMP + 4, S_TMP + 5, S_TMP + 6)
        for k, r in enumerate(SAVE): g(f"s_mov_b32 s{84+k}, s{r}")
        self.gemv_finish(40, 104, 76, "L_late2", False, 4, WS_MODL - 5120, 10240)
        g.label("L_late2")
        for k, r in enumerate(SAVE): g(f"s_mov_b32 s{r}, s{84+k}")
        g.label("L_late1")
        g.restore(snap)
        g.wait(ktok)
        g(f"s_cmp_ge_u32 s{S_RB}, 2")
        g("s_cbranch_scc1 L_noinv")
        g("v_mul_u32_u24 v3, 48, v1")
        g(f"v_add_u32 v3, s{S_TMP+1}, v3")
        g(f"v_mov_b32 v8, {hx(0x3f800000 | (NEG_BIG >> 16))}")
        g("v_mov_b32 v9, 0x3f803f80")
        g(f"ds_write_b64 v3, v[8:9] offset:{L_KVB + 40}")
        g(f"s_cmp_ge_u32 s{S_RB}, 1")
        g("s_cbranch_scc1 L_noinv")
        g(f"ds_write_b64 v3, v[8:9] offset:{L_KVB + 6144 + 40}")
        g.label("L_noinv")
        g.wait_lg(0)
        self.barrier()
        self.stamp("attn0")
        self.code_touch("L_c3", 5, 1, 204)
        pc = Pacer()
        for t in range(5):
            pc.add(lambda t=t: g(f"buffer_load_dwordx2 v[{XR+2*t}:{XR+2*t+1}], v{V_XR}, s[{R_A}:{R_A+3}], s{S_TMP+11} offen offset:{32*t}"), 100)
        if cfg["touch"]:
            g(f"s_lshl_b32 s{S_TMP+9}, s{S_RB}, 3")
            g(f"s_add_u32 s{S_TMP+9}, s{S_TMP+9}, s{S_CQ}")
            g(f"s_lshl_b32 s{S_TMP+9}, s{S_TMP+9}, 3")
            g(f"s_lshl_b32 s{S_TMP}, s{S_RH}, 2")
            g(f"s_add_u32 s{S_TMP+9}, s{S_TMP+9}, s{S_TMP}")
            g(f"s_add_u32 s{S_TMP+9}, s{S_TMP+9}, s{S_W}")
            g(f"s_lshl_b32 s{S_TMP+9}, s{S_TMP+9}, 8")
            g(f"s_add_u32 s{S_TMP+9}, s{S_TMP+9}, {WS_ST}")
            g("v_lshlrev_b32 v32, 2, v1")
            pc.add(lambda: g(f"buffer_load_dword v33, v32, s[{R_WS}:{R_WS+3}], s{S_TMP+9} offen"), 100)
        cost = cfg["attn_cost"]
        for it in range(4):
            items, _ = self.lin_items(5, SO, SL, L_WO_E + it * 20480, step_after=20480, flags="sc1")
            for f in items: pc.add(f, cfg["wo_cost"])
        for d in range(cfg["stage"]):
            for n in range(3):
                def f(d=d, n=n):
                    r = A_STG + 12 * d + 4 * n
                    g(f"buffer_load_dwordx4 a[{r}:{r+3}], v{V_L16}, s[{R_WS}:{R_WS+3}], s{SG} offen offset:{1024*n} sc1")
                    if n == 2: g(f"s_add_u32 s{SG}, s{SG}, 12288")
                pc.add(f, cfg["gu_cost"], 1)
        phase = [0]
        def tick(dt): pc.tick(dt, phase[0])
        def rp_issue():
            self.rp_tok = g(f"buffer_load_dword v36, v35, s[{R_WS}:{R_WS+3}], s{S_TMP+10} offen sc1")
        def rp_check():
            Ls, Lj = g.newlabel("Lrs"), g.newlabel("Lrj")
            g(f"v_cmp_ne_u32 vcc, s{S_T}, v36")
            g(f"s_cbranch_vccnz {Ls}")
            g.label(Lj)
            def slow():
                L2 = g.newlabel("Lrl")
                g.label(Ls)
                g.raw(f"s_mov_b32 s{S_CNT}, {POLL_MAX}")
                g.label(L2)
                g.raw(f"buffer_load_dword v36, v35, s[{R_WS}:{R_WS+3}], s{S_TMP+10} offen sc1")
                g.raw("s_waitcnt vmcnt(0)")
                g.raw(f"v_cmp_ne_u32 vcc, s{S_T}, v36")
                g.raw(f"s_cbranch_vccz {Lj}")
                g.raw(f"s_sub_u32 s{S_CNT}, s{S_CNT}, 1")
                g.raw(f"s_cbranch_scc0 {L2}")
                g.raw(f"s_branch {Lj}")
            self.cold.append(slow)
            phase[0] = 1
            pc.free = pc.t
        VG = 176
        def vec_issue():
            for k in range(5):
                g(f"s_add_u32 s{S_TMP+6}, s{S_TMP+5}, {10240*k}")
                g(f"buffer_load_dwordx4 v[{VG+4*k}:{VG+4*k+3}], v{V_VEC}, s[{R_WS}:{R_WS+3}], s{S_TMP+6} offen sc1")
        def vec_check():
            Ls, Lj = g.newlabel("Lvs"), g.newlabel("Lvj")
            def chk():
                for k in range(5): self.tagcheck(VG + 20, range(VG + 4*k, VG + 4*k + 4), k == 0)
                g(f"v_and_b32 v{VG+20}, 0xff, v{VG+20}")
                g(f"v_cmp_ne_u32 vcc, 0, v{VG+20}")
            chk()
            g(f"s_cbranch_vccnz {Ls}")
            g.label(Lj)
            def slow():
                L2 = g.newlabel("Lvl")
                g.label(Ls)
                g.forget()
                g(f"s_mov_b32 s{S_CNT}, {POLL_MAX}")
                g.label(L2)
                vec_issue()
                g.wait_vm(0)
                chk()
                g(f"s_cbranch_vccz {Lj}")
                g(f"s_sub_u32 s{S_CNT}, s{S_CNT}, 1")
                g(f"s_cbranch_scc0 {L2}")
                g(f"s_branch {Lj}")
            self.cold.append(slow)
            b = VG
            for q in range(1, 5):
                for k in (0, 2): g(f"v_pk_add_f32 v[{b+k}:{b+k+1}], v[{b+k}:{b+k+1}], v[{b+4*q+k}:{b+4*q+k+1}]")
            for rep in range(2):
                if rep:
                    for k in range(4): g(f"v_add_f32 v{b+k}, s{S_TMP+7}, v{b+k}")
                g(f"v_cvt_pk_bf16_f32 v{b+4}, v{b}, v{b+1}")
                g(f"v_cvt_pk_bf16_f32 v{b+5}, v{b+2}, v{b+3}")
                self.unpack(b, b + 1, b + 4); self.unpack(b + 2, b + 3, b + 5)
            for k in range(4): g(f"v_mul_f32 v{b+k}, s{S_TMP+8}, v{b+k}")
            g(f"s_mul_i32 s{S_TMP}, s{S_W}, 320")
            g(f"s_add_u32 s{S_TMP}, s{S_TMP}, {L_VEC}")
            g(f"v_add_u32 v3, s{S_TMP}, v{V_VEC}")
            g(f"ds_write_b128 v3, v[{b}:{b+3}]")
        SB = (S0, S1, S2)
        def kread(u, tau):
            g(f"ds_read_b128 a[{8*tau}:{8*tau+3}], v{V_K1} offset:{L_KVB + 18432*u + 1536*tau}")
            return g(f"ds_read_b64 a[{8*tau+4}:{8*tau+5}], v{V_K2} offset:{L_KVB + 18432*u + 1536*tau}")
        def qk_a(u, tau):
            Sx = SB[tau % 3]
            C = v(V_BF, 16) if tau == 0 else v(V_BD, 16) if tau == 8 else "0"
            g(f"v_mfma_f32_32x32x16_bf16 v[{Sx}:{Sx+15}], a[{8*tau}:{8*tau+3}], v[{QF+8*u}:{QF+8*u+3}], {C}")
        def qk_b(u, tau):
            Sx = SB[tau % 3]
            g(f"v_mfma_f32_32x32x8_bf16 v[{Sx}:{Sx+15}], a[{8*tau+4}:{8*tau+5}], v[{QF+8*u+4}:{QF+8*u+5}], v[{Sx}:{Sx+15}]")
        def vread(u, tau, kp):
            b = VF + 8 * (tau % 2)
            for rd in range(2):
                g(f"ds_read_b64_tr_b16 v[{b+4*kp+2*rd}:{b+4*kp+2*rd+1}], v{V_VT} offset:{18432*u + 1536*tau + 768*kp + 384*rd}")
        for u in range(2):
            O = (O0, O1)[u]
            kt = {}
            if u == CU and not cfg["rp2_chk"]: rp_issue()
            for tau in range(4): kt[tau] = kread(u, tau)
            g.wait(kt[1])
            qk_a(u, 0); kt[4] = kread(u, 4); qk_b(u, 0)
            qk_a(u, 1); kt[5] = kread(u, 5); qk_b(u, 1)
            def mx(tau, ks):
                Sx = SB[tau % 3]
                for k in ks:
                    m = 8 + (k & 1)
                    if tau == 0 and k < 2: g(f"v_max_f32 v{m}, v{Sx+2*k}, v{Sx+2*k+1}")
                    else: g(f"v_max3_f32 v{m}, v{Sx+2*k}, v{Sx+2*k+1}, v{m}")
            for tau in range(9):
                if tau + 2 < 9:
                    if tau % 2 == 0: g.wait(kt[min(tau + 3, 8)])
                    qk_a(u, tau + 2)
                    if tau + 6 < 9: kt[tau + 6] = kread(u, tau + 6)
                    else: tick(64)
                    mx(tau, range(0, 4))
                    qk_b(u, tau + 2)
                    mx(tau, range(4, 8))
                elif tau == 7:
                    if u == 0:
                        g.wait(vtok)
                        self.barrier()
                    if u == CU and not cfg["rp2_chk"]: rp_check()
                    qk_a(u, 0)
                    vread(u, 0, 0); vread(u, 0, 1)
                    mx(tau, range(8))
                else:
                    qk_a(u, 1)
                    mx(tau, range(8))
            if cfg.get("atstamps"): self.stamp(f"p1_{u}")
            g("v_max_f32 v8, v8, v9")
            g("v_mov_b32 v9, v8")
            g("v_permlane32_swap_b32 v8, v9")
            g("v_max_f32 v8, v8, v9")
            g("v_sub_f32 v8, 0, v8")
            g("v_and_b32 v9, 0xffff0000, v8")
            g("v_sub_f32 v8, v8, v9")
            g("v_or_b32 v9, 0x3f80, v9")
            g("v_and_b32 v3, 0xffff0000, v8")
            g("v_sub_f32 v8, v8, v3")
            g("v_lshrrev_b32 v3, 16, v3")
            g("v_and_b32 v8, 0xffff0000, v8")
            g("v_or_b32 v8, v8, v3")
            g(f"v_cndmask_b32 v{QF+8*u+4}, v{QF+8*u+4}, v9, s[{S_HALF}:{S_HALF+1}]")
            g(f"v_cndmask_b32 v{QF+8*u+5}, v{QF+8*u+5}, v8, s[{S_HALF}:{S_HALF+1}]")
            qk_b(u, 0)
            qk_b(u, 1)
            def pv(tau, kp):
                b = VF + 8 * (tau % 2) + 4 * kp
                C = "0" if (tau == 0 and kp == 0) else v(O, 16)
                g(f"v_mfma_f32_32x32x16_bf16 v[{O}:{O+15}], v[{b}:{b+3}], v[{P+4*kp}:{P+4*kp+3}], {C}")
            for tau in range(9):
                Sx = SB[tau % 3]
                def ex(k0):
                    for k in range(k0, k0 + 4): g(f"v_exp_f32 v{Sx+k}, v{Sx+k}")
                def cv(k0):
                    for k in (k0, k0 + 2): g(f"v_cvt_pk_bf16_f32 v{P+k//2}, v{Sx+k}, v{Sx+k+1}")
                if u == 0 and tau == cfg["rp2_flag"] and CU:
                    g.wait(rp_last)
                    self.rp_flags()
                if u == CU and cfg["rp2_chk"] and tau == cfg["rp2_chk"] - 1: rp_issue()
                if u == CU and cfg["rp2_chk"] and tau == cfg["rp2_chk"] + 1: rp_check()
                if u == 1 and tau == cfg["vec_at"]: vec_issue()
                if tau > 0: pv(tau - 1, 1)
                ex(0)
                if tau + 1 < 9: vread(u, tau + 1, 0)
                tick(54)
                if tau + 2 < 9: qk_a(u, tau + 2)
                ex(4); cv(0); cv(4)
                if tau + 1 < 9: vread(u, tau + 1, 1)
                pv(tau, 0)
                tick(54)
                ex(8)
                if tau + 2 < 9: qk_b(u, tau + 2)
                tick(54)
                ex(12); cv(8); cv(12)
                tick(54)
            pv(8, 1)
            if cfg.get("atstamps"): self.stamp(f"p2_{u}")
        pc.drain()
        E = S0
        g(f"s_lshl_b32 s{S_TMP}, s{S_RB}, 2")
        g(f"s_add_u32 s{S_TMP}, s{S_TMP}, s{S_W}")
        g(f"s_mul_i32 s{S_TMP}, s{S_TMP}, 40960")
        g(f"s_mul_i32 s{S_TMP+1}, s{S_J}, 1280")
        g(f"s_add_u32 s{S_TMP}, s{S_TMP}, s{S_TMP+1}")
        g(f"s_add_u32 s{S_TMP}, s{S_TMP}, {WS_O}")
        for u in range(2):
            O = (O0, O1)[u]
            g(f"v_mov_b32 v8, v{O+8}")
            g(f"v_mov_b32 v9, v{O+8}")
            g("v_permlane32_swap_b32 v8, v9")
            g("v_rcp_f32 v9, v9")
            for k in range(12): g(f"v_mul_f32 v{O+k}, v{O+k}, v9")
        for (dst, src) in ((E, O0), (E+2, O0+4), (E+4, O0+8), (E+6, O1), (E+8, O1+4), (E+10, O1+8)):
            g(f"v_cvt_pk_bf16_f32 v{dst}, v{src}, v{src+1}")
            g(f"v_cvt_pk_bf16_f32 v{dst+1}, v{src+2}, v{src+3}")
        for k in range(2):
            g(f"v_permlane32_swap_b32 v{E+k}, v{E+2+k}")
            g(f"v_permlane32_swap_b32 v{E+6+k}, v{E+10+k}")
        g(f"buffer_store_dwordx4 v[{E}:{E+3}], v{V_OST}, s[{R_WS}:{R_WS+3}], s{S_TMP} offen")
        for k in range(2):
            g(f"v_cndmask_b32 v{E+12+k}, v{E+10+k}, v{E+8+k}, s[{S_HALF}:{S_HALF+1}]")
            g(f"v_cndmask_b32 v{E+14+k}, v{E+8+k}, v{E+6+k}, s[{S_HALF}:{S_HALF+1}]")
        g(f"buffer_store_dwordx4 v[{E+12}:{E+15}], v{V_OST}, s[{R_WS}:{R_WS+3}], s{S_TMP} offen offset:768")
        g("s_mov_b64 exec, 0xffffffff")
        g(f"buffer_store_dwordx4 v[{E+4}:{E+7}], v{V_OST}, s[{R_WS}:{R_WS+3}], s{S_TMP} offen offset:512")
        g("s_mov_b64 exec, -1")
        self.stamp("attn1")
        self.publish(F_O, S_T, 8, 9)
        vec_check()
        g.wait_lg(0)
        pass

    def gu_items(self):
        d = self.gu_next; self.gu_next += 1
        items, toks = self.lin_items(3, S_TMP + 16, S_TMP + 17, ((d + 4) % GU_NSLOT) * GU_SLOT, step_after=12288, flags="sc1")
        self.gu_tok[d] = toks
        return items
    def gu_flush(self, n):
        g = self.g
        for _ in range(n):
            if self.fl_next >= self.cfg["stage"]: return
            d = self.fl_next; self.fl_next += 1
            slot = (d + 4) % GU_NSLOT
            va, so = (32, 33, 34)[slot // 5], (slot % 5) * GU_SLOT
            for k in range(3):
                r = A_STG + 12 * d + 4 * k
                g(f"ds_write_b128 v{va}, a[{r}:{r+3}] offset:{so + 1024*k}")

    def p3(self):
        g = self.g
        cfg = self.cfg
        XR, X1 = 240, 230
        ACC, AB = 40, 80
        SB0 = S_TMP + 14
        assert cfg["stage"] <= 9
        self.gu_next, self.gu_tok, self.fl_next = cfg["stage"], {}, 0
        g.label("L_c3")
        self.barrier()
        items, _ = self.lin_items(5, S_TMP + 12, S_TMP + 13, 0, flags="sc1")
        for f in items: f()
        g(f"s_mul_i32 s{S_TMP+2}, s{S_KH}, 51200")
        g(f"s_add_u32 s{S_TMP+2}, s{S_TMP+2}, {L_WO_E}")
        g(f"v_add_u32 v5, s{S_TMP+2}, v{V_T160}")
        g(f"s_cmp_eq_u32 s{S_KH}, 0")
        g(f"s_cselect_b32 s{S_TMP+2}, {L_WO_E + 30720}, 0")
        g(f"v_add_u32 v6, s{S_TMP+2}, v{V_T160}")
        g("v_lshrrev_b32 v13, 4, v1")
        g("v_lshlrev_b32 v7, 4, v13")
        g(f"v_add_u32 v7, {L_VEC}, v7")
        GA, S2, G2 = 120, 180, 200
        for t in range(5):
            g(f"ds_read_b128 v[{GA+4*t}:{GA+4*t+3}], v7 offset:{64*t}")
            g(f"ds_read_b128 v[{S2+4*t}:{S2+4*t+3}], v7 offset:{320+64*t}")
        for t in range(5):
            g(f"ds_read_b128 v[{G2+4*t}:{G2+4*t+3}], v7 offset:{640+64*t}")
            g(f"ds_read_b128 a[{A_GB+4*t}:{A_GB+4*t+3}], v7 offset:{960+64*t}")
        XF = 140
        for i in range(10): self.unpack(XF + 2*i, XF + 2*i + 1, XR + i)
        self.bsetup_half(WS_O, 10, SB0)
        g(f"s_mul_i32 s{S_TMP+17}, s{S_W}, 3072")
        g(f"v_add_u32 v32, s{S_TMP+17}, v{V_L16}")
        g(f"v_add_u32 v33, {5*GU_SLOT}, v32")
        g(f"v_add_u32 v34, {10*GU_SLOT}, v32")
        g("v_and_b32 v12, 15, v1")
        g("v_lshlrev_b32 v12, 4, v12")
        g("v_lshl_add_u32 v14, v13, 12, v12")
        g("v_bfe_u32 v16, v1, 4, 1")
        g("v_lshlrev_b32 v16, 9, v16")
        g("v_lshrrev_b32 v17, 5, v1")
        g("v_lshl_add_u32 v17, v17, 8, v12")
        g("v_add_u32 v16, v16, v17")
        SS, SH = S_TMP + 4, S_TMP + 6
        g(f"s_lshl_b32 s{SS}, s{S_RB}, 14")
        g(f"s_lshl_b32 s{S_TMP+1}, s{S_RH}, 2")
        g(f"s_add_u32 s{S_TMP+1}, s{S_TMP+1}, s{S_W}")
        g(f"s_lshl_b32 s{S_TMP+2}, s{S_TMP+1}, 8")
        g(f"s_add_u32 s{SS}, s{SS}, s{S_TMP+2}")
        g(f"s_add_u32 s{SS}, s{SS}, {WS_ST}")
        g(f"s_lshl_b32 s{SS+1}, s{S_CQ}, 11")
        g(f"s_add_u32 s{SS+1}, s{SS+1}, s{SS}")
        g(f"s_lshl_b32 s{SH}, s{S_RB}, 3")
        g(f"s_add_u32 s{SH}, s{SH}, s{S_TMP+1}")
        g(f"s_mul_i32 s{SH}, s{SH}, 20480")
        g(f"s_mul_i32 s{S_TMP+1}, s{S_CQ}, 2560")
        g(f"s_add_u32 s{SH}, s{SH}, s{S_TMP+1}")
        g(f"s_add_u32 s{SH}, s{SH}, {WS_H2}")
        g.wait_lg(0)
        rda = lambda s_, t, hi: (5, s_ * 5120 + hi * 2560 + 32 * t) if s_ < 6 else (6, (s_ - 6) * 5120 + hi * 2560 + 32 * t)
        cur = [g(r) for r in self.greads(0, 5, AB, rda)]
        self.poll_half(F_O)
        self.stamp("oseen")
        pc = Sched(cfg["cap"])
        btok = self.bitems(pc, 10, SB0, cfg["la"])
        self.gemm16(10, 5, ACC, AB, rda, lambda s_, Tp: a_((Tp * 10 + s_) * 4, 4), sc=pc, btok=btok,
                    hooks={6: self.barrier}, cur=cur)
        self.stamp("ogemm")
        self.reduce_halves(ACC, L_RB)
        for _ in range(cfg["gu_a"]):
            for f in self.gu_items(): f()
        for k in range(0, 20, 2):
            g(f"v_pk_add_f32 v[{ACC+k}:{ACC+k+1}], v[{ACC+k}:{ACC+k+1}], v[{ACC+20+k}:{ACC+21+k}]")
            g(f"v_pk_fma_f32 v[{XF+k}:{XF+k+1}], v[{ACC+k}:{ACC+k+1}], v[{GA+k}:{GA+k+1}], v[{XF+k}:{XF+k+1}]")
        for i in range(10):
            g(f"v_cvt_pk_bf16_f32 v{X1+i}, v{XF+2*i}, v{XF+2*i+1}")
        g("v_mov_b32 v5, 0x3f803f80")
        g("v_mov_b32 v8, 0"); g("v_mov_b32 v9, 0")
        for i in range(10):
            g(f"v_dot2_f32_bf16 v8, v{X1+i}, v5, v8")
            g(f"v_dot2_f32_bf16 v9, v{X1+i}, v{X1+i}, v9")
        self.allreduce2(8, 9, 10, 11, (16, 32))
        g(f"v_mov_b32 v10, s{S_T}")
        g(f"v_mov_b32 v11, s{S_T}")
        self.store_either(f"buffer_store_dwordx4 v[8:11], v12, s[{R_WS}:{R_WS+3}], s{SS+1} offen", "0xffff")
        for _ in range(cfg["gu_b"]):
            for f in self.gu_items(): f()
        self.gu_flush(cfg["fl_b"])
        for i in range(10): self.unpack(XF + 2*i, XF + 2*i + 1, X1 + i)
        L = g.newlabel("Ls"); D = g.newlabel("Lsd")
        g(f"s_mov_b32 s{S_CNT}, {POLL_MAX}")
        g.label(L)
        g(f"buffer_load_dwordx4 v[{ACC}:{ACC+3}], v14, s[{R_WS}:{R_WS+3}], s{SS} offen sc1")
        g(f"buffer_load_dwordx4 v[{ACC+4}:{ACC+7}], v14, s[{R_WS}:{R_WS+3}], s{SS} offen offset:2048 sc1")
        g.wait_vm(0)
        g(f"v_xor_b32 v15, s{S_T}, v{ACC+2}")
        g(f"v_bitop3_b32 v15, v15, v{ACC+6}, s{S_T} bitop3:0xf6")
        g("v_cmp_ne_u32 vcc, 0, v15")
        g(f"s_cbranch_vccz {D}")
        g(f"s_sub_u32 s{S_CNT}, s{S_CNT}, 1")
        g(f"s_cbranch_scc0 {L}")
        g.label(D)
        self.stamp("stseen")
        g(f"v_add_f32 v8, v{ACC}, v{ACC+4}")
        g(f"v_add_f32 v9, v{ACC+1}, v{ACC+5}")
        self.allreduce2(8, 9, 10, 11, (16, 32))
        self.rstd(8, 9, 10)
        g("v_mov_b32 v10, v9"); g("v_mov_b32 v11, v9"); g("v_mov_b32 v9, v8")
        for k in range(0, 20, 2):
            g(f"v_pk_fma_f32 v[{XF+k}:{XF+k+1}], v[{XF+k}:{XF+k+1}], v[10:11], v[8:9]")
        for k in range(0, 20, 2):
            g(f"v_pk_fma_f32 v[{XF+k}:{XF+k+1}], v[{XF+k}:{XF+k+1}], v[{G2+k}:{G2+k+1}], v[{S2+k}:{S2+k+1}]")
        E = ACC
        self.pack_chunks(XF, E)
        g(f"buffer_store_dwordx4 v[{E}:{E+3}], v16, s[{R_WS}:{R_WS+3}], s{SH} offen")
        g(f"buffer_store_dwordx4 v[{E+4}:{E+7}], v16, s[{R_WS}:{R_WS+3}], s{SH} offen offset:1024")
        g(f"buffer_store_dwordx4 v[{E+8}:{E+11}], v17, s[{R_WS}:{R_WS+3}], s{SH} offen offset:2048")
        self.publish(F_H2, S_T, 8, 9)
        g(f"s_or_b32 s{S_TMP}, s{S_B}, s{S_W}")
        g(f"s_cmp_lg_u32 s{S_TMP}, 0")
        g("s_cbranch_scc1 L_noepoch")
        g("v_mov_b32 v8, 0")
        g(f"v_mov_b32 v9, s{S_T}")
        g("s_mov_b64 exec, 1")
        g(f"buffer_store_dword v9, v8, s[{R_WS}:{R_WS+3}], 0 offen sc1")
        g("s_mov_b64 exec, -1")
        g.label("L_noepoch")
        g.forget_vm()
        self.stamp("h2pub")

    def dn_setup(self):
        g = self.g
        SO, SL = S_TMP + 12, S_TMP + 13
        g(f"s_mul_i32 s{SO}, s{S_CQ}, 48")
        g(f"s_mul_i32 s{S_TMP}, s{S_KH}, 24")
        g(f"s_add_u32 s{SO}, s{SO}, s{S_TMP}")
        g(f"s_add_u32 s{SO}, s{SO}, s{S_TP}")
        g(f"s_mul_i32 s{SO}, s{SO}, 5120")
        g(f"s_add_u32 s{SO}, s{SO}, {WS_RWD}")
        g(f"s_mul_i32 s{SL}, s{S_W}, 5120")
        self.dn_next = 0
        self.dn_tok = {}
    def dn_pair_items(self):
        p = self.dn_next; self.dn_next += 1
        items, toks = self.lin_items(5, S_TMP + 12, S_TMP + 13, ((2 * p + 14) % 16) * 10240, step_after=10240, flags="sc1")
        self.dn_tok[p] = toks
        return items

    def p4(self):
        g = self.g
        cfg = self.cfg
        ACC, AB, E = 40, 136, 168
        SB0 = S_TMP + 14
        for _ in range(cfg["gu_c"]):
            for f in self.gu_items(): f()
        self.gu_flush(99)
        npre = self.gu_next
        assert npre <= 9
        self.dn_setup()
        g("v_lshrrev_b32 v3, 2, v1")
        g("v_mul_u32_u24 v3, 96, v3")
        g("v_and_b32 v4, 3, v1")
        g("v_lshl_add_u32 v5, v4, 3, v3")
        g(f"v_add_u32 v6, {5*GU_SLOT}, v5")
        g(f"v_add_u32 v7, {10*GU_SLOT}, v5")
        g(f"s_lshl_b32 s{SB0}, s{S_RB}, 2")
        g(f"s_add_u32 s{SB0}, s{SB0}, s{S_W}")
        SA = S_TMP + 4
        g(f"s_mul_i32 s{SA}, s{SB0}, {2*49152}")
        g(f"s_mul_i32 s{S_TMP+1}, s{S_J}, 3072")
        g(f"s_add_u32 s{SA}, s{SA}, s{S_TMP+1}")
        g(f"s_add_u32 s{SA}, s{SA}, {WS_ACT}")
        g(f"s_add_u32 s{SA+1}, s{SA}, 49152")
        g(f"s_mul_i32 s{SB0}, s{SB0}, 40960")
        g(f"s_add_u32 s{SB0}, s{SB0}, {WS_H2}")
        g(f"s_add_u32 s{SB0+1}, s{SB0}, 20480")
        self.flag_off(S_TMP, F_H2)
        g("v_bfe_u32 v3, v1, 1, 3")
        g("v_lshlrev_b32 v3, 5, v3")
        g("v_and_b32 v4, 1, v1")
        g("v_lshl_add_u32 v3, v4, 2, v3")
        g(f"s_lshl_b32 s{S_TMP+1}, s{S_TP}, 4")
        g(f"s_lshl_b32 s{S_TMP+2}, s{S_KH}, 3")
        g(f"s_add_u32 s{S_TMP+1}, s{S_TMP+1}, s{S_TMP+2}")
        g(f"v_add_u32 v3, s{S_TMP+1}, v3")
        g.wait_lg(0)
        self.poll(3, S_TMP, S_T, 4)
        self.acquire()
        self.stamp("h2seen")
        self.code_touch("L_c5", 3, 1, 204)
        pc = Sched(cfg["cap"])
        def breg(s_, Tp): return (0, 100)[Tp] + 4 * s_
        btok = self.bitems(pc, 20, SB0, cfg["lam"], breg)
        for n in range(npre, 20):
            bstep = 2 * (n & ~1) - 1
            bnd = 0 if n < 13 else (n - 13 + 2 + 1) & ~1
            for f in self.gu_items(): pc.add(f, 90, 2 * bnd - 1, bstep - cfg["wlead"], bstep - 2)
        if cfg["touch"]:
            g("v_and_b32 v8, 7, v1")
            g("v_bfe_u32 v9, v1, 3, 1")
            g("v_mul_u32_u24 v9, 49152, v9")
            g("v_lshl_add_u32 v9, v8, 7, v9")
            def touch(k):
                g("s_mov_b64 exec, 0xffff")
                t = g(f"buffer_load_dword v{10+k}, v9, s[{R_WS}:{R_WS+3}], s{SA} offen offset:{1024*k}")
                g("s_mov_b64 exec, -1")
            for k, at in enumerate(cfg["act_touch"]): pc.add(lambda k=k: touch(k), 200, -1, at)
        for p in range(cfg["dn_a"]):
            bnd = 10 if p == 0 else 14
            for f in self.dn_pair_items(): pc.add(f, 90, 2 * bnd - 1, 41 + p)
        pc.sort()
        def rd(i):
            st, m6 = divmod(i, 6)
            d, ks = st >> 1, st & 1
            slot = (d + 4) % GU_NSLOT
            va, so = (5, 6, 7)[slot // 5], (slot % 5) * GU_SLOT
            b = AB + 4 * (i % 8)
            return [f"ds_read_b64_tr_b16 v[{b+2*hi}:{b+2*hi+1}], v{va} offset:{so + ks*6144 + (m6&1)*3072 + hi*1536 + 32*(m6>>1)}" for hi in range(2)]
        def pre(st):
            if st % 4: return
            d = st >> 1
            if d + 1 in self.gu_tok:
                while len(self.gu_tok[d + 1]) < 3: pc.force(1)
                g.wait(self.gu_tok[d + 1][-1])
            self.barrier()
        def D_(ps, m6, Tp): return ACC + 48 * ps + (2 * m6 + Tp) * 4
        def epi(ps):
            out = []
            for m in range(3):
                for Tp in range(2):
                    G, U = D_(ps, 2 * m, Tp), D_(ps, 2 * m + 1, Tp)
                    t6 = 3 * ps + m
                    e = E + 12 * Tp + 2 * t6
                    out += [f"v_exp_f32 v{G+k}, v{G+k}" for k in range(4)]
                    out += [f"v_add_f32 v{G+k}, 1.0, v{G+k}" for k in range(4)]
                    out += [f"v_rcp_f32 v{G+k}, v{G+k}" for k in range(4)]
                    out += [f"v_mul_f32 v{U+k}, v{U+k}, v{G+k}" for k in range(4)]
                    out += [f"v_cvt_pk_bf16_f32 v{e+k}, v{U+2*k}, v{U+2*k+1}" for k in range(2)]
                    if t6 & 1:
                        out.append(f"buffer_store_dwordx4 v[{e-2}:{e+1}], v{V_L16}, s[{R_WS}:{R_WS+3}], s{SA+Tp} offen offset:{1024*(t6>>1)}")
            return out
        pre(0)
        tok = {}
        for i in range(6): tok[i] = [g(r) for r in rd(i)]
        fill = []
        for st in range(40):
            ps, s_ = divmod(st, 20)
            if st in (1, 8, 14, 20, 30) and cfg.get("gustamps"): self.stamp(f"gu{st}")
            if st + 1 < 40: pre(st + 1)
            if st == 21: fill = epi(0)
            pc.plan(st, 12, 200)
            for m6 in range(6):
                i = 6 * st + m6
                if m6 % 3 == 0:
                    g.wait(tok[i + 2][-1], btok[s_][-1] if (ps == 0 and m6 == 0) else None)
                A = AB + 4 * (i % 8)
                nx = rd(i + 6) if i + 6 < 240 else []
                tok[i + 6] = []
                for Tp in range(2):
                    D = D_(ps, m6, Tp)
                    C = "0" if s_ == 0 else v(D, 4)
                    b = breg(s_, Tp)
                    g(f"v_mfma_f32_16x16x32_bf16 v[{D}:{D+3}], v[{A}:{A+3}], a[{b}:{b+3}], {C}")
                    if nx: tok[i + 6].append(g(nx.pop(0)))
                    if not pc.slot(2 * m6 + Tp) and fill and Tp == 0: g(fill.pop(0))
        pc.drain()
        for f in fill: g(f)
        self.stamp("gugemm")
        self.barrier()
        extra = []
        for p in range(cfg["dn_b"]): extra += self.dn_pair_items()
        for n, f in enumerate(epi(1)):
            g(f)
            if n % 9 == 3 and extra: extra.pop(0)()
        for f in extra: f()
        pass
        self.publish(F_ACT, S_T, 8, 9)
        self.stamp("actpub")

    def p5(self):
        g = self.g
        cfg = self.cfg
        ACC, AB, X1 = 40, 80, 230
        SB0 = S_TMP + 14
        g.label("L_c5")
        for p in range(cfg["dn_c"]):
            for f in self.dn_pair_items(): f()
        npre = self.dn_next
        assert npre <= 8
        g(f"s_mul_i32 s{S_TMP+2}, s{S_KH}, 5120")
        g(f"v_add_u32 v5, s{S_TMP+2}, v{V_T160}")
        g("v_add_u32 v6, 61440, v5")
        g("v_add_u32 v7, 122880, v5")
        XF, GB = 140, 120
        for i in range(10): self.unpack(XF + 2*i, XF + 2*i + 1, X1 + i)
        for k in range(20): g(f"v_accvgpr_read_b32 v{GB+k}, a{A_GB+k}")
        self.bsetup_half(WS_ACT, 24, SB0)
        self.srd(R_A, P_OUT, 2048 * 1280)
        g("v_and_b32 v12, 15, v1")
        g("v_mul_u32_u24 v12, 1280, v12")
        g("v_lshrrev_b32 v15, 5, v1")
        g("v_lshl_add_u32 v15, v15, 4, v12")
        g("v_bfe_u32 v14, v1, 4, 1")
        g("v_lshl_add_u32 v14, v14, 5, v15")
        if cfg["out_touch"]:
            g("v_lshrrev_b32 v8, 4, v1")
            g("v_min_u32 v8, 2, v8")
            g("v_mul_u32_u24 v8, 78, v8")
            g("v_and_b32 v8, -4, v8")
            g("v_add_u32 v8, v8, v12")
            g(f"buffer_load_dword v9, v8, s[{R_A}:{R_A+3}], s{S_TMP+11} offen")
        self.poll_half(F_ACT)
        self.stamp("actseen")
        pc = Sched(cfg["cap"])
        btok = self.bitems(pc, 24, SB0, cfg["lam"])
        for p in range(npre, 12):
            bnd = 0 if p < 8 else (2 * (p - 8) + 1 + 2 + 1) & ~1
            for f in self.dn_pair_items(): pc.add(f, 90, bnd - 1, 2 * p - 1 - cfg["wlead"], 2 * p - 3)
        pc.sort()
        need = {0} | {2 * p for p in range(npre, 12)} | {(2 * (p - 8) + 4) & ~1 for p in range(8, 12)}
        def pre(c):
            def f():
                p = c // 2
                if p >= npre:
                    while len(self.dn_tok[p]) < 5: pc.force(1)
                    g.wait(self.dn_tok[p][-1])
                self.barrier()
            return f
        def rd(s_, t, hi):
            slot = (s_ + 14) % 16
            return ((5, 6, 7)[slot // 6], (slot % 6) * 10240 + hi * 2560 + 32 * t)
        self.gemm16(24, 5, ACC, AB, rd, lambda s_, Tp: a_((Tp * 24 + s_) * 4, 4), sc=pc, btok=btok,
                    hooks={c: pre(c) for c in need})
        self.stamp("dgemm")
        self.reduce_halves(ACC, 81920)
        for k in range(0, 20, 2):
            g(f"v_pk_add_f32 v[{ACC+k}:{ACC+k+1}], v[{ACC+k}:{ACC+k+1}], v[{ACC+20+k}:{ACC+21+k}]")
            g(f"v_pk_fma_f32 v[{XF+k}:{XF+k+1}], v[{ACC+k}:{ACC+k+1}], v[{GB+k}:{GB+k+1}], v[{XF+k}:{XF+k+1}]")
        E = ACC
        self.pack_chunks(XF, E)
        g(f"buffer_store_dwordx4 v[{E}:{E+3}], v14, s[{R_A}:{R_A+3}], s{S_TMP+11} offen")
        g(f"buffer_store_dwordx4 v[{E+4}:{E+7}], v14, s[{R_A}:{R_A+3}], s{S_TMP+11} offen offset:64")
        g(f"buffer_store_dwordx4 v[{E+8}:{E+11}], v15, s[{R_A}:{R_A+3}], s{S_TMP+11} offen offset:128")

    def build(self):
        txt = super().build()
        self.g.label("L_last")
        self.g.raw("s_endpgm")
        return self.g.text()

if __name__ == "__main__":
    make_all("v8a", V8, dict(rp2=7, stage=8, rp2_chk=4))
    make_all("v8b", V8, dict(rp2=4, stage=8, rp2_chk=4))
    k = make_all("v8", V8)
    print("instructions", k.g.count, "nop states", k.g.nops)
```

```python
import v8
from v8 import *
v8.WS_RF = WS_RF = 0xA000
V_ME, V_TAG, V_PH, V_PG, V_PK = 27, 28, 29, 30, 31
S_FB, S_BH, S_OST, S_BO, S_BA, S_H2ST, S_SS, S_AST = 3, 0, 1, 10, 24, 80, 81, 83
L_WO19 = 41984

class V9(V8):
    def __init__(self, cfg=None, **kw):
        base = dict(rp2=5, rp_ld=1, rp_st=3, stage=8, rp2_chk=2, ctouch=2, light=1, exact_round=0, gu_bar=2, rp2_st='tail', fl_a=0)
        base.update(cfg or {})
        super().__init__(cfg=base, **kw)
    def make_tags(self):
        super().make_tags()
        self.g(f"v_mov_b32 v{V_TAG}, s{S_T}")
    def flag_ins(self, kind):
        return f"buffer_store_dword v{V_TAG}, v{V_ME}, s[{R_WS}:{R_WS+3}], s{S_FB} offen offset:{256*kind}"
    def publish(self, kind, tok=None):
        g = self.g
        if tok is None: g.wait_vm(0)
        else: g.wait(tok)
        self.store_either(self.flag_ins(kind), "1", release=True)
    def poll(self, vaddr, soff, imm, vt):
        g = self.g
        L = g.newlabel("Lp"); D = g.newlabel("Lpd")
        ld = f"buffer_load_dword v{vt}, v{vaddr}, s[{R_WS}:{R_WS+3}], {soff} offen offset:{imm} sc1"
        g(ld)
        g(f"s_mov_b32 s{S_CNT}, {POLL_MAX}")
        g.label(L)
        g.wait_vm(0)
        g(f"v_cmp_ne_u32 vcc, s{S_T}, v{vt}")
        g(f"s_cbranch_vccz {D}")
        g(ld)
        g(f"s_sub_u32 s{S_CNT}, s{S_CNT}, 1")
        g(f"s_cbranch_scc0 {L}")
        g.wait_vm(0)
        g.label(D)
    def setup(self):
        g = self.g
        super().setup()
        t = S_TMP
        g(f"s_lshl_b32 s{S_FB}, s{S_RB}, 11")
        g(f"s_add_u32 s{S_FB}, s{S_FB}, {WS_FLAG}")
        g(f"s_lshl_b32 s{t}, s{S_J}, 2")
        g(f"s_add_u32 s{t}, s{t}, s{S_W}")
        g(f"s_lshl_b32 s{t}, s{t}, 2")
        g(f"v_mov_b32 v{V_ME}, s{t}")
        g(f"s_lshl_b32 s{t}, s{S_KH}, 5")
        g(f"s_lshl_b32 s{t+1}, s{S_RH}, 1")
        g(f"s_add_u32 s{t}, s{t}, s{t+1}")
        g(f"s_add_u32 s{t}, s{t}, s{S_TP}")
        g(f"s_lshl_b32 s{t}, s{t}, 2")
        g("v_and_b32 v32, 7, v1")
        g(f"v_lshl_add_u32 v{V_PH}, v32, 4, s{t}")
        g("v_bfe_u32 v32, v1, 1, 3")
        g("v_lshlrev_b32 v32, 5, v32")
        g("v_and_b32 v33, 1, v1")
        g("v_lshl_add_u32 v32, v33, 2, v32")
        g(f"s_lshl_b32 s{t}, s{S_TP}, 4")
        g(f"s_lshl_b32 s{t+1}, s{S_KH}, 3")
        g(f"s_add_u32 s{t}, s{t}, s{t+1}")
        g(f"v_add_u32 v{V_PG}, s{t}, v32")
        g("v_lshrrev_b32 v32, 2, v1")
        g(f"s_min_u32 s{t}, s{S_RB}, 2")
        g(f"v_min_u32 v32, s{t}, v32")
        g("v_lshlrev_b32 v32, 11, v32")
        g("v_bfe_u32 v34, v1, 1, 1")
        g("v_lshl_add_u32 v32, v34, 7, v32")
        g("v_lshl_add_u32 v32, v33, 2, v32")
        g(f"s_lshl_b32 s{t}, s{t}, 11")
        g(f"s_sub_u32 s{t}, s{S_FB}, s{t}")
        g(f"s_lshl_b32 s{t+1}, s{S_CQ}, 4")
        g(f"s_add_u32 s{t}, s{t}, s{t+1}")
        g(f"s_lshl_b32 s{t+1}, s{S_RH}, 3")
        g(f"s_add_u32 s{t}, s{t}, s{t+1}")
        g(f"v_add_u32 v32, s{t}, v32")
        g("v_and_b32 v33, 15, v1")
        g(f"v_lshl_add_u32 v33, v33, 4, s{S_FB}")
        g(f"v_cndmask_b32 v{V_PK}, v32, v33, s[{S_HALF}:{S_HALF+1}]")
        g(f"s_lshl_b32 s{t}, s{S_RB}, 2")
        g(f"s_add_u32 s{t}, s{t}, s{S_W}")
        g(f"s_mul_i32 s{S_BH}, s{t}, 40960")
        g(f"s_add_u32 s{S_BH}, s{S_BH}, {WS_H}")
        g(f"s_mul_i32 s{S_OST}, s{S_J}, 1280")
        g(f"s_add_u32 s{S_OST}, s{S_OST}, s{S_BH}")
        g(f"s_mul_i32 s{S_AST}, s{t}, {2*49152}")
        g(f"s_mul_i32 s{t}, s{S_J}, 3072")
        g(f"s_add_u32 s{S_AST}, s{S_AST}, s{t}")
        g(f"s_add_u32 s{S_AST}, s{S_AST}, {WS_ACT}")
        g(f"s_lshl_b32 s{t}, s{S_RB}, 1")
        g(f"s_add_u32 s{t}, s{t}, s{S_RH}")
        g(f"s_lshl_b32 s{t}, s{t}, 2")
        g(f"s_add_u32 s{t}, s{t}, s{S_W}")
        g(f"s_xor_b32 s{t+1}, s{t}, 1")
        for base, ws, n in ((S_BO, WS_H, 10), (S_BA, WS_ACT, 24)):
            g(f"s_mul_i32 s{t+2}, s{S_KH}, {n*1024}")
            g(f"s_add_u32 s{t+2}, s{t+2}, {ws}")
            for i in range(2):
                g(f"s_mul_i32 s{base+i}, s{t+i}, {n*2048}")
                g(f"s_add_u32 s{base+i}, s{base+i}, s{t+2}")
        g(f"s_mul_i32 s{S_H2ST}, s{t}, 20480")
        g(f"s_mul_i32 s{t+1}, s{S_CQ}, 2560")
        g(f"s_add_u32 s{S_H2ST}, s{S_H2ST}, s{t+1}")
        g(f"s_add_u32 s{S_H2ST}, s{S_H2ST}, {WS_H}")
        g(f"s_and_b32 s{t}, s{t}, 7")
        g(f"s_lshl_b32 s{t}, s{t}, 8")
        g(f"s_lshl_b32 s{S_SS}, s{S_RB}, 14")
        g(f"s_add_u32 s{S_SS}, s{S_SS}, s{t}")
        g(f"s_add_u32 s{S_SS}, s{S_SS}, {WS_ST}")
        g(f"s_lshl_b32 s{S_SS+1}, s{S_CQ}, 11")
        g(f"s_add_u32 s{S_SS+1}, s{S_SS+1}, s{S_SS}")

    def gemm16(self, nsteps, ntile, acc, abuf, rd_addr, bfrag, sc=None, hooks=None, btok=None, cur=None, fill=None, fill_from=0):
        g = self.g
        hooks = hooks or {}
        fill = list(fill or [])
        if 0 in hooks: hooks[0]()
        if cur is None: cur = [g(r) for r in self.greads(0, ntile, abuf, rd_addr)]
        n = 2 * ntile
        for s in range(nsteps):
            nxt = []
            if s + 1 < nsteps:
                if s + 1 in hooks: hooks[s + 1]()
                nxt = self.greads(s + 1, ntile, abuf, rd_addr)
            new = []
            if sc:
                sc.plan(s, n, 16 * n + 8)
                k = len(sc.slots)
                if k <= ntile: sc.slots = [ntile + (i * ntile) // k for i in range(k)]
            g.wait(btok[s][-1] if btok else None, cur[-1])
            for i in range(n):
                t, Tp = divmod(i, 2)
                A = abuf + (s % 2) * 4 * ntile + 4 * t
                D = acc + (Tp * ntile + t) * 4
                C = "0" if s == 0 else f"v[{D}:{D+3}]"
                g(f"v_mfma_f32_16x16x32_bf16 v[{D}:{D+3}], v[{A}:{A+3}], {bfrag(s, Tp)}, {C}")
                busy = bool(nxt)
                for _ in range(2):
                    if nxt: new.append(g(nxt.pop(0)))
                if sc and sc.slot(i): busy = True
                if not busy and s >= fill_from:
                    for _ in range(2):
                        if fill: g(fill.pop(0))
            cur = new
        for f in fill: g(f)
    def bstart(self, s0, s1=None):
        g = self.g
        SB0 = S_TMP + 14
        g(f"s_mov_b32 s{SB0}, s{s0}")
        if s1 is None: g(f"s_add_u32 s{SB0+1}, s{s0}, 20480")
        else: g(f"s_mov_b32 s{SB0+1}, s{s1}")
        return SB0

    def p0(self):
        g = self.g
        cfg = self.cfg
        km = self.kmaps()
        g(f"s_cmp_lg_u32 s{S_W}, 0")
        g("s_cbranch_scc1 L_p0_dma")
        snap = g.snapshot()
        TK, Q = 240, 241
        if cfg["prio"]: g("s_setprio 3")
        X, X0 = 40, 160
        self.make_tags()
        SXC = S_TMP + 12
        g(f"s_getreg_b32 s{SXC}, hwreg(HW_REG_XCC_ID, 0, 4)")
        g(f"v_mov_b32 v18, s{S_T}")
        g(f"v_mov_b32 v19, s{SXC}")
        g("s_mov_b64 exec, 1")
        g(f"buffer_store_dwordx2 v[18:19], v{V_ME}, s[{R_WS}:{R_WS+3}], s{S_FB} offen offset:{256*F_XC} sc1")
        g("s_mov_b64 exec, -1")
        for r in range(88, 96): g(f"s_mov_b32 s{r}, {OOB}")
        self.srd(R_T, P_X, 2048 * 1280)
        for r in list(range(self.RP_A, self.RP_A + 5)) + list(range(self.RP_B, self.RP_B + 3)): g(f"v_mov_b32 v{r}, 0")
        SH = S_TMP
        g(f"s_lshl_b32 s{SH}, s{S_RB}, 3")
        g(f"s_add_u32 s{SH}, s{SH}, s{S_CQ}")
        g(f"s_mul_i32 s{SH}, s{SH}, 20480")
        g(f"s_lshl_b32 s{S_TMP+5}, s{S_RH}, 7")
        g(f"s_add_u32 s{SH}, s{SH}, s{S_TMP+5}")
        g(f"s_add_u32 s{SH}, s{SH}, {WS_H}")
        g("v_and_b32 v242, 15, v1")
        g("v_lshlrev_b32 v243, 8, v1")
        g("v_lshlrev_b32 v245, 8, v242")
        g(f"v_add_u32 v245, s{SH}, v245")
        g("v_add_u32 v245, 16384, v245")
        g("v_min_u32 v246, 11, v242")
        g(f"v_lshl_add_u32 v246, v246, 7, s{S_FB}")
        g(f"v_cmp_lt_u32 s[{S_TT}:{S_TT+1}], 15, v1")
        g(f"v_cndmask_b32 v245, v245, v246, s[{S_TT}:{S_TT+1}]")
        g("v_mov_b32 v8, 0x3f803f80")
        g("v_mov_b32 v3, 0"); g("v_mov_b32 v4, 0")
        for r in range(X0, X0 + 40):
            g(f"v_dot2_f32_bf16 v3, v{r}, v8, v3")
            g(f"v_dot2_f32_bf16 v4, v{r}, v{r}, v4")
        if cfg["touch"]:
            g(f"buffer_load_dword v244, v243, s[{R_WS}:{R_WS+3}], s{SH} offen")
            g(f"buffer_load_dword v247, v245, s[{R_WS}:{R_WS+3}], 0 offen")
        self.allreduce2(3, 4, 8, 9, (8, 16, 32))
        self.rstd(3, 4, 8)
        Z = 80
        g("v_mov_b32 v8, v4"); g("v_mov_b32 v9, v4"); g("v_mov_b32 v18, v3"); g("v_mov_b32 v19, v3")
        for i in range(40):
            self.unpack(Z + 2*i, Z + 2*i + 1, X0 + i)
            g(f"v_pk_fma_f32 v[{Z+2*i}:{Z+2*i+1}], v[{Z+2*i}:{Z+2*i+1}], v[8:9], v[18:19]")
        self.stamp("z")
        M = 160
        g(f"s_mov_b32 s{S_TMP+1}, {WS_MODP}")
        g(f"s_mov_b32 s{S_TMP+2}, {WS_MODP + 4096}")
        g(f"s_mov_b32 s{S_TMP+3}, {WS_MODP + 15360}")
        g(f"s_mov_b32 s{S_TMP+4}, {WS_MODP + 15360 + 4096}")
        g("v_min_u32 v3, 9, v242")
        g("v_lshlrev_b32 v3, 2, v3")
        g(f"s_mul_i32 s{S_TMP+5}, s{S_J}, 40")
        g(f"s_add_u32 s{S_TMP+5}, s{S_TMP+5}, {WS_RF + 12288}")
        g(f"v_add_u32 v3, s{S_TMP+5}, v3")
        g("v_lshlrev_b32 v242, 4, v242")
        g(f"v_add_u32 v4, s{S_FB}, v242")
        g(f"v_cndmask_b32 v4, v4, v3, s[{S_TT}:{S_TT+1}]")
        g("v_and_b32 v3, 31, v1")
        g("v_min_u32 v3, 19, v3")
        g("v_lshlrev_b32 v3, 2, v3")
        g(f"s_mul_i32 s{S_TMP+5}, s{S_CQ}, 80")
        g(f"s_add_u32 s{S_TMP+5}, s{S_TMP+5}, {WS_RF + 4096}")
        g(f"v_add_u32 v3, s{S_TMP+5}, v3")
        g(f"v_cndmask_b32 v18, v4, v3, s[{S_HALF}:{S_HALF+1}]")
        g(f"v_add_u32 v243, {L_SG}, v{V_L16}")
        g(f"v_cndmask_b32 v8, 0, 1.0, s[{S_HALF}:{S_HALF+1}]")
        g("v_mov_b32 v9, v8")
        g(f"v_lshlrev_b32 v245, 5, v{Q}")
        g(f"v_add_u32 v245, {L_SG}, v245")
        g(f"v_lshlrev_b32 v246, 8, v{Q}")
        g(f"v_lshl_add_u32 v246, v{TK}, 4, v246")
        g(f"s_mov_b32 s{S_CNT}, {POLL_MAX}")
        if cfg["light"]:
            L0 = g.newlabel("Ll"); D0 = g.newlabel("Lld")
            g("v_min_u32 v3, 39, v1")
            g("v_lshrrev_b32 v4, 1, v3")
            g("v_lshlrev_b32 v4, 8, v4")
            g("v_and_b32 v3, 1, v3")
            g("v_mul_u32_u24 v3, 15360, v3")
            g("v_add_u32 v3, v3, v4")
            g.label(L0)
            g(f"buffer_load_ubyte v4, v3, s[{R_WS}:{R_WS+3}], s{S_TMP+1} offen sc1")
            g.wait_vm(0)
            g(f"v_cmp_ne_u32 vcc, s{S_TB}, v4")
            g(f"s_cbranch_vccz {D0}")
            g("s_sleep 4")
            g(f"s_sub_u32 s{S_CNT}, s{S_CNT}, 1")
            g(f"s_cbranch_scc0 {L0}")
            g.label(D0)
            g(f"s_mov_b32 s{S_CNT}, {POLL_MAX}")
        L = g.newlabel("Lm"); D = g.newlabel("Lmd")
        g.label(L)
        for i in range(5):
            for hf in range(2):
                so = S_TMP + 1 + 2 * hf + (i // 4)
                d = (X if hf == 0 else M) + 4 * i
                g(f"buffer_load_dwordx4 v[{d}:{d+3}], v{V_L16}, s[{R_WS}:{R_WS+3}], s{so} offen offset:{(1024*i) % 4096} sc1")
        g(f"buffer_load_dwordx2 v[248:249], v242, s[{R_WS}:{R_WS+3}], s{S_FB} offen offset:{256*F_XC} sc1")
        for i in range(5):
            for hf in range(2):
                d = (X if hf == 0 else M) + 4 * i
                self.tagcheck(247, range(d, d + 4), i == 0 and hf == 0)
        g("v_and_b32 v247, 0xff, v247")
        g(f"v_bitop3_b32 v247, v247, v248, s{S_T} bitop3:0xf6")
        g("v_cmp_ne_u32 vcc, 0, v247")
        g(f"s_cbranch_vccz {D}")
        g(f"s_sub_u32 s{S_CNT}, s{S_CNT}, 1")
        g(f"s_cbranch_scc0 {L}")
        g.label(D)
        self.stamp("mod")
        for i in range(5):
            b = X + 4 * i
            for k in (0, 2): g(f"v_pk_add_f32 v[{b+k}:{b+k+1}], v[{b+k}:{b+k+1}], v[{M+4*i+k}:{M+4*i+k+1}]")
            def rnd():
                g(f"v_cvt_pk_bf16_f32 v{b}, v{b}, v{b+1}")
                g(f"v_cvt_pk_bf16_f32 v{b+2}, v{b+2}, v{b+3}")
                g(f"v_and_b32 v{b+1}, 0xffff0000, v{b}"); g(f"v_lshlrev_b32 v{b}, 16, v{b}")
                g(f"v_and_b32 v{b+3}, 0xffff0000, v{b+2}"); g(f"v_lshlrev_b32 v{b+2}, 16, v{b+2}")
            if cfg["exact_round"]: rnd()
            if i >= 2:
                for k in (0, 2):
                    if i == 2: g(f"v_pk_add_f32 v[{b+k}:{b+k+1}], v[{b+k}:{b+k+1}], v[8:9]")
                    else: g(f"v_pk_add_f32 v[{b+k}:{b+k+1}], v[{b+k}:{b+k+1}], 1.0 op_sel_hi:[1,0]")
                if cfg["exact_round"]: rnd()
            g(f"ds_write_b128 v243, v[{b}:{b+3}] offset:{1024*i}")
        g(f"v_cmp_ne_u32 vcc, s{SXC}, v249")
        g("s_cmp_eq_u64 vcc, 0")
        g(f"s_cselect_b32 s{S_FAST}, 1, 0")
        g.wait_lg(0)
        def rd(i):
            b = 160 + 16 * (i % 3)
            g(f"ds_read_b128 v[{b}:{b+3}], v245 offset:{256*i}")
            g(f"ds_read_b128 v[{b+4}:{b+7}], v245 offset:{256*i+16}")
            g(f"ds_read_b128 v[{b+8}:{b+11}], v245 offset:{2560+256*i}")
            return g(f"ds_read_b128 v[{b+12}:{b+15}], v245 offset:{2560+256*i+16}")
        tk = {0: rd(0), 1: rd(1)}
        for i in range(10):
            if i + 2 < 10: tk[i + 2] = rd(i + 2)
            b = 160 + 16 * (i % 3)
            g.wait(tk[i])
            for e in range(0, 8, 2):
                g(f"v_pk_fma_f32 v[{Z+8*i+e}:{Z+8*i+e+1}], v[{Z+8*i+e}:{Z+8*i+e+1}], v[{b+8+e}:{b+9+e}], v[{b+e}:{b+e+1}]")
            for e in range(4):
                g(f"v_cvt_pk_bf16_f32 v{X+4*i+e}, v{Z+8*i+2*e}, v{Z+8*i+2*e+1}")
            g(f"buffer_store_dwordx4 v[{X+4*i}:{X+4*i+3}], v246, s[{R_WS}:{R_WS+3}], s{SH} offen offset:{2048*(i%2)}")
            if i % 2 == 1 and i < 9: g(f"s_add_u32 s{SH}, s{SH}, 4096")
        g(f"v_mov_b32 v248, s{S_FAST}")
        g(f"v_mov_b32 v249, {L_FAST}")
        g("ds_write_b32 v249, v248")
        self.publish(F_H)
        self.stamp("hpub")
        self.poll(18, "0", 0, 4)
        self.acquire()
        g.wait_lg(0)
        if cfg["prio"]: g("s_setprio 0")
        g("s_branch L_p0_join")
        g.label("L_p0_dma")
        g.restore(snap)
        g.forget_vm()
        self.srd(R_A, P_WQKV, 640 * 3840)
        self.tile_regs(40, 5, 10, km["nat"], 3840, add=1280, T=32)
        SS, SO, SL, SC = S_TMP + 1, S_TMP + 2, S_TMP + 3, S_TMP + 10
        g(f"s_mul_i32 s{SC}, s{S_J}, 160")
        g(f"s_mul_i32 s{SS}, s{S_RB}, 205"); g(f"s_lshr_b32 s{SS}, s{SS}, 10"); g(f"s_mul_i32 s{SS}, s{SS}, 5")
        g(f"s_sub_u32 s{SS}, s{S_RB}, s{SS}")
        g(f"s_mul_i32 s{SS}, s{SS}, {4 if cfg['rot'] else 0}")
        g(f"s_add_u32 s{SS}, s{SS}, s{S_W}")
        g(f"s_sub_u32 s{SS}, s{SS}, 4")
        st_last = None
        for it in range(7):
            if it == cfg["rp_ld"]:
                self.make_tags()
                self.rp_setup1()
                for f in self.rp_load_items()[6:]: f()
            if it == cfg["rp_st"]:
                for f in self.rp_store_items()[6:]: st_last = f()
            if it == cfg["rp_st"] + 2:
                g.wait(st_last)
                self.rp_flags()
            if cfg["rp2"] == it:
                assert it >= cfg["rp_st"] + 2
                self.rp_setup2()
                self.srd(R_B, P_WD, 1536 * 1280)
                for f in self.rp_load_items(): f()
            if it == 6:
                keep = g.snapshot()
                g(f"s_cmp_eq_u32 s{S_W}, 3")
                g("s_cbranch_scc1 L_p0_kvdone")
            g(f"s_add_u32 s{SS}, s{SS}, 3")
            g(f"s_sub_u32 s{SO}, s{SS}, 20")
            g(f"s_cmp_ge_i32 s{SO}, 0")
            g(f"s_cselect_b32 s{SS}, s{SO}, s{SS}")
            g(f"s_mul_i32 s{SO}, s{SS}, {32*3840}")
            g(f"s_add_u32 s{SO}, s{SO}, s{SC}")
            g(f"s_mul_i32 s{SL}, s{SS}, 5120")
            items, toks = self.dma_items(range(40, 45), R_A, SO, SL, L_WKV)
            for f in items: f()
        g.label("L_p0_kvdone")
        g.restore(keep)
        if cfg["rp2"] == 7:
            self.rp_setup2()
            g.forget_vm()
            self.srd(R_B, P_WD, 1536 * 1280)
            for f in self.rp_load_items(): f()
            g.wait_vm(11)
        else:
            g.wait_vm(0)
        self.stamp("l_kv")
        g.label("L_p0_join")
        g.forget()

    def late_loads(self):
        g = self.g
        t, d = 40, 104
        g(f"s_mul_i32 s{S_PK}, s{S_B}, 1639")
        g(f"s_lshr_b32 s{S_PK}, s{S_PK}, 16")
        g(f"s_mul_i32 s{S_P}, s{S_PK}, 40")
        g(f"s_sub_u32 s{S_P}, s{S_B}, s{S_P}")
        g(f"s_add_u32 s{S_P}, s{S_P}, 20")
        self.srd(R_A, P_C, 1280)
        self.srd(R_B, P_WMOD, 640 * 7680)
        g(f"v_lshrrev_b32 v{t+7}, 3, v0")
        g(f"v_lshlrev_b32 v{t+3}, 3, v{t+7}")
        g(f"s_lshl_b32 s{S_TMP+4}, s{S_PK}, 8")
        g(f"buffer_load_dwordx2 v[{t+4}:{t+5}], v{t+3}, s[{R_A}:{R_A+3}], s{S_TMP+4} offen")
        g(f"v_mul_u32_u24 v{t+8}, {4*7680}, v{t+7}")
        g(f"v_and_b32 v{t+9}, 7, v0")
        g(f"v_lshl_add_u32 v{t+8}, v{t+9}, 4, v{t+8}")
        g(f"s_lshl_b32 s{S_TMP+4}, s{S_P}, 7")
        g(f"s_mul_i32 s{S_TMP+6}, s{S_PK}, {128*7680}")
        g(f"s_add_u32 s{S_TMP+4}, s{S_TMP+4}, s{S_TMP+6}")
        for i in range(4):
            g(f"buffer_load_dwordx4 v[{d+4*i}:{d+4*i+3}], v{t+8}, s[{R_B}:{R_B+3}], s{S_TMP+4} offen nt")
            if i < 3: g(f"s_add_u32 s{S_TMP+4}, s{S_TMP+4}, 7680")
    def late_part1(self):
        g = self.g
        t, d, u = 40, 104, 76
        self.unpack(t+10, t+11, t+4); self.unpack(t+12, t+13, t+5)
        R = range(t + 10, t + 14)
        for r in R: g(f"v_mul_f32 v{r+4}, {hx(fbits(NLOG2E))}, v{r}")
        for r in R: g(f"v_exp_f32 v{r+4}, v{r+4}")
        for r in R: g(f"v_add_f32 v{r+4}, 1.0, v{r+4}")
        for r in R: g(f"v_rcp_f32 v{r+4}, v{r+4}")
        for r in R: g(f"v_mul_f32 v{r}, v{r}, v{r+4}")
        g(f"v_cvt_pk_bf16_f32 v{t+14}, v{t+10}, v{t+11}")
        g(f"v_cvt_pk_bf16_f32 v{t+15}, v{t+12}, v{t+13}")
        self.unpack(t+20, t+21, t+14); self.unpack(t+22, t+23, t+15)
        for i in range(4):
            for k in range(4):
                q = u + 2 * (k % 2)
                self.unpack(q, q + 1, d + 4*i + k)
                s0 = t + 20 + (i & ~1)
                a = f"v[{t+10+2*k}:{t+11+2*k}]"
                if i == 0: g(f"v_pk_mul_f32 {a}, v[{q}:{q+1}], v[{s0}:{s0+1}] op_sel:[0,0] op_sel_hi:[1,0]")
                else: g(f"v_pk_fma_f32 {a}, v[{q}:{q+1}], v[{s0}:{s0+1}], {a} op_sel:[0,{i&1},0] op_sel_hi:[1,{i&1},1]")
        for k in range(8):
            g(f"v_add_f32_dpp v{t+20+k}, v{t+10+k}, v{t+10+k} row_ror:8 row_mask:0xf bank_mask:0xf")
        for k in range(4): g(f"v_permlane16_swap_b32 v{t+20+k}, v{t+24+k}")
        for k in range(4): g(f"v_add_f32 v{t+20+k}, v{t+20+k}, v{t+24+k}")
        for k in range(2): g(f"v_permlane32_swap_b32 v{t+20+k}, v{t+22+k}")
        g(f"v_bfe_u32 v{t+3}, v1, 4, 1")
        g(f"v_lshlrev_b32 v{t+3}, 4, v{t+3}")
        g(f"v_bfe_u32 v{t+4}, v1, 5, 1")
        g(f"v_lshl_add_u32 v{t+3}, v{t+4}, 3, v{t+3}")
        g(f"v_lshl_add_u32 v{t+3}, v{t+9}, 5, v{t+3}")
        g(f"s_lshl_b32 s100, s{S_W}, 8")
        g(f"s_add_u32 s100, s100, {L_RED}")
        g(f"v_add_u32 v{t+3}, s100, v{t+3}")
        for k in range(2): g(f"v_add_f32 v{t+20+k}, v{t+20+k}, v{t+22+k}")
        g(f"ds_write_b64 v{t+3}, v[{t+20}:{t+21}]")
    def late_part2(self):
        g = self.g
        t = 176
        L = g.newlabel("Llate")
        snap = g.snapshot()
        g(f"s_cmp_lg_u32 s{S_W}, 3")
        g(f"s_cbranch_scc1 {L}")
        g(f"s_cmp_ge_u32 s{S_B}, 200")
        g(f"s_cbranch_scc1 {L}")
        g(f"v_and_b32 v{t}, 15, v1")
        g(f"v_lshlrev_b32 v{t}, 4, v{t}")
        g(f"v_add_u32 v{t+1}, {L_RED}, v{t}")
        for i in range(4):
            g(f"ds_read_b128 v[{t+4+4*i}:{t+7+4*i}], v{t+1} offset:{256*i}")
        g(f"s_lshl_b32 s100, s{S_P}, 8")
        g(f"s_mul_i32 s{S_PK}, s{S_PK}, 10240")
        g(f"s_add_u32 s100, s100, s{S_PK}")
        g(f"s_add_u32 s100, s100, {WS_MODL - 5120}")
        g(f"v_mov_b32 v{t+2}, 0xff")
        for k in range(4):
            g(f"v_add_f32 v{t+4+k}, v{t+4+k}, v{t+8+k}")
            g(f"v_add_f32 v{t+12+k}, v{t+12+k}, v{t+16+k}")
        for k in range(4): g(f"v_add_f32 v{t+4+k}, v{t+4+k}, v{t+12+k}")
        for k in range(4): g(f"v_bfi_b32 v{t+4+k}, v{t+2}, s{S_TB+k}, v{t+4+k}")
        g("s_mov_b64 exec, 0xffff")
        g(f"buffer_store_dwordx4 v[{t+4}:{t+7}], v{t}, s[{R_WS}:{R_WS+3}], s100 offen sc1")
        g("s_mov_b64 exec, -1")
        g("s_nop 1")
        g.label(L)
        g.restore(snap)

    def p1(self):
        g = self.g
        cfg = self.cfg
        SB0 = self.bstart(S_BH)
        SQ, SQL = S_TMP + 12, S_TMP + 13
        ACC, AB = 40, 80
        pc = Sched(cfg["cap"])
        self.barrier()
        self.stamp("hseen")
        btok = self.bitems(pc, 20, SB0, cfg["la"])
        rda = lambda s_, t, hi: (V_KV0 if s_ < 10 else V_KV1, (s_ % 10) * 5120 + hi * 2560 + 32 * t)
        g(f"v_mov_b32 v3, {L_FAST}")
        g("ds_read_b32 v4, v3")
        cur = [g(r) for r in self.greads(0, 5, AB, rda)]
        self.code_touch("L_c2", 4, 1, 204)
        g(f"s_mul_i32 s{SQL}, s{S_W}, 13312")
        g(f"s_mul_i32 s{SQ}, s{S_J}, 51200")
        g(f"s_add_u32 s{SQ}, s{SQ}, s{SQL}")
        g(f"s_add_u32 s{SQ}, s{SQ}, {WS_RQ}")
        g(f"v_readfirstlane_b32 s{S_FAST}, v4")
        qtok = []
        for q in range(4):
            items, toks = self.lin_items(4 if q < 3 else 1, SQ, SQL, L_WQ + 4096 * q, step_after=4096, flags="sc1")
            for f in items: pc.add(f, 72)
            qtok.append(toks)
        rp_last = []
        if cfg["rp2_st"] == "tail":
            for f in self.rp_store_items(): pc.add(lambda f=f: rp_last.append(f()), 60)
        fill = ["v_and_b32 v32, 127, v0", "v_mul_u32_u24 v32, 48, v32", "v_lshrrev_b32 v33, 7, v0", "v_mul_u32_u24 v33, 6144, v33",
                "v_add_u32 v32, v32, v33", f"v_add_u32 v32, {L_PUB + 40}, v32",
                f"s_cmp_lt_u32 s{S_J}, 8\ns_mov_b32 s{S_TMP}, 0x3f803f80\ns_cselect_b32 s{S_TMP+1}, 0x3f800000, s{S_TMP}",
                f"v_mov_b32 v34, s{S_TMP+1}", f"v_mov_b32 v35, s{S_TMP}",
                f"s_mul_i32 s{S_TMP}, s{S_W}, 6144", f"v_add_u32 v33, s{S_TMP}, v{V_L16}",
                f"s_lshl_b32 s{S_TMP+1}, s{S_RB}, 4", f"s_add_u32 s{S_TMP+1}, s{S_TMP+1}, s{S_J}",
                f"s_mul_i32 s{S_TMP+1}, s{S_TMP+1}, 24576", f"s_add_u32 s{S_TMP}, s{S_TMP}, s{S_TMP+1}",
                f"s_add_u32 s{S_TMP}, s{S_TMP}, {WS_KV}", f"s_add_u32 s{S_TMP+1}, s{S_TMP}, 4096"]
        assert L_PUB == 0
        self.gemm16(20, 5, ACC, AB, rda, lambda s_, Tp: a_((Tp * 20 + s_) * 4, 4), sc=pc, btok=btok,
                    hooks={13: self.barrier}, cur=cur, fill=fill, fill_from=4)
        self.stamp("kvgemm")
        g("ds_write_b64 v32, v[34:35]")
        g("ds_write_b64 v32, v[34:35] offset:12288")
        for t in range(5):
            for Tp in range(2):
                D = ACC + (Tp * 5 + t) * 4
                g(f"v_cvt_pk_bf16_f32 v{D}, v{D}, v{D+1}")
                g(f"v_cvt_pk_bf16_f32 v{D+1}, v{D+2}, v{D+3}")
                g(f"ds_write_b64 v{V_KVW+t}, v[{D}:{D+1}] offset:{768*Tp}")
            pc.force(1)
        pc.drain()
        g.wait_lg(0)
        self.barrier()
        PB = 52
        for i in range(6):
            g(f"ds_read_b128 v[{PB+4*i}:{PB+4*i+3}], v33 offset:{1024*i}")
        for i in range(6):
            sttok = g(f"buffer_store_dwordx4 v[{PB+4*i}:{PB+4*i+3}], v{V_L16}, s[{R_WS}:{R_WS+3}], s{S_TMP + i//4} offen offset:{(1024*i) % 4096} sc1")
        self.stamp("kvst")
        if cfg["rp2_st"] == "after":
            for f in self.rp_store_items(): rp_last.append(f())
        self.late_loads()
        g.wait(qtok[-1][-1])
        self.barrier()
        QACC = 120
        def flags():
            g.wait(sttok)
            self.stamp("kvdrain")
            g("s_mov_b64 exec, 1")
            g(self.flag_ins(F_KV) + " sc1")
            g("s_mov_b64 exec, -1")
            if cfg["rp2_st"] == "tail": self.rp_flags()
        def flags2():
            if cfg["rp2_st"] == "after":
                g.wait(rp_last[-1])
                self.rp_flags()
        self.gemm16(20, 3, QACC, AB, lambda s_, t, hi: (V_Q, s_ * 2560 + hi * 1280 + 32 * t),
                    lambda s_, Tp: a_((Tp * 20 + s_) * 4, 4), hooks={cfg["kvflag_step"]: flags, 19: flags2})
        g(f"s_mov_b32 s{S_TMP}, {hx(fbits(QSCALE))}")
        for t in range(3):
            for Tp in range(2):
                D = QACC + (Tp * 3 + t) * 4
                for k in range(4): g(f"v_mul_f32 v{D+k}, s{S_TMP}, v{D+k}")
                g(f"v_cvt_pk_bf16_f32 v{D}, v{D}, v{D+1}")
                g(f"v_cvt_pk_bf16_f32 v{D+1}, v{D+2}, v{D+3}")
                g(f"ds_write_b64 v{V_QW+t}, v[{D}:{D+1}] offset:{768*Tp}")
        self.stamp("qgemm")

    def p2(self):
        g = self.g
        cfg = self.cfg
        S0, S1, S2, O0, O1, P, VF, QF = 40, 56, 72, 88, 104, 120, 128, 144
        g.label("L_c2")
        XR = 240
        SK = S_TMP + 2
        g(f"s_lshl_b32 s{SK}, s{S_RB}, 4")
        g(f"s_add_u32 s{SK}, s{SK}, s{S_CQ}")
        g(f"s_lshl_b32 s{SK}, s{SK}, 2")
        g(f"s_lshl_b32 s{S_TMP}, s{S_RH}, 1")
        g(f"s_add_u32 s{SK}, s{SK}, s{S_TMP}")
        g(f"s_add_u32 s{SK}, s{SK}, s{S_KH}")
        g(f"s_mul_i32 s{SK}, s{SK}, 6144")
        g(f"s_mul_i32 s{S_TMP}, s{S_TP}, 3072")
        g(f"s_add_u32 s{SK}, s{SK}, s{S_TMP}")
        g(f"s_add_u32 s{SK}, s{SK}, {WS_KV}")
        for d in (1, 2):
            g(f"s_sub_u32 s{SK+d}, s{SK}, {d*64*6144}")
            g(f"s_cmp_ge_u32 s{S_RB}, {d}")
            g(f"s_cselect_b32 s{SK+d}, s{SK+d}, {OOB}")
        g(f"s_mul_i32 s{S_TMP+1}, s{S_KH}, 18432")
        g(f"s_add_u32 s{S_TMP+1}, s{S_TMP+1}, s{S_TMP}")
        g(f"v_add_u32 v32, {L_QB}, v{V_K1}")
        g(f"v_add_u32 v33, {L_QB}, v{V_K2}")
        g.wait_lg(0)
        for u in range(2):
            g(f"ds_read_b128 v[{QF+8*u}:{QF+8*u+3}], v32 offset:{6144*u}")
            g(f"ds_read_b64 v[{QF+8*u+4}:{QF+8*u+5}], v33 offset:{6144*u}")
        g(f"s_mul_i32 s{S_TMP+5}, s{S_W}, 2560")
        g(f"s_mul_i32 s{S_TMP+6}, s{S_CQ}, 320")
        g(f"s_add_u32 s{S_TMP+5}, s{S_TMP+5}, s{S_TMP+6}")
        g(f"s_add_u32 s{S_TMP+5}, s{S_TMP+5}, {WS_MODL}")
        keep = g.snapshot()
        g(f"s_cmp_lg_u32 s{S_W}, 0")
        g("s_cbranch_scc1 L_kvseen")
        self.poll(V_PK, "0", 256 * F_KV, 4)
        g.label("L_kvseen")
        g.restore(keep)
        self.barrier()
        self.stamp("haloseen")
        for mv in range(2):
            for d in (2, 1, 0):
                g(f"s_add_u32 m0, s{S_TMP+1}, {L_KVB + 36864*mv + 6144*(2-d)}")
                if mv: g(f"s_add_u32 s{SK+d}, s{SK+d}, {32*6144}")
                for i in range(3):
                    t = g(f"buffer_load_dwordx4 v{V_L16}, s[{R_WS}:{R_WS+3}], s{SK+d} offen offset:{1024*i} sc1 lds")
            if mv == 0: ktok = t
            else: vtok = t
        CU = 0
        g("v_mov_b32 v34, 0x3f80")
        for u in range(2):
            g(f"v_cndmask_b32 v{QF+8*u+4}, v{QF+8*u+4}, v34, s[{S_HALF}:{S_HALF+1}]")
            g(f"v_cndmask_b32 v{QF+8*u+5}, v{QF+8*u+5}, 0, s[{S_HALF}:{S_HALF+1}]")
        g(f"s_cmp_eq_u32 s{S_W}, 2")
        g(f"s_cselect_b32 s{S_TMP+7}, 1.0, 0")
        g(f"s_mov_b32 s{S_TMP+8}, {hx(fbits(NLOG2E))}")
        g(f"s_cmp_eq_u32 s{S_W}, 0")
        g(f"s_cselect_b32 s{S_TMP+8}, 1.0, s{S_TMP+8}")
        g(f"s_cmp_eq_u32 s{S_W}, 3")
        g(f"s_cselect_b32 s{S_TMP+8}, {hx(fbits(1/NLOG2E))}, s{S_TMP+8}")
        self.srd(R_A, P_X, 2048 * 1280)
        SO, SL, SG = S_TMP + 12, S_TMP + 13, S_TMP + 16
        g(f"s_mul_i32 s{SO}, s{S_CQ}, 20")
        g(f"s_add_u32 s{SO}, s{SO}, s{S_W}")
        g(f"s_lshl_b32 s{S_TMP+9}, s{SO}, 2")
        g(f"s_mul_i32 s{SO}, s{SO}, 5120")
        g(f"s_add_u32 s{SO}, s{SO}, {WS_RWO}")
        g(f"s_mul_i32 s{SL}, s{S_W}, 5120")
        g(f"s_mul_i32 s{SG}, s{S_J}, 245760")
        g(f"s_mul_i32 s{S_TMP+10}, s{S_W}, 3072")
        g(f"s_add_u32 s{SG}, s{SG}, s{S_TMP+10}")
        g(f"s_add_u32 s{SG}, s{SG}, {WS_RGU}")
        g("v_min_u32 v35, 9, v1")
        g("v_lshlrev_b32 v35, 4, v35")
        g(f"s_mul_i32 s{S_TMP+10}, s{S_J}, 160")
        g(f"s_lshl_b32 s{S_TMP}, s{S_W}, 2")
        g(f"s_add_u32 s{S_TMP+10}, s{S_TMP+10}, s{S_TMP}")
        g(f"v_add_u32 v35, s{S_TMP+10}, v35")
        g("v_subrev_u32 v36, 10, v1")
        g("v_lshlrev_b32 v36, 4, v36")
        g(f"s_add_u32 s{S_TMP+9}, s{S_TMP+9}, 4096")
        g(f"v_add_u32 v36, s{S_TMP+9}, v36")
        g(f"v_cmp_lt_u32 s[{S_TT}:{S_TT+1}], 9, v1")
        g(f"v_cndmask_b32 v35, v35, v36, s[{S_TT}:{S_TT+1}]")
        g("v_min_u32 v36, 26, v1")
        g("v_subrev_u32 v36, 15, v36")
        g("v_lshlrev_b32 v36, 3, v36")
        g(f"s_mul_i32 s{S_TMP+9}, s{S_CQ}, 48")
        g(f"s_mul_i32 s{S_TMP+10}, s{S_KH}, 24")
        g(f"s_add_u32 s{S_TMP+9}, s{S_TMP+9}, s{S_TMP+10}")
        g(f"s_add_u32 s{S_TMP+9}, s{S_TMP+9}, s{S_TP}")
        g(f"s_lshl_b32 s{S_TMP+9}, s{S_TMP+9}, 2")
        g(f"s_add_u32 s{S_TMP+9}, s{S_TMP+9}, 8192")
        g(f"v_add_u32 v36, s{S_TMP+9}, v36")
        g(f"v_cmp_lt_u32 s[{S_TT}:{S_TT+1}], 14, v1")
        g(f"v_cndmask_b32 v35, v35, v36, s[{S_TT}:{S_TT+1}]")
        g(f"s_mov_b32 s{S_TMP+10}, {WS_RF}")
        self.late_part1()
        g.wait_lg(0)
        self.barrier()
        self.late_part2()
        g.wait(ktok)
        g(f"s_cmp_ge_u32 s{S_RB}, 2")
        g("s_cbranch_scc1 L_noinv")
        g("v_mul_u32_u24 v3, 48, v1")
        g(f"v_add_u32 v3, s{S_TMP+1}, v3")
        g(f"v_mov_b32 v8, {hx(0x3f800000 | (NEG_BIG >> 16))}")
        g("v_mov_b32 v9, 0x3f803f80")
        g(f"ds_write_b64 v3, v[8:9] offset:{L_KVB + 40}")
        g(f"s_cmp_ge_u32 s{S_RB}, 1")
        g("s_cbranch_scc1 L_noinv")
        g(f"ds_write_b64 v3, v[8:9] offset:{L_KVB + 6144 + 40}")
        g.label("L_noinv")
        g.wait_lg(0)
        self.barrier()
        self.stamp("attn0")
        self.code_touch("L_c3", 5, 1, 204)
        pc = Pacer()
        for t in range(5):
            pc.add(lambda t=t: g(f"buffer_load_dwordx2 v[{XR+2*t}:{XR+2*t+1}], v{V_XR}, s[{R_A}:{R_A+3}], s{S_TMP+11} offen offset:{32*t}"), 100)
        if cfg["touch"]:
            g("v_lshlrev_b32 v32, 2, v1")
            pc.add(lambda: g(f"buffer_load_dword v33, v32, s[{R_WS}:{R_WS+3}], s{S_SS+1} offen"), 100)
        cost = cfg["attn_cost"]
        for it in range(4):
            items, _ = self.lin_items(5, SO, SL, L_WO_E + it * 20480, step_after=20480, flags="sc1")
            for f in items: pc.add(f, cfg["wo_cost"])
        g(f"s_cmp_eq_u32 s{S_W}, 3")
        g(f"s_cselect_b32 s{S_TMP+17}, {L_WO19}, s{SL}")
        late_wo, _ = self.lin_items(5, SO, S_TMP + 17, 0, flags="sc1")
        for d in range(cfg["stage"]):
            for n in range(3):
                def f(d=d, n=n):
                    r = A_STG + 12 * d + 4 * n
                    g(f"buffer_load_dwordx4 a[{r}:{r+3}], v{V_L16}, s[{R_WS}:{R_WS+3}], s{SG} offen offset:{1024*n} sc1")
                    if n == 2: g(f"s_add_u32 s{SG}, s{SG}, 12288")
                pc.add(f, cfg["gu_cost"], 1)
            if d == cfg["stage"] // 2:
                for f in late_wo: pc.add(f, cfg["wo_cost"], 2)
        if cfg["stage"] == 0:
            for f in late_wo: pc.add(f, cfg["wo_cost"], 2)
        phase = [0]
        def tick(dt): pc.tick(dt, phase[0])
        def rp_issue():
            self.rp_tok = g(f"buffer_load_dword v36, v35, s[{R_WS}:{R_WS+3}], s{S_TMP+10} offen sc1")
        def rp_check():
            Ls, Lj = g.newlabel("Lrs"), g.newlabel("Lrj")
            g(f"v_cmp_ne_u32 vcc, s{S_T}, v36")
            g(f"s_cbranch_vccnz {Ls}")
            g.label(Lj)
            def slow():
                L2 = g.newlabel("Lrl")
                g.label(Ls)
                g.raw(f"s_mov_b32 s{S_CNT}, {POLL_MAX}")
                g.label(L2)
                g.raw(f"buffer_load_dword v36, v35, s[{R_WS}:{R_WS+3}], s{S_TMP+10} offen sc1")
                g.raw("s_waitcnt vmcnt(0)")
                g.raw(f"v_cmp_ne_u32 vcc, s{S_T}, v36")
                g.raw(f"s_cbranch_vccz {Lj}")
                g.raw(f"s_sub_u32 s{S_CNT}, s{S_CNT}, 1")
                g.raw(f"s_cbranch_scc0 {L2}")
                g.raw(f"s_branch {Lj}")
            self.cold.append(slow)
            phase[0] = 1
            pc.free = pc.t
        VG = 176
        def vec_issue():
            for k in range(5):
                g(f"s_add_u32 s{S_TMP+6}, s{S_TMP+5}, {10240*k}")
                g(f"buffer_load_dwordx4 v[{VG+4*k}:{VG+4*k+3}], v{V_VEC}, s[{R_WS}:{R_WS+3}], s{S_TMP+6} offen sc1")
        def vec_check():
            Ls, Lj = g.newlabel("Lvs"), g.newlabel("Lvj")
            def chk():
                for k in range(5): self.tagcheck(VG + 20, range(VG + 4*k, VG + 4*k + 4), k == 0)
                g(f"v_and_b32 v{VG+20}, 0xff, v{VG+20}")
                g(f"v_cmp_ne_u32 vcc, 0, v{VG+20}")
            chk()
            g(f"s_cbranch_vccnz {Ls}")
            g.label(Lj)
            def slow():
                L2 = g.newlabel("Lvl")
                g.label(Ls)
                g.forget()
                g(f"s_mov_b32 s{S_CNT}, {POLL_MAX}")
                g.label(L2)
                vec_issue()
                g.wait_vm(0)
                chk()
                g(f"s_cbranch_vccz {Lj}")
                g(f"s_sub_u32 s{S_CNT}, s{S_CNT}, 1")
                g(f"s_cbranch_scc0 {L2}")
                g(f"s_branch {Lj}")
            self.cold.append(slow)
            b = VG
            for q in range(1, 5):
                for k in (0, 2): g(f"v_pk_add_f32 v[{b+k}:{b+k+1}], v[{b+k}:{b+k+1}], v[{b+4*q+k}:{b+4*q+k+1}]")
            for rep in range(2):
                if rep:
                    for k in range(4): g(f"v_add_f32 v{b+k}, s{S_TMP+7}, v{b+k}")
                if not cfg["exact_round"]: continue
                g(f"v_cvt_pk_bf16_f32 v{b+4}, v{b}, v{b+1}")
                g(f"v_cvt_pk_bf16_f32 v{b+5}, v{b+2}, v{b+3}")
                self.unpack(b, b + 1, b + 4); self.unpack(b + 2, b + 3, b + 5)
            for k in range(4): g(f"v_mul_f32 v{b+k}, s{S_TMP+8}, v{b+k}")
            g(f"s_mul_i32 s{S_TMP}, s{S_W}, 320")
            g(f"s_add_u32 s{S_TMP}, s{S_TMP}, {L_VEC}")
            g(f"v_add_u32 v3, s{S_TMP}, v{V_VEC}")
            g(f"ds_write_b128 v3, v[{b}:{b+3}]")
        SB = (S0, S1, S2)
        def kread(u, tau):
            g(f"ds_read_b128 a[{8*tau}:{8*tau+3}], v{V_K1} offset:{L_KVB + 18432*u + 1536*tau}")
            return g(f"ds_read_b64 a[{8*tau+4}:{8*tau+5}], v{V_K2} offset:{L_KVB + 18432*u + 1536*tau}")
        def qk_a(u, tau):
            Sx = SB[tau % 3]
            C = v(V_BF, 16) if tau == 0 else v(V_BD, 16) if tau == 8 else "0"
            g(f"v_mfma_f32_32x32x16_bf16 v[{Sx}:{Sx+15}], a[{8*tau}:{8*tau+3}], v[{QF+8*u}:{QF+8*u+3}], {C}")
        def qk_b(u, tau):
            Sx = SB[tau % 3]
            g(f"v_mfma_f32_32x32x8_bf16 v[{Sx}:{Sx+15}], a[{8*tau+4}:{8*tau+5}], v[{QF+8*u+4}:{QF+8*u+5}], v[{Sx}:{Sx+15}]")
        def vread(u, tau, kp):
            b = VF + 8 * (tau % 2)
            for rd in range(2):
                g(f"ds_read_b64_tr_b16 v[{b+4*kp+2*rd}:{b+4*kp+2*rd+1}], v{V_VT} offset:{18432*u + 1536*tau + 768*kp + 384*rd}")
        for u in range(2):
            O = (O0, O1)[u]
            kt = {}
            if u == CU and not cfg["rp2_chk"]: rp_issue()
            for tau in range(4): kt[tau] = kread(u, tau)
            g.wait(kt[1])
            qk_a(u, 0); kt[4] = kread(u, 4); qk_b(u, 0)
            qk_a(u, 1); kt[5] = kread(u, 5); qk_b(u, 1)
            def mx(tau, ks):
                Sx = SB[tau % 3]
                for k in ks:
                    m = 8 + (k & 1)
                    if tau == 0 and k < 2: g(f"v_max_f32 v{m}, v{Sx+2*k}, v{Sx+2*k+1}")
                    else: g(f"v_max3_f32 v{m}, v{Sx+2*k}, v{Sx+2*k+1}, v{m}")
            for tau in range(9):
                if tau + 2 < 9:
                    if tau % 2 == 0: g.wait(kt[min(tau + 3, 8)])
                    qk_a(u, tau + 2)
                    if tau + 6 < 9: kt[tau + 6] = kread(u, tau + 6)
                    else: tick(64)
                    mx(tau, range(0, 4))
                    qk_b(u, tau + 2)
                    mx(tau, range(4, 8))
                elif tau == 7:
                    if u == 0:
                        g.wait(vtok)
                        self.barrier()
                    else:
                        self.barrier()
                        phase[0] = 2
                    if u == CU and not cfg["rp2_chk"]: rp_check()
                    qk_a(u, 0)
                    vread(u, 0, 0); vread(u, 0, 1)
                    mx(tau, range(8))
                else:
                    qk_a(u, 1)
                    mx(tau, range(8))
            if cfg.get("atstamps"): self.stamp(f"p1_{u}")
            g("v_max_f32 v8, v8, v9")
            g("v_mov_b32 v9, v8")
            g("v_permlane32_swap_b32 v8, v9")
            g("v_max_f32 v8, v8, v9")
            g("v_sub_f32 v8, 0, v8")
            g("v_and_b32 v9, 0xffff0000, v8")
            g("v_sub_f32 v8, v8, v9")
            g("v_or_b32 v9, 0x3f80, v9")
            g("v_and_b32 v3, 0xffff0000, v8")
            g("v_sub_f32 v8, v8, v3")
            g("v_lshrrev_b32 v3, 16, v3")
            g("v_and_b32 v8, 0xffff0000, v8")
            g("v_or_b32 v8, v8, v3")
            g(f"v_cndmask_b32 v{QF+8*u+4}, v{QF+8*u+4}, v9, s[{S_HALF}:{S_HALF+1}]")
            g(f"v_cndmask_b32 v{QF+8*u+5}, v{QF+8*u+5}, v8, s[{S_HALF}:{S_HALF+1}]")
            qk_b(u, 0)
            qk_b(u, 1)
            def pv(tau, kp):
                b = VF + 8 * (tau % 2) + 4 * kp
                C = "0" if (tau == 0 and kp == 0) else v(O, 16)
                g(f"v_mfma_f32_32x32x16_bf16 v[{O}:{O+15}], v[{b}:{b+3}], v[{P+4*kp}:{P+4*kp+3}], {C}")
            for tau in range(9):
                Sx = SB[tau % 3]
                def ex(k0):
                    for k in range(k0, k0 + 4): g(f"v_exp_f32 v{Sx+k}, v{Sx+k}")
                def cv(k0):
                    for k in (k0, k0 + 2): g(f"v_cvt_pk_bf16_f32 v{P+k//2}, v{Sx+k}, v{Sx+k+1}")
                if u == 0 and tau == cfg["rp2_flag"] and CU:
                    g.wait(rp_last)
                    self.rp_flags()
                if u == CU and cfg["rp2_chk"] and tau == cfg["rp2_chk"] - 1: rp_issue()
                if u == CU and cfg["rp2_chk"] and tau == cfg["rp2_chk"] + 1: rp_check()
                if u == 1 and tau == cfg["vec_at"]: vec_issue()
                if tau > 0: pv(tau - 1, 1)
                ex(0)
                if tau + 1 < 9: vread(u, tau + 1, 0)
                tick(54)
                if tau + 2 < 9: qk_a(u, tau + 2)
                ex(4); cv(0); cv(4)
                if tau + 1 < 9: vread(u, tau + 1, 1)
                pv(tau, 0)
                tick(54)
                ex(8)
                if tau + 2 < 9: qk_b(u, tau + 2)
                tick(54)
                ex(12); cv(8); cv(12)
                tick(54)
            pv(8, 1)
            if cfg.get("atstamps"): self.stamp(f"p2_{u}")
        pc.drain()
        E = S0
        for u in range(2):
            O = (O0, O1)[u]
            g(f"v_mov_b32 v8, v{O+8}")
            g(f"v_mov_b32 v9, v{O+8}")
            g("v_permlane32_swap_b32 v8, v9")
            g("v_rcp_f32 v9, v9")
            for k in range(12): g(f"v_mul_f32 v{O+k}, v{O+k}, v9")
        for (dst, src) in ((E, O0), (E+2, O0+4), (E+4, O0+8), (E+6, O1), (E+8, O1+4), (E+10, O1+8)):
            g(f"v_cvt_pk_bf16_f32 v{dst}, v{src}, v{src+1}")
            g(f"v_cvt_pk_bf16_f32 v{dst+1}, v{src+2}, v{src+3}")
        for k in range(2):
            g(f"v_permlane32_swap_b32 v{E+k}, v{E+2+k}")
            g(f"v_permlane32_swap_b32 v{E+6+k}, v{E+10+k}")
        g(f"buffer_store_dwordx4 v[{E}:{E+3}], v{V_OST}, s[{R_WS}:{R_WS+3}], s{S_OST} offen")
        for k in range(2):
            g(f"v_cndmask_b32 v{E+12+k}, v{E+10+k}, v{E+8+k}, s[{S_HALF}:{S_HALF+1}]")
            g(f"v_cndmask_b32 v{E+14+k}, v{E+8+k}, v{E+6+k}, s[{S_HALF}:{S_HALF+1}]")
        g(f"buffer_store_dwordx4 v[{E+12}:{E+15}], v{V_OST}, s[{R_WS}:{R_WS+3}], s{S_OST} offen offset:768")
        g("s_mov_b64 exec, 0xffffffff")
        g(f"buffer_store_dwordx4 v[{E+4}:{E+7}], v{V_OST}, s[{R_WS}:{R_WS+3}], s{S_OST} offen offset:512")
        g("s_mov_b64 exec, -1")
        self.stamp("attn1")
        self.bstart(S_BO, S_BO + 1)
        g(f"s_mul_i32 s{S_TMP+2}, s{S_KH}, 51200")
        g(f"s_add_u32 s{S_TMP+2}, s{S_TMP+2}, {L_WO_E}")
        g(f"v_add_u32 v5, s{S_TMP+2}, v{V_T160}")
        self.publish(F_O)
        self.vec_check = vec_check


    def stats_reduce(self, a, b, t):
        g = self.g
        g(f"v_permlane16_swap_b32 v{a}, v{b}")
        g(f"v_add_f32 v{a}, v{a}, v{b}")
        g(f"v_mov_b32 v{b}, v{a}")
        g(f"v_permlane32_swap_b32 v{a}, v{b}")
        g(f"v_add_f32 v{a}, v{a}, v{b}")
        g(f"v_mov_b32 v{b}, v{a}")
        g(f"v_permlane16_swap_b32 v{a}, v{b}")

    def p3(self):
        g = self.g
        cfg = self.cfg
        XR, X1 = 240, 230
        ACC, AB = 40, 80
        SB0 = S_TMP + 14
        assert cfg["stage"] + cfg["gu_a"] + cfg["gu_c"] <= 8
        self.gu_next, self.gu_tok, self.fl_next = cfg["stage"], {}, 0
        g.label("L_c3")
        self.barrier()
        rda = lambda s_, t, hi: ((5, s_ * 5120) if s_ < 6 else (6, (s_ - 6) * 5120) if s_ < 9 else (7, 0))
        rdb = lambda s_, t, hi: (rda(s_, t, hi)[0], rda(s_, t, hi)[1] + hi * 2560 + 32 * t)
        cur = [g(r) for r in self.greads(0, 5, AB, rdb)]
        self.poll(V_PH, f"s{S_FB}", 256 * F_O, 4)
        self.acquire()
        self.stamp("oseen")
        pc = Sched(cfg["cap"])
        btok = self.bitems(pc, 10, SB0, cfg["la"])
        self.vec_check()
        g(f"s_cmp_eq_u32 s{S_KH}, 0")
        g(f"s_cselect_b32 s{S_TMP+2}, {L_WO_E + 30720}, 0")
        g(f"s_mov_b32 s{S_TMP+3}, {L_WO19}")
        g(f"s_cselect_b32 s{S_TMP+3}, {L_WO_E + 46080}, s{S_TMP+3}")
        g(f"v_add_u32 v6, s{S_TMP+2}, v{V_T160}")
        g(f"v_add_u32 v7, s{S_TMP+3}, v{V_T160}")
        XF = 140
        fill = []
        for i in range(10):
            fill += [f"v_lshlrev_b32 v{XF+2*i}, 16, v{XR+i}", f"v_and_b32 v{XF+2*i+1}, 0xffff0000, v{XR+i}"]
        fill += ["v_lshrrev_b32 v13, 4, v1", "v_lshlrev_b32 v19, 4, v13", f"v_add_u32 v19, {L_VEC}, v19",
                 f"s_mul_i32 s{S_TMP+17}, s{S_W}, 3072", f"v_add_u32 v32, s{S_TMP+17}, v{V_L16}",
                 f"v_add_u32 v33, {5*GU_SLOT}, v32", f"v_add_u32 v34, {10*GU_SLOT}, v32",
                 "v_and_b32 v12, 15, v1", "v_lshlrev_b32 v12, 4, v12", "v_lshl_add_u32 v14, v13, 12, v12",
                 "v_bfe_u32 v16, v1, 4, 1", "v_lshlrev_b32 v16, 9, v16", "v_lshrrev_b32 v17, 5, v1",
                 "v_lshl_add_u32 v17, v17, 8, v12", "v_add_u32 v16, v16, v17",
                 f"s_mul_i32 s{S_TMP}, s{S_W}, 5120", f"s_add_u32 s{S_TMP}, s{S_TMP}, {L_RB}", f"v_add_u32 v3, s{S_TMP}, v{V_L16}",
                 f"s_xor_b32 s{S_TMP+1}, s{S_W}, 1", f"s_mul_i32 s{S_TMP+1}, s{S_TMP+1}, 5120", f"s_add_u32 s{S_TMP+1}, s{S_TMP+1}, {L_RB}",
                 f"v_add_u32 v4, s{S_TMP+1}, v{V_L16}", "v_mov_b32 v15, 0x3f803f80", f"v_mov_b32 v10, s{S_T}", f"v_mov_b32 v11, s{S_T}"]
        self.gemm16(10, 5, ACC, AB, rdb, lambda s_, Tp: a_((Tp * 10 + s_) * 4, 4), sc=pc, btok=btok, cur=cur, fill=fill, fill_from=1)
        self.stamp("ogemm")
        GA, S2, G2 = 120, 180, 200
        for t in range(5):
            g(f"ds_write_b128 v3, v[{ACC+20+4*t}:{ACC+23+4*t}] offset:{1024*t}")
        g.wait_lg(0)
        self.barrier()
        for t in range(5):
            g(f"ds_read_b128 v[{ACC+20+4*t}:{ACC+23+4*t}], v4 offset:{1024*t}")
            g(f"ds_read_b128 v[{GA+4*t}:{GA+4*t+3}], v19 offset:{64*t}")
        for _ in range(cfg["gu_a"]):
            for f in self.gu_items(): f()
        for t in range(5):
            for k in (4 * t, 4 * t + 2):
                g(f"v_pk_add_f32 v[{ACC+k}:{ACC+k+1}], v[{ACC+k}:{ACC+k+1}], v[{ACC+20+k}:{ACC+21+k}]")
                g(f"v_pk_fma_f32 v[{XF+k}:{XF+k+1}], v[{ACC+k}:{ACC+k+1}], v[{GA+k}:{GA+k+1}], v[{XF+k}:{XF+k+1}]")
            for i in (2 * t, 2 * t + 1):
                g(f"v_cvt_pk_bf16_f32 v{X1+i}, v{XF+2*i}, v{XF+2*i+1}")
        for i in range(10):
            g(f"v_dot2_f32_bf16 v8, v{X1+i}, v15, {'0' if i == 0 else 'v8'}")
            g(f"v_dot2_f32_bf16 v9, v{X1+i}, v{X1+i}, {'0' if i == 0 else 'v9'}")
        self.stats_reduce(8, 9, 18)
        self.store_either(f"buffer_store_dwordx4 v[8:11], v12, s[{R_WS}:{R_WS+3}], s{S_SS+1} offen", "0xffff")
        ld = [f"buffer_load_dwordx4 v[{ACC}:{ACC+3}], v14, s[{R_WS}:{R_WS+3}], s{S_SS} offen sc1",
              f"buffer_load_dwordx4 v[{ACC+4}:{ACC+7}], v14, s[{R_WS}:{R_WS+3}], s{S_SS} offen offset:2048 sc1"]
        for t in range(5):
            g(f"ds_read_b128 v[{S2+4*t}:{S2+4*t+3}], v19 offset:{320+64*t}")
            g(f"ds_read_b128 v[{G2+4*t}:{G2+4*t+3}], v19 offset:{640+64*t}")
        for t in range(5):
            g(f"ds_read_b128 a[{A_GB+4*t}:{A_GB+4*t+3}], v19 offset:{960+64*t}")
        for x in ld: g(x)
        for i in range(10): self.unpack(XF + 2*i, XF + 2*i + 1, X1 + i)
        g.wait_lg(0)
        assert cfg["stage"] <= 8 or cfg["fl_b"] <= 8
        self.gu_flush(cfg["fl_b"])
        L = g.newlabel("Ls"); D = g.newlabel("Lsd")
        g(f"s_mov_b32 s{S_CNT}, {POLL_MAX}")
        g.label(L)
        g.wait_vm(0)
        g(f"v_xor_b32 v15, s{S_T}, v{ACC+2}")
        g(f"v_bitop3_b32 v15, v15, v{ACC+6}, s{S_T} bitop3:0xf6")
        g("v_cmp_ne_u32 vcc, 0, v15")
        g(f"s_cbranch_vccz {D}")
        for x in ld: g(x)
        g(f"s_sub_u32 s{S_CNT}, s{S_CNT}, 1")
        g(f"s_cbranch_scc0 {L}")
        g.wait_vm(0)
        g.label(D)
        self.stamp("stseen")
        g(f"v_pk_add_f32 v[8:9], v[{ACC}:{ACC+1}], v[{ACC+4}:{ACC+5}]")
        self.stats_reduce(8, 9, 18)
        self.rstd(8, 9, 10)
        for k in range(0, 20, 2):
            g(f"v_pk_fma_f32 v[{XF+k}:{XF+k+1}], v[{XF+k}:{XF+k+1}], v[8:9], v[8:9] op_sel:[0,1,0] op_sel_hi:[1,1,0]")
        for k in range(0, 20, 2):
            g(f"v_pk_fma_f32 v[{XF+k}:{XF+k+1}], v[{XF+k}:{XF+k+1}], v[{G2+k}:{G2+k+1}], v[{S2+k}:{S2+k+1}]")
        E = ACC
        self.pack_chunks(XF, E)
        g(f"buffer_store_dwordx4 v[{E}:{E+3}], v16, s[{R_WS}:{R_WS+3}], s{S_H2ST} offen")
        g(f"buffer_store_dwordx4 v[{E+4}:{E+7}], v16, s[{R_WS}:{R_WS+3}], s{S_H2ST} offen offset:1024")
        g(f"buffer_store_dwordx4 v[{E+8}:{E+11}], v17, s[{R_WS}:{R_WS+3}], s{S_H2ST} offen offset:2048")
        self.bstart(S_BH)
        self.gu_flush(cfg["fl_a"])
        self.publish(F_H2)
        self.stamp("h2pub")

    def p4(self):
        g = self.g
        cfg = self.cfg
        ACC, AB, E = 40, 136, 184
        SB0 = S_TMP + 14
        SA = S_TMP + 4
        for _ in range(cfg["gu_c"]):
            for f in self.gu_items(): f()
        self.gu_flush(8)
        g("v_lshrrev_b32 v3, 2, v1")
        g("v_mul_u32_u24 v3, 96, v3")
        g("v_and_b32 v4, 3, v1")
        g("v_lshl_add_u32 v5, v4, 3, v3")
        g.wait_lg(0)
        self.poll(V_PG, f"s{S_FB}", 256 * F_H2, 4)
        self.acquire()
        self.stamp("h2seen")
        pc = Sched(cfg["cap"])
        def breg(s_, Tp): return (0, 100)[Tp] + 4 * s_
        btok = self.bitems(pc, 20, SB0, cfg["lam"], breg)
        npre = self.gu_next
        assert npre <= 9
        nb = cfg["gu_bar"]
        def rd(st):
            d, ks = st >> 1, st & 1
            slot = (d + 4) % GU_NSLOT
            va, so = (5, 6, 7)[slot // 5], (slot % 5) * GU_SLOT
            b = AB + 24 * (st & 1)
            return [f"ds_read_b64_tr_b16 v[{b+4*m6+2*hi}:{b+4*m6+2*hi+1}], v{va} offset:{so + ks*6144 + (m6&1)*3072 + hi*1536 + 32*(m6>>1)}"
                    for m6 in range(6) for hi in range(2)]
        def pre(st):
            if st % (2 * nb): return
            d = st >> 1
            last = max([n for n in range(d, d + nb) if n in self.gu_tok], default=None)
            if last is not None:
                while len(self.gu_tok[last]) < 3: pc.force(1)
                g.wait(self.gu_tok[last][-1])
            self.barrier()
        g(f"v_add_u32 v6, {5*GU_SLOT}, v5")
        g(f"v_add_u32 v7, {10*GU_SLOT}, v5")
        up = lambda x: -(-x // nb) * nb
        for n in range(npre, 20):
            bstep = 2 * (n - n % nb) - 1
            bnd = 0 if n < 13 else up(n - 13 + 2)
            for f in self.gu_items(): pc.add(f, 90, 2 * bnd - 1, bstep - cfg["wlead"], bstep - 2)
        pre(0)
        cur = [g(r) for r in rd(0)]
        self.code_touch("L_c5", 3, 1, 204)
        g(f"s_or_b32 s{S_TMP}, s{S_B}, s{S_W}")
        g(f"s_cmp_lg_u32 s{S_TMP}, 0")
        keep = g.snapshot()
        g("s_cbranch_scc1 L_noepoch")
        g("v_mov_b32 v8, 0")
        g("s_mov_b64 exec, 1")
        g(f"buffer_store_dword v{V_TAG}, v8, s[{R_WS}:{R_WS+3}], 0 offen sc1")
        g("s_mov_b64 exec, -1")
        g.label("L_noepoch")
        g.restore(keep)
        self.dn_setup()
        g(f"s_mov_b32 s{SA}, s{S_AST}")
        g(f"s_add_u32 s{SA+1}, s{S_AST}, 49152")
        if cfg["touch"]:
            g("v_and_b32 v8, 7, v1")
            g("v_bfe_u32 v9, v1, 3, 1")
            g("v_mul_u32_u24 v9, 49152, v9")
            g("v_lshl_add_u32 v9, v8, 7, v9")
            def touch(k):
                g("s_mov_b64 exec, 0xffff")
                g(f"buffer_load_dword v{10+k}, v9, s[{R_WS}:{R_WS+3}], s{SA} offen offset:{1024*k}")
                g("s_mov_b64 exec, -1")
            for k, at in enumerate(cfg["act_touch"]): pc.add(lambda k=k: touch(k), 200, -1, at)
        for p in range(cfg["dn_a"]):
            bnd = up(10) if p == 0 else up(14)
            for f in self.dn_pair_items(): pc.add(f, 90, 2 * bnd - 1, 41 + p)
        pc.sort()
        def D_(ps, m6, Tp): return ACC + 48 * ps + (2 * m6 + Tp) * 4
        def epi(ps):
            out = []
            for m in range(3):
                for Tp in range(2):
                    G, U = D_(ps, 2 * m, Tp), D_(ps, 2 * m + 1, Tp)
                    t6 = 3 * ps + m
                    e = E + 12 * Tp + 2 * t6
                    out += [f"v_exp_f32 v{G+k}, v{G+k}" for k in range(4)]
                    out += [f"v_add_f32 v{G+k}, 1.0, v{G+k}" for k in range(4)]
                    out += [f"v_rcp_f32 v{G+k}, v{G+k}" for k in range(4)]
                    out += [f"v_mul_f32 v{U+k}, v{U+k}, v{G+k}" for k in range(4)]
                    out += [f"v_cvt_pk_bf16_f32 v{e+k}, v{U+2*k}, v{U+2*k+1}" for k in range(2)]
                    if t6 & 1:
                        out.append(f"buffer_store_dwordx4 v[{e-2}:{e+1}], v{V_L16}, s[{R_WS}:{R_WS+3}], s{SA+Tp} offen offset:{1024*(t6>>1)}")
            return out
        fill = []
        for st in range(40):
            ps, s_ = divmod(st, 20)
            if st in (1, 8, 14, 20, 30) and cfg.get("gustamps"): self.stamp(f"gu{st}")
            nxt = []
            if st + 1 < 40:
                pre(st + 1)
                nxt = rd(st + 1)
            if st == 21: fill = epi(0)
            pc.plan(st, 12, 200)
            k = len(pc.slots)
            if k <= 6: pc.slots = [6 + (i * 6) // k for i in range(k)]
            g.wait(cur[-1], btok[s_][-1] if ps == 0 else None)
            new = []
            for i in range(12):
                m6, Tp = divmod(i, 2)
                A = AB + 24 * (st & 1) + 4 * m6
                D = D_(ps, m6, Tp)
                C = "0" if s_ == 0 else v(D, 4)
                b = breg(s_, Tp)
                g(f"v_mfma_f32_16x16x32_bf16 v[{D}:{D+3}], v[{A}:{A+3}], a[{b}:{b+3}], {C}")
                busy = bool(nxt)
                for _ in range(2):
                    if nxt: new.append(g(nxt.pop(0)))
                if pc.slot(i): busy = True
                if not busy and fill:
                    x = fill.pop(0); g(x)
                    if fill and not any(t in x + fill[0] for t in ("exp", "rcp")): g(fill.pop(0))
            cur = new
        pc.drain()
        for f in fill: g(f)
        self.stamp("gugemm")
        self.barrier()
        extra = []
        for p in range(cfg["dn_b"]): extra += self.dn_pair_items()
        for n, f in enumerate(epi(1)):
            g(f)
            if n % 9 == 3 and extra: extra.pop(0)()
        for f in extra: f()
        self.bstart(S_BA, S_BA + 1)
        g(f"s_mul_i32 s{S_TMP+2}, s{S_KH}, 5120")
        g(f"v_add_u32 v5, s{S_TMP+2}, v{V_T160}")
        g("v_add_u32 v7, 122880, v5")
        for k in range(20): g(f"v_accvgpr_read_b32 v{120+k}, a{A_GB+k}")
        self.publish(F_ACT)
        self.stamp("actpub")

    def p5(self):
        g = self.g
        cfg = self.cfg
        ACC, AB, X1 = 40, 80, 230
        SB0 = S_TMP + 14
        g.label("L_c5")
        self.barrier()
        def rd(s_, t, hi):
            slot = (s_ + 14) % 16
            return ((5, 6, 7)[slot // 6], (slot % 6) * 10240 + hi * 2560 + 32 * t)
        cur = [g(r) for r in self.greads(0, 5, AB, rd)]
        nsync = self.dn_next
        for p in range(cfg["dn_c"]):
            for f in self.dn_pair_items(): f()
        npre = self.dn_next
        assert 1 <= nsync and npre <= 8
        self.poll(V_PH, f"s{S_FB}", 256 * F_ACT, 4)
        self.acquire()
        self.stamp("actseen")
        pc = Sched(cfg["cap"])
        btok = self.bitems(pc, 24, SB0, cfg["lam"])
        g("v_add_u32 v6, 61440, v5")
        for p in range(npre, 12):
            bnd = 0 if p < 8 else (2 * (p - 8) + 1 + 2 + 1) & ~1
            for f in self.dn_pair_items(): pc.add(f, 90, bnd - 1, 2 * p - 1 - cfg["wlead"], 2 * p - 3)
        pc.sort()
        need = {2 * p for p in range(npre, 12)} | {(2 * (p - 8) + 4) & ~1 for p in range(8, 12)}
        if npre > nsync: need.add(2 * nsync)
        def pre(c):
            def f():
                p = c // 2
                if p >= npre:
                    while len(self.dn_tok[p]) < 5: pc.force(1)
                    g.wait(self.dn_tok[p][-1])
                self.barrier()
            return f
        XF, GB = 140, 120
        fill = []
        for i in range(10):
            fill += [f"v_lshlrev_b32 v{XF+2*i}, 16, v{X1+i}", f"v_and_b32 v{XF+2*i+1}, 0xffff0000, v{X1+i}"]
        fill += [f"s_mov_b32 s{R_A}, s{P_OUT}", f"s_mov_b32 s{R_A+1}, s{P_OUT+1}", f"s_mov_b32 s{R_A+2}, {2048*1280}", f"s_mov_b32 s{R_A+3}, 0x20000",
                 "v_and_b32 v12, 15, v1", "v_mul_u32_u24 v12, 1280, v12", "v_lshrrev_b32 v15, 5, v1", "v_lshl_add_u32 v15, v15, 4, v12",
                 "v_bfe_u32 v14, v1, 4, 1", "v_lshl_add_u32 v14, v14, 5, v15",
                 f"s_mul_i32 s{S_TMP}, s{S_W}, 5120", f"s_add_u32 s{S_TMP}, s{S_TMP}, 81920", f"v_add_u32 v3, s{S_TMP}, v{V_L16}",
                 f"s_xor_b32 s{S_TMP+1}, s{S_W}, 1", f"s_mul_i32 s{S_TMP+1}, s{S_TMP+1}, 5120", f"s_add_u32 s{S_TMP+1}, s{S_TMP+1}, 81920",
                 f"v_add_u32 v4, s{S_TMP+1}, v{V_L16}"]
        self.gemm16(24, 5, ACC, AB, rd, lambda s_, Tp: a_((Tp * 24 + s_) * 4, 4), sc=pc, btok=btok,
                    hooks={c: pre(c) for c in need}, cur=cur, fill=fill, fill_from=14)
        self.stamp("dgemm")
        for t in range(5):
            g(f"ds_write_b128 v3, v[{ACC+20+4*t}:{ACC+23+4*t}] offset:{1024*t}")
        g.wait_lg(0)
        self.barrier()
        for t in range(5):
            g(f"ds_read_b128 v[{ACC+20+4*t}:{ACC+23+4*t}], v4 offset:{1024*t}")
        for k in range(0, 20, 2):
            g(f"v_pk_add_f32 v[{ACC+k}:{ACC+k+1}], v[{ACC+k}:{ACC+k+1}], v[{ACC+20+k}:{ACC+21+k}]")
            g(f"v_pk_fma_f32 v[{XF+k}:{XF+k+1}], v[{ACC+k}:{ACC+k+1}], v[{GB+k}:{GB+k+1}], v[{XF+k}:{XF+k+1}]")
        E = ACC
        self.pack_chunks(XF, E)
        g(f"buffer_store_dwordx4 v[{E}:{E+3}], v14, s[{R_A}:{R_A+3}], s{S_TMP+11} offen")
        g(f"buffer_store_dwordx4 v[{E+4}:{E+7}], v14, s[{R_A}:{R_A+3}], s{S_TMP+11} offen offset:64")
        g(f"buffer_store_dwordx4 v[{E+8}:{E+11}], v15, s[{R_A}:{R_A+3}], s{S_TMP+11} offen offset:128")

if __name__ == "__main__":
    k = make_all("v9", V9)
    print("instructions", k.g.count, "nop states", k.g.nops)
```
